```python
import torch

def _softmax(x, axis=-1):
    return torch.softmax(x, dim=axis)
def _gelu(x):
    return torch.nn.functional.gelu(x, approximate="tanh")
def _silu(x):
    return torch.nn.functional.silu(x)
def _sigmoid(x):
    return torch.sigmoid(x)
def _layernorm(x, axis=-1, eps=1e-5):
    m = x.mean(dim=axis, keepdim=True)
    v = x.var(dim=axis, keepdim=True, unbiased=False)
    return (x - m) / torch.sqrt(v + eps)
def _scatter_add(tgt, idx, src, axis=0):
    return tgt.clone().index_add_(axis, idx, src)
def _segment_sum(src, seg, n):
    out = torch.zeros((n,) + src.shape[1:], dtype=src.dtype)
    return out.index_add_(0, seg, src)
def _pad(x, pw):
    flat = tuple(v for pair in reversed(pw) for v in pair)
    return torch.nn.functional.pad(x, flat)

kernel_name = 'recurrent_scan__ssm_conv_s4d__dense_activation_relu__prompt'

def setup_inputs():

    _w = (lambda a: (lambda t: t.to(torch.bfloat16) if t.is_floating_point() else t)(torch.as_tensor(a)))
    def _A_setup():
        Bsz, L, D, N = 1, 2048, 448, 256
        return {
            "u": _w((lambda *s: torch.randn(*s, dtype=torch.bfloat16) * 0.05)(Bsz, L, D)),
            "log_A_real": _w((lambda *s: torch.randn(*s, dtype=torch.bfloat16) * 6.4)(D, N) * 0.5),
            "A_imag": _w((lambda *s: torch.randn(*s, dtype=torch.bfloat16) * 0.05)(D, N) * 3.14),
            "C_real": _w((lambda *s: torch.randn(*s, dtype=torch.bfloat16) * 0.05)(D, N) / N ** 0.5),
            "C_imag": _w((lambda *s: torch.randn(*s, dtype=torch.bfloat16) * 0.05)(D, N) / N ** 0.5),
            "log_dt": _w((lambda *s: torch.randn(*s, dtype=torch.bfloat16) * 0.05)(D) * 0.5 - 4.0),
            "D_skip": _w((lambda *s: torch.randn(*s, dtype=torch.bfloat16) * 0.05)(D)),
        }
    _A_in = _A_setup()

    def _B_setup():
        B, S, D, Dff = 1, 2048, 448, 1792
        return {
            "x": _w((lambda *s: torch.randn(*s, dtype=torch.bfloat16) * 0.05)(B, S, D)),
            "w1": _w((lambda *s: torch.randn(*s, dtype=torch.bfloat16) * 0.05)(D, Dff)),
            "w2": _w((lambda *s: torch.randn(*s, dtype=torch.bfloat16) * 0.05)(Dff, D)),
        }
    _B_in = _B_setup()

    return {
        "A_u": _A_in["u"],
        "A_log_A_real": _A_in["log_A_real"],
        "A_A_imag": _A_in["A_imag"],
        "A_C_real": _A_in["C_real"],
        "A_C_imag": _A_in["C_imag"],
        "A_log_dt": _A_in["log_dt"],
        "A_D_skip": _A_in["D_skip"],
        "B_x": _B_in["x"],
        "B_w1": _B_in["w1"],
        "B_w2": _B_in["w2"],
    }

def reference(A_u, A_log_A_real, A_A_imag, A_C_real, A_C_imag, A_log_dt, A_D_skip, B_x, B_w1, B_w2):
    def _A_ref(u, log_A_real, A_imag, C_real, C_imag, log_dt, D_skip):
        L = u.shape[1]
        dt = torch.exp(log_dt)
        A = -torch.exp(log_A_real) + 1j * A_imag
        C = (C_real + 1j * C_imag) * dt[:, None]
        pos = (lambda x, dt: x.to(dt))(torch.arange(L), log_dt.dtype)
        P = torch.exp((A * dt[:, None])[:, :, None] * pos[None, None, :])
        K = 2.0 * torch.einsum("dn,dnl->dl", C, P).real
        L2 = 2 * L
        u_t = (lambda x, *d: x.permute(*d))(u, 0, 2, 1)
        Kf = (lambda x, *a, **k: torch.fft.rfft(x.float(), *a, **k))(K, L2)
        Uf = (lambda x, *a, **k: torch.fft.rfft(x.float(), *a, **k))(u_t, L2)
        y = (lambda x, *a, **k: torch.fft.irfft(x, *a, **k).to(torch.bfloat16))(Uf * Kf[None, :, :], L2)[:, :, :L]
        y = (lambda x, *d: x.permute(*d))(y, 0, 2, 1)
        return y + u * D_skip[None, None, :]

    def _B_ref(x, w1, w2):
        h = torch.einsum("bsd,df->bsf", x, w1)
        zero = torch.zeros_like(h)
        h = torch.maximum(h, zero)
        return torch.einsum("bsf,fd->bsd", h, w2)

    x = A_u
    xn = _layernorm(x, axis=-1)
    s = _A_ref(xn, A_log_A_real, A_A_imag, A_C_real, A_C_imag, A_log_dt, A_D_skip)
    g = _silu(_B_ref(xn, B_w1, B_w2))
    return x + s * g
```

```python
import sys

NAME = "recurrent_scan__ssm_conv_s4d__dense_activation_relu__prompt"
OUT = sys.argv[1] if len(sys.argv) > 1 else f"cdna_kernels/{NAME}.s"

WS_XN = 0x0000000
WS_XNT = 0x0200000
XNT_STRIDE = 4160
WS_W1T = 0x0400000
WS_W2T = 0x0600000
WS_KR = 0x0800000
KR_STRIDE = 9216
WS_H = 0x1000000
WS_YT = 0x1800000

lines = []


def E(s=""):
    lines.append(s)


def I(s):
    lines.append("    " + s)


def L(lbl):
    lines.append(lbl + ":")


HEADER = open(f"cdna_kernels/{NAME}.s.ref").read().split("; Override launch")[0]

N_K, N_LN, N_WT = 448, 128, 392
L0_GRID = N_K + N_LN + N_WT
L0_LDS = 8192 + 4 * 3072
N_CONV, N_G1 = 224, 224
L1_GRID = N_CONV + N_G1
L1_LDS = 2 * KR_STRIDE + 2 * XNT_STRIDE
L2_GRID = 224
L2_LDS = 4 * 64 * 68 * 4

E(HEADER.rstrip("\n"))
E(f"; @launch kernel=prep_kernel grid=({L0_GRID},1,1) block=(256,1,1) lds={L0_LDS}")
E(f"; @launch kernel=mid_kernel grid=({L1_GRID},1,1) block=(256,1,1) lds={L1_LDS}")
E(f"; @launch kernel=fin_kernel grid=({L2_GRID},1,1) block=(256,1,1) lds={L2_LDS}")
E('.amdgcn_target "amdgcn-amd-amdhsa--gfx950"')
E(".text")


def kstart(name):
    E(f".globl {name}")
    E(".p2align 8")
    E(f".type {name},@function")
    L(name)


def bf16r(dst, src):
    I(f"v_cvt_pk_bf16_f32 v{dst}, v{src}, v{src}")
    I(f"v_lshlrev_b32 v{dst}, 16, v{dst}")


def dpp_reduce(v, tmp_s):
    for sh in (1, 2, 4, 8):
        I("s_nop 1")
        I(f"v_add_f32_dpp v{v}, v{v}, v{v} row_shr:{sh} row_mask:0xf bank_mask:0xf bound_ctrl:0")
    I("s_nop 1")
    I(f"v_add_f32_dpp v{v}, v{v}, v{v} row_bcast:15 row_mask:0xa bank_mask:0xf")
    I("s_nop 1")
    I(f"v_add_f32_dpp v{v}, v{v}, v{v} row_bcast:31 row_mask:0xc bank_mask:0xf")
    I("s_nop 1")
    I(f"v_readlane_b32 s{tmp_s}, v{v}, 63")


kstart("prep_kernel")
I(f"s_cmp_ge_u32 s2, {L0_GRID}")
I("s_cbranch_scc1 P_done")
I(f"s_cmp_ge_u32 s2, {N_K + N_LN}")
I("s_cbranch_scc1 P_wt")
I(f"s_cmp_ge_u32 s2, {N_K}")
I("s_cbranch_scc1 P_ln")

I("s_load_dwordx4 s[4:7], s[0:1], 8")
I("s_load_dwordx4 s[8:11], s[0:1], 24")
I("s_load_dwordx2 s[12:13], s[0:1], 40")
I("s_load_dwordx2 s[14:15], s[0:1], 96")
I("s_lshl_b32 s3, s2, 9")
I("v_lshl_add_u32 v1, v0, 1, s3")
I("s_lshl_b32 s16, s2, 1")
I("v_mov_b32 v7, s16")
I("s_mov_b32 s20, 0x3fb8aa3b")
I("s_mov_b32 s21, 0x32a57060")
I("s_mov_b32 s22, 0x3f317218")
I("s_mov_b32 s23, 0x3e22f983")
I("s_mov_b32 s24, 0x31dc9c88")
I("s_waitcnt lgkmcnt(0)")
I("global_load_ushort v2, v1, s[4:5]")
I("global_load_ushort v3, v1, s[6:7]")
I("global_load_ushort v4, v1, s[8:9]")
I("global_load_ushort v5, v1, s[10:11]")
I("global_load_ushort v6, v7, s[12:13]")
I("v_and_b32 v40, 63, v0")
I("v_and_b32 v41, 15, v0")
I("v_bfe_u32 v42, v0, 4, 2")
I("v_lshlrev_b32 v44, 3, v41")
I("v_and_b32 v45, 7, v41")
I("v_lshrrev_b32 v46, 3, v41")
I("v_lshl_add_u32 v45, v46, 7, v45")
I("v_and_b32 v46, 3, v41")
I("v_lshlrev_b32 v46, 1, v46")
I("v_lshrrev_b32 v47, 2, v41")
I("v_lshl_add_u32 v46, v47, 7, v46")
I("v_add_u32 v46, 0x100, v46")
I("v_and_b32 v47, 1, v41")
I("v_lshlrev_b32 v47, 2, v47")
I("v_bfe_u32 v48, v41, 1, 2")
I("v_lshl_add_u32 v47, v48, 7, v47")
I("v_add_u32 v47, 0x200, v47")
I("v_cmp_gt_u32 vcc, 8, v41")
I("s_nop 1")
I("v_cndmask_b32 v46, v47, v46, vcc")
I("v_lshlrev_b32 v47, 7, v41")
I("v_add_u32 v47, 0x400, v47")
I("v_cmp_gt_u32 vcc, 9, v41")
I("s_nop 1")
I("v_cndmask_b32 v47, 0, v47, vcc")
for r in (44, 45, 46, 47):
    I(f"v_cvt_f32_u32 v{r}, v{r}")
I("s_waitcnt vmcnt(0)")
for r in (2, 3, 4, 5, 6):
    I(f"v_lshlrev_b32 v{r}, 16, v{r}")


def exp_acc(dst, x, t0, t1):
    I(f"v_mul_f32 v{t0}, s20, v{x}")
    I(f"v_fma_f32 v{t1}, v{x}, s20, -v{t0}")
    I(f"v_fma_f32 v{t1}, v{x}, s21, v{t1}")
    I(f"v_exp_f32 v{dst}, v{t0}")
    I(f"v_mul_f32 v{t1}, s22, v{t1}")
    I(f"v_fma_f32 v{dst}, v{dst}, v{t1}, v{dst}")


exp_acc(8, 6, 10, 11)
bf16r(8, 8)
exp_acc(9, 2, 10, 11)
bf16r(9, 9)
I("v_mul_f32 v9, v9, v8")
I("v_mul_f32 v12, s20, v9")
I("v_sub_f32 v12, 0, v12")
I("v_mul_f32 v3, v3, v8")
I("v_mul_f32 v13, s23, v3")
I("v_fma_f32 v14, v3, s23, -v13")
I("v_fma_f32 v14, v3, s24, v14")
I("v_mul_f32 v15, v4, v8")
I("v_add_f32 v15, v15, v15")
I("v_mul_f32 v16, v5, v8")
I("v_add_f32 v16, v16, v16")
I("v_lshlrev_b32 v17, 5, v0")
I("ds_write_b128 v17, v[12:15]")
I("ds_write_b32 v17, v16 offset:16")
I("s_waitcnt lgkmcnt(0)")
I("s_barrier")
I("v_lshrrev_b32 v18, 6, v0")
I("v_lshlrev_b32 v18, 11, v18")
I("v_lshl_add_u32 v18, v42, 5, v18")
for r in range(52, 64):
    I(f"v_mov_b32 v{r}, 0")
PA = (20, 24)
PB = (26, 30)
I(f"ds_read_b128 v[{PA[0]}:{PA[0]+3}], v18")
I(f"ds_read_b32 v{PA[1]}, v18 offset:16")
I("s_mov_b32 s25, 0")


def cexp(pr, P, re, im, t0, t1, t2):
    a2, whi, wlo = P, P + 1, P + 2
    I(f"v_mul_f32 v{t0}, v{pr}, v{a2}")
    I(f"v_mul_f32 v{t1}, v{pr}, v{whi}")
    I(f"v_exp_f32 v{t0}, v{t0}")
    I(f"v_fma_f32 v{t2}, v{pr}, v{whi}, -v{t1}")
    I(f"v_fract_f32 v{t1}, v{t1}")
    I(f"v_fma_f32 v{t2}, v{pr}, v{wlo}, v{t2}")
    I(f"v_add_f32 v{t1}, v{t1}, v{t2}")
    I(f"v_cos_f32 v{re}, v{t1}")
    I(f"v_sin_f32 v{im}, v{t1}")
    I("s_nop 0")
    I(f"v_mul_f32 v{re}, v{re}, v{t0}")
    I(f"v_mul_f32 v{im}, v{im}, v{t0}")


def kstep(P, Pn, off_next):
    base, ci = P
    cr = base + 3
    I("s_waitcnt lgkmcnt(0)")
    if off_next is not None:
        I(f"ds_read_b128 v[{Pn[0]}:{Pn[0]+3}], v18 offset:{off_next}")
        I(f"ds_read_b32 v{Pn[1]}, v18 offset:{off_next+16}")
    cexp(44, base, 32, 33, 34, 35, 36)
    for t, (pr, acc) in enumerate(((45, 52), (46, 56), (47, 60))):
        cexp(pr, base, 37, 38, 34, 35, 36)
        g_r, g_i = 48 + 2 * (t & 1), 49 + 2 * (t & 1)
        I(f"v_mul_f32 v{g_r}, v{cr}, v37")
        I(f"v_mul_f32 v{g_i}, v{cr}, v38")
        I(f"v_fma_f32 v{g_r}, -v{ci}, v38, v{g_r}")
        I(f"v_fma_f32 v{g_i}, -v{ci}, v37, -v{g_i}")
        I("s_nop 1")
        I(f"v_mfma_f32_16x16x4_f32 v[{acc}:{acc+3}], v{g_r}, v32, v[{acc}:{acc+3}]")
        I(f"v_mfma_f32_16x16x4_f32 v[{acc}:{acc+3}], v{g_i}, v33, v[{acc}:{acc+3}]")


L("K_loop")
kstep(PA, PB, 128)
kstep(PB, PA, 256)
I("v_add_u32 v18, 0x100, v18")
I("s_add_u32 s25, s25, 1")
I("s_cmp_lt_u32 s25, 8")
I("s_cbranch_scc1 K_loop")
I("s_waitcnt lgkmcnt(0)")
I("s_nop 15")
I("v_lshrrev_b32 v19, 6, v0")
I("v_mul_u32_u24 v19, 0xc00, v19")
I("v_lshl_add_u32 v19, v42, 8, v19")
I("v_lshl_add_u32 v19, v41, 2, v19")
for t in range(3):
    for r in range(4):
        I(f"ds_write_b32 v19, v{52+4*t+r} offset:{8192 + t*1024 + r*64}")
I("s_waitcnt lgkmcnt(0)")
I("s_barrier")
for e in range(8):
    a = 2 + e
    I(f"v_lshl_add_u32 v10, v0, 3, {e}")
    I("v_cvt_f32_u32 v10, v10")
    I("v_cvt_pk_bf16_f32 v10, v10, v10")
    I("v_bfe_u32 v11, v10, 7, 8")
    I("v_lshlrev_b32 v10, 16, v10")
    I("v_cvt_u32_f32 v10, v10")
    I("v_subrev_u32 v11, 134, v11")
    I("v_med3_i32 v11, v11, 0, 3")
    I("v_lshlrev_b32 v12, v11, 0x80") if False else None
    I("v_mov_b32 v12, 0x80")
    I("v_lshlrev_b32 v12, v11, v12")
    I("v_and_b32 v12, 0xffffff00, v12")
    I("v_sub_u32 v10, v10, v12")
    I("v_and_b32 v12, 7, v10")
    I("v_lshrrev_b32 v12, v11, v12")
    I("v_lshrrev_b32 v13, 7, v10")
    I("v_sub_u32 v14, 3, v11")
    I("v_lshlrev_b32 v13, v14, v13")
    I("v_add_u32 v12, v12, v13")
    I("v_bfe_u32 v13, v10, 3, 4")
    I("v_lshl_add_u32 v12, v12, 4, v13")
    I("v_min_u32 v13, 1, v11")
    I("v_add_u32 v13, v13, v11")
    I("v_lshl_add_u32 v12, v13, 7, v12")
    I(f"v_lshlrev_b32 v{a}, 2, v12")
for e in range(8):
    for w in range(4):
        I(f"ds_read_b32 v{16 + 4*e + w}, v{2+e} offset:{8192 + w*3072}")
    if e == 3:
        I("s_waitcnt lgkmcnt(0)")
I("s_waitcnt lgkmcnt(0)")
for e in range(8):
    b = 16 + 4 * e
    I(f"v_add_f32 v{b}, v{b}, v{b+1}")
    I(f"v_add_f32 v{b+2}, v{b+2}, v{b+3}")
    I(f"v_add_f32 v{b}, v{b}, v{b+2}")
for j in range(4):
    ka, kb = 16 + 4 * (7 - 2 * j), 16 + 4 * (6 - 2 * j)
    I(f"v_cvt_pk_bf16_f32 v{48+j}, v{ka}, v{kb}")
    I(f"v_lshlrev_b32 v10, 16, v{48+j}")
    I(f"v_and_b32 v11, 0xffff0000, v{48+j}")
    I(f"v_sub_f32 v10, v{ka}, v10")
    I(f"v_sub_f32 v11, v{kb}, v11")
    I(f"v_cvt_pk_bf16_f32 v{52+j}, v10, v11")
I(f"s_mul_i32 s16, s2, {KR_STRIDE}")
I(f"s_add_u32 s16, s16, {WS_KR}")
I("s_add_u32 s14, s14, s16")
I("s_addc_u32 s15, s15, 0")
I("v_lshlrev_b32 v10, 4, v0")
I("v_sub_u32 v10, 4080, v10")
I("v_add_u32 v11, 4608, v10")
I("global_store_dwordx4 v10, v[48:51], s[14:15]")
I("global_store_dwordx4 v11, v[52:55], s[14:15]")
I("v_cmp_gt_u32 vcc, 64, v0")
I("s_and_saveexec_b64 s[18:19], vcc")
I("s_cbranch_execz P_done")
I("v_and_b32 v10, 31, v0")
I("v_lshlrev_b32 v10, 4, v10")
I("v_lshrrev_b32 v11, 5, v0")
I("v_mul_u32_u24 v11, 4608, v11")
I("v_add3_u32 v10, v10, v11, 0")
I("v_add_u32 v10, 4096, v10")
for r in range(12, 16):
    I(f"v_mov_b32 v{r}, 0")
I("global_store_dwordx4 v10, v[12:15], s[14:15]")
I("s_endpgm")

L("P_ln")
I("s_load_dwordx2 s[4:5], s[0:1], 0")
I("s_load_dwordx2 s[14:15], s[0:1], 96")
I(f"s_sub_u32 s3, s2, {N_K}")
I("v_lshrrev_b32 v1, 6, v0")
I("v_and_b32 v2, 63, v0")
I("s_lshl_b32 s6, s3, 4")
I("v_lshl_add_u32 v3, v1, 2, s6")
I("v_mul_u32_u24 v3, 896, v3")
I("v_lshl_add_u32 v3, v2, 4, v3")
I("s_mov_b32 s20, 0x3b124925")
I("s_mov_b32 s21, 0x43e00000")
I("s_mov_b32 s22, 0x3727c5ac")
for r in range(8, 24):
    I(f"v_mov_b32 v{r}, 0")
I("s_mov_b64 s[16:17], exec")
I("s_mov_b32 s18, -1")
I("s_mov_b32 s19, 0x00ffffff")
I("s_waitcnt lgkmcnt(0)")
I("s_mov_b64 exec, s[18:19]")
for k in range(4):
    I(f"global_load_dwordx4 v[{8+4*k}:{11+4*k}], v3, s[4:5] offset:{896*k}")
I("s_mov_b64 exec, s[16:17]")
I("s_waitcnt vmcnt(0)")
for k in range(4):
    for j in range(4):
        I(f"v_lshlrev_b32 v{32+8*k+2*j}, 16, v{8+4*k+j}")
        I(f"v_and_b32 v{33+8*k+2*j}, 0xffff0000, v{8+4*k+j}")
for k in range(4):
    b = 32 + 8 * k
    s = 8 + k
    I(f"v_add_f32 v{s}, v{b}, v{b+1}")
    I(f"v_add_f32 v12, v{b+2}, v{b+3}")
    I(f"v_add_f32 v13, v{b+4}, v{b+5}")
    I(f"v_add_f32 v14, v{b+6}, v{b+7}")
    I(f"v_add_f32 v{s}, v{s}, v12")
    I("v_add_f32 v13, v13, v14")
    I(f"v_add_f32 v{s}, v{s}, v13")
for k in range(4):
    dpp_reduce(8 + k, 24 + k)
I("s_nop 1")
for k in range(4):
    m = 16 + k
    I(f"v_mov_b32 v12, s{24+k}")
    I(f"v_mul_f32 v{m}, s20, v12")
    I(f"v_fma_f32 v13, -v{m}, s21, v12")
    I(f"v_fma_f32 v{m}, v13, s20, v{m}")
    I(f"v_mov_b32 v{8+k}, 0")
I("s_mov_b64 exec, s[18:19]")
for k in range(4):
    b = 32 + 8 * k
    for j in range(8):
        I(f"v_sub_f32 v12, v{b+j}, v{16+k}")
        I(f"v_fmac_f32 v{8+k}, v12, v12")
I("s_mov_b64 exec, s[16:17]")
for k in range(4):
    dpp_reduce(8 + k, 24 + k)
I("s_nop 1")
for k in range(4):
    b = 32 + 8 * k
    I(f"v_mov_b32 v12, s{24+k}")
    I("v_mul_f32 v13, s20, v12")
    I("v_fma_f32 v14, -v13, s21, v12")
    I("v_fma_f32 v13, v14, s20, v13")
    bf16r(13, 13)
    I("v_add_f32 v13, s22, v13")
    bf16r(13, 13)
    I("v_sqrt_f32 v14, v13")
    I("s_nop 0")
    I("v_rcp_f32 v15, v14")
    I("v_fma_f32 v12, -v14, v14, v13")
    I("v_mul_f32 v15, 0.5, v15")
    I("v_fma_f32 v14, v12, v15, v14")
    bf16r(14, 14)
    I("v_rcp_f32 v15, v14")
    I("s_nop 0")
    I("v_fma_f32 v12, -v14, v15, 1.0")
    I("v_fma_f32 v15, v12, v15, v15")
    bf16r(16 + k, 16 + k)
    for j in range(8):
        I(f"v_sub_f32 v{b+j}, v{b+j}, v{16+k}")
    for j in range(0, 8, 2):
        I(f"v_cvt_pk_bf16_f32 v12, v{b+j}, v{b+j+1}")
        I(f"v_lshlrev_b32 v{b+j}, 16, v12")
        I(f"v_and_b32 v{b+j+1}, 0xffff0000, v12")
    for j in range(8):
        I(f"v_mul_f32 v12, v{b+j}, v15")
        I(f"v_fma_f32 v13, -v12, v14, v{b+j}")
        I(f"v_fma_f32 v{b+j}, v13, v15, v12")
    for j in range(4):
        I(f"v_cvt_pk_bf16_f32 v{24+j}, v{b+2*j}, v{b+2*j+1}")
    I("s_mov_b64 exec, s[18:19]")
    I(f"global_store_dwordx4 v3, v[24:27], s[14:15] offset:{896*k}")
    I(f"v_lshl_add_u32 v12, v1, 2, {k}")
    I("v_mul_u32_u24 v12, 896, v12")
    I("v_lshl_add_u32 v12, v2, 4, v12")
    I("ds_write_b128 v12, v[24:27]")
    I("s_mov_b64 exec, s[16:17]")
    I("s_nop 1")
I("s_waitcnt lgkmcnt(0)")
I("s_barrier")
I(f"s_add_u32 s14, s14, {WS_XNT}")
I("s_addc_u32 s15, s15, 0")
I("s_lshl_b32 s6, s3, 5")
I("s_add_u32 s6, s6, 32")
for p in range(2):
    if p == 1:
        I("v_cmp_gt_u32 vcc, 192, v0")
        I("s_and_saveexec_b64 s[16:17], vcc")
        I("s_cbranch_execz P_done")
    I(f"v_add_u32 v4, {256*p}, v0")
    I("v_lshlrev_b32 v5, 1, v4")
    for t in range(16):
        I(f"ds_read_u16 v{24 + t}, v5 offset:{896*t}")
        if t == 7:
            I("s_waitcnt lgkmcnt(0)")
    I(f"v_mul_u32_u24 v6, {XNT_STRIDE}, v4")
    I("v_add_u32 v7, s6, v6")
    I("s_waitcnt lgkmcnt(0)")
    for t in range(8):
        I(f"v_lshl_or_b32 v{8+t}, v{25+2*t}, 16, v{24+2*t}")
    I("global_store_dwordx4 v7, v[8:11], s[14:15]")
    I("global_store_dwordx4 v7, v[12:15], s[14:15] offset:16")
    I("s_cmp_lg_u32 s3, 0")
    I(f"s_cbranch_scc1 P_ln_nz{p}")
    for r in range(16, 20):
        I(f"v_mov_b32 v{r}, 0")
    I("global_store_dwordx4 v6, v[16:19], s[14:15]")
    I("global_store_dwordx4 v6, v[16:19], s[14:15] offset:16")
    L(f"P_ln_nz{p}")
I("s_endpgm")

L("P_wt")
I(f"s_sub_u32 s3, s2, {N_K+N_LN}")
I("s_load_dwordx4 s[4:7], s[0:1], 64")
I("s_load_dwordx2 s[14:15], s[0:1], 96")
I("s_waitcnt lgkmcnt(0)")
I("s_cmp_ge_u32 s3, 196")
I("s_cbranch_scc1 P_wt2")
I("s_mul_i32 s8, s3, 9363")
I("s_lshr_b32 s8, s8, 16")
I("s_mul_i32 s9, s8, 7")
I("s_sub_u32 s9, s3, s9")
I("s_mov_b32 s10, 3584")
I("s_mov_b32 s11, 896")
I(f"s_add_u32 s14, s14, {WS_W1T}")
I("s_addc_u32 s15, s15, 0")
I("s_branch P_wt_go")
L("P_wt2")
I("s_sub_u32 s3, s3, 196")
I("s_mul_i32 s8, s3, 2341")
I("s_lshr_b32 s8, s8, 16")
I("s_mul_i32 s9, s8, 28")
I("s_sub_u32 s9, s3, s9")
I("s_mov_b32 s10, 896")
I("s_mov_b32 s11, 3584")
I("s_mov_b32 s4, s6")
I("s_mov_b32 s5, s7")
I(f"s_add_u32 s14, s14, {WS_W2T}")
I("s_addc_u32 s15, s15, 0")
L("P_wt_go")
I("s_lshl_b32 s12, s9, 6")
I("s_lshl_b32 s13, s8, 6")
I("v_lshrrev_b32 v1, 3, v0")
I("v_and_b32 v2, 7, v0")
I("v_add_u32 v3, s12, v1")
I("v_mul_lo_u32 v3, v3, s10")
I("s_lshl_b32 s16, s13, 1")
I("v_lshl_add_u32 v4, v2, 4, s16")
I("v_add_u32 v3, v3, v4")
I("s_lshl_b32 s17, s10, 5")
I("v_add_u32 v4, s17, v3")
I("global_load_dwordx4 v[8:11], v3, s[4:5]")
I("global_load_dwordx4 v[12:15], v4, s[4:5]")
I("v_lshlrev_b32 v5, 7, v1")
I("v_lshl_add_u32 v5, v2, 4, v5")
I("s_waitcnt vmcnt(0)")
I("ds_write_b128 v5, v[8:11]")
I("ds_write_b128 v5, v[12:15] offset:4096")
I("s_waitcnt lgkmcnt(0)")
I("s_barrier")
I("v_and_b32 v1, 63, v0")
I("v_lshrrev_b32 v2, 6, v0")
I("v_lshlrev_b32 v5, 10, v2")
I("v_lshl_add_u32 v5, v1, 1, v5")
for c in range(2):
    for e in range(8):
        I(f"ds_read_u16 v{24 + 8*c + e}, v5 offset:{4096*c + 128*e}")
    if c == 0:
        I("s_waitcnt lgkmcnt(0)")
I("v_add_u32 v3, s13, v1")
I("v_mul_lo_u32 v3, v3, s11")
I("s_lshl_b32 s16, s12, 1")
I("v_lshl_add_u32 v4, v2, 4, s16")
I("v_add_u32 v3, v3, v4")
I("s_waitcnt lgkmcnt(0)")
for t in range(8):
    I(f"v_lshl_or_b32 v{8+t}, v{25+2*t}, 16, v{24+2*t}")
I("global_store_dwordx4 v3, v[8:11], s[14:15]")
I("global_store_dwordx4 v3, v[12:15], s[14:15] offset:64")
L("P_done")
I("s_endpgm")


def gemm_core(sa, sb, va, vb, acc0, buf0, ring=5):
    NS = 14
    PF = ring - 1

    def loads(s):
        bb = buf0 + 32 * (s % ring)
        off = (s >> 1) * 128 + (s & 1) * 16
        for j in range(4):
            I(f"global_load_dwordx4 v[{bb+4*j}:{bb+4*j+3}], v{va+j}, s[{sa}:{sa+1}] offset:{off}")
        for j in range(4):
            I(f"global_load_dwordx4 v[{bb+16+4*j}:{bb+16+4*j+3}], v{vb+j}, s[{sb}:{sb+1}] offset:{off}")

    for s in range(PF):
        loads(s)
    for s in range(NS):
        if s + PF < NS:
            loads(s + PF)
            I(f"s_waitcnt vmcnt({8*PF})")
        else:
            I(f"s_waitcnt vmcnt({8*(NS-1-s)})")
        bb = buf0 + 32 * (s % ring)
        for a in range(4):
            for b in range(4):
                c = acc0 + 16 * a + 4 * b
                src = "0" if s == 0 else f"v[{c}:{c+3}]"
                I(f"v_mfma_f32_16x16x32_bf16 v[{c}:{c+3}], v[{bb+4*a}:{bb+4*a+3}], v[{bb+16+4*b}:{bb+16+4*b+3}], {src}")


kstart("mid_kernel")
I(f"s_cmp_ge_u32 s2, {L1_GRID}")
I("s_cbranch_scc1 M_done")
I("s_load_dwordx2 s[14:15], s[0:1], 96")
I("v_and_b32 v1, 15, v0")
I("v_bfe_u32 v2, v0, 4, 2")
I("v_lshrrev_b32 v3, 6, v0")
I(f"s_cmp_ge_u32 s2, {N_CONV}")
I("s_cbranch_scc1 M_gemm")

I(f"s_mul_i32 s4, s2, {2*KR_STRIDE}")
I(f"s_add_u32 s4, s4, {WS_KR}")
I(f"s_mul_i32 s6, s2, {2*XNT_STRIDE}")
I(f"s_add_u32 s6, s6, {WS_XNT}")
I("s_waitcnt lgkmcnt(0)")
I("s_add_u32 s4, s14, s4")
I("s_addc_u32 s5, s15, 0")
I("s_add_u32 s6, s14, s6")
I("s_addc_u32 s7, s15, 0")
I("v_lshlrev_b32 v4, 4, v0")
I("v_add_u32 v5, 0x1000, v4")
I("v_add_u32 v6, 0x2000, v4")
I("v_add_u32 v7, 0x3000, v4")
I("v_add_u32 v8, 0x4000, v4")
I("global_load_dwordx4 v[16:19], v4, s[4:5]")
I("global_load_dwordx4 v[20:23], v5, s[4:5]")
I("global_load_dwordx4 v[24:27], v6, s[4:5]")
I("global_load_dwordx4 v[28:31], v7, s[4:5]")
I("global_load_dwordx4 v[36:39], v4, s[6:7]")
I("global_load_dwordx4 v[40:43], v5, s[6:7]")
I("s_mov_b64 s[16:17], exec")
I("v_cmp_gt_u32 vcc, 128, v0")
I("s_and_saveexec_b64 s[18:19], vcc")
I("global_load_dwordx4 v[32:35], v8, s[4:5]")
I("s_mov_b64 exec, s[16:17]")
I("v_cmp_gt_u32 vcc, 8, v0")
I("s_and_saveexec_b64 s[18:19], vcc")
I("global_load_dwordx4 v[44:47], v6, s[6:7]")
I("s_mov_b64 exec, s[16:17]")
I("s_waitcnt vmcnt(0)")
I("ds_write_b128 v4, v[16:19]")
I("ds_write_b128 v5, v[20:23]")
I("ds_write_b128 v6, v[24:27]")
I("ds_write_b128 v7, v[28:31]")
I(f"ds_write_b128 v4, v[36:39] offset:{2*KR_STRIDE}")
I(f"ds_write_b128 v5, v[40:43] offset:{2*KR_STRIDE}")
I("v_cmp_gt_u32 vcc, 128, v0")
I("s_and_saveexec_b64 s[18:19], vcc")
I("ds_write_b128 v8, v[32:35]")
I("s_mov_b64 exec, s[16:17]")
I("v_cmp_gt_u32 vcc, 8, v0")
I("s_and_saveexec_b64 s[18:19], vcc")
I(f"ds_write_b128 v6, v[44:47] offset:{2*KR_STRIDE}")
I("s_mov_b64 exec, s[16:17]")
I("s_waitcnt lgkmcnt(0)")
I("s_barrier")
I("v_lshrrev_b32 v4, 1, v3")
I(f"v_mul_u32_u24 v5, {XNT_STRIDE}, v4")
I("v_lshl_add_u32 v5, v2, 4, v5")
I("v_lshl_add_u32 v5, v1, 1, v5")
I(f"v_add_u32 v5, {2*KR_STRIDE+2}, v5")
I(f"v_mul_u32_u24 v6, {KR_STRIDE}, v4")
I("v_lshl_add_u32 v6, v2, 4, v6")
I("v_lshlrev_b32 v7, 5, v1")
I("v_sub_u32 v6, v6, v7")
I("v_add_u32 v6, 480, v6")
I("v_readfirstlane_b32 s8, v3")
I("s_and_b32 s9, s8, 1")
I("s_cmp_eq_u32 s9, 1")
I("s_cbranch_scc1 M_conv_b")

CA0 = 16
CBUF = 32


def conv_body(TS, tag):
    nmax = max(TS)

    def reads(r):
        bb = CBUF + 96 * (r & 1)
        out = []
        for c in range(nmax + 1):
            out.append(f"ds_read_b128 v[{bb+4*c}:{bb+4*c+3}], v5 offset:{512*c + 64*r}")
        for n in range(nmax + 1):
            o = 3584 - 512 * n + 64 * r
            out.append(f"ds_read_b128 v[{bb+32+8*n}:{bb+32+8*n+3}], v6 offset:{o}")
            out.append(f"ds_read_b128 v[{bb+36+8*n}:{bb+36+8*n+3}], v6 offset:{o+4608}")
        return out

    for x in reads(0):
        I(x)
    for r in range(8):
        I("s_waitcnt lgkmcnt(0)")
        nxt = reads(r + 1) if r < 7 else []
        bb = CBUF + 96 * (r & 1)
        mf = []
        for ti, T in enumerate(TS):
            acc = CA0 + 4 * ti
            for c in range(T + 1):
                n = T - c
                first = (r == 0 and c == 0)
                src = "0" if first else f"v[{acc}:{acc+3}]"
                mf.append(f"v_mfma_f32_16x16x32_bf16 v[{acc}:{acc+3}], v[{bb+4*c}:{bb+4*c+3}], v[{bb+32+8*n}:{bb+32+8*n+3}], {src}")
                mf.append(f"v_mfma_f32_16x16x32_bf16 v[{acc}:{acc+3}], v[{bb+4*c}:{bb+4*c+3}], v[{bb+36+8*n}:{bb+36+8*n+3}], v[{acc}:{acc+3}]")
        k = 0
        for idx, m in enumerate(mf):
            I(m)
            if k < len(nxt):
                I(nxt[k]); k += 1
        while k < len(nxt):
            I(nxt[k]); k += 1
    I("s_nop 7")
    I("s_nop 1")
    I(f"s_lshl_b32 s10, s2, 13")
    I(f"s_add_u32 s10, s10, {WS_YT}")
    I("s_add_u32 s10, s14, s10")
    I("s_addc_u32 s11, s15, 0")
    I("v_lshlrev_b32 v7, 12, v4")
    I("v_lshl_add_u32 v7, v1, 5, v7")
    I("v_lshl_add_u32 v7, v2, 3, v7")
    for ti, T in enumerate(TS):
        acc = CA0 + 4 * ti
        I(f"v_cvt_pk_bf16_f32 v{8+2*ti}, v{acc}, v{acc+1}")
        I(f"v_cvt_pk_bf16_f32 v{9+2*ti}, v{acc+2}, v{acc+3}")
        I(f"global_store_dwordx2 v7, v[{8+2*ti}:{9+2*ti}], s[10:11] offset:{512*T}")
    I("s_endpgm")


conv_body((7, 4, 3, 0), "a")
L("M_conv_b")
conv_body((6, 5, 2, 1), "b")

L("M_gemm")
I(f"s_sub_u32 s3, s2, {N_CONV}")
I("s_mul_i32 s8, s3, 4682")
I("s_lshr_b32 s8, s8, 16")
I("s_mul_i32 s9, s8, 14")
I("s_sub_u32 s9, s3, s9")
I("s_waitcnt lgkmcnt(0)")
I(f"s_add_u32 s4, s14, {WS_W1T}")
I("s_addc_u32 s5, s15, 0")
I(f"s_add_u32 s6, s14, {WS_XN}")
I("s_addc_u32 s7, s15, 0")
I("s_lshl_b32 s9, s9, 7")
I("s_lshl_b32 s8, s8, 7")
I("v_and_b32 v4, 1, v3")
I("v_lshl_add_u32 v4, v4, 6, s9")
I("v_lshrrev_b32 v5, 1, v3")
I("v_lshl_add_u32 v5, v5, 6, s8")
I("v_lshrrev_b32 v6, 2, v1")
I("v_lshl_add_u32 v6, v6, 4, v4")
I("v_and_b32 v7, 3, v1")
I("v_add_u32 v6, v6, v7")
I("v_mul_u32_u24 v6, 896, v6")
I("v_lshl_add_u32 v8, v2, 5, v6")
for j in range(1, 4):
    I(f"v_add_u32 v{8+j}, {4*896*j}, v8")
I("v_add_u32 v6, v5, v1")
I("v_mul_u32_u24 v6, 896, v6")
I("v_lshl_add_u32 v12, v2, 5, v6")
for j in range(1, 4):
    I(f"v_add_u32 v{12+j}, {16*896*j}, v12")
G_ACC = 16
G_BUF = 80
gemm_core(4, 6, 8, 12, G_ACC, G_BUF)
I(f"s_add_u32 s4, s14, {WS_H}")
I("s_addc_u32 s5, s15, 0")
I("v_add_u32 v6, v5, v1")
I("v_mul_u32_u24 v6, 3584, v6")
I("v_lshl_add_u32 v6, v4, 1, v6")
I("v_lshl_add_u32 v6, v2, 5, v6")
I("s_nop 4")
for b in range(4):
    for a in range(4):
        c = G_ACC + 16 * a + 4 * b
        for r in range(4):
            I(f"v_max_f32 v{c+r}, 0, v{c+r}")
        I(f"v_cvt_pk_bf16_f32 v{80+2*a}, v{c}, v{c+1}")
        I(f"v_cvt_pk_bf16_f32 v{81+2*a}, v{c+2}, v{c+3}")
    if b > 0:
        I(f"v_add_u32 v6, {16*3584}, v6")
    I("global_store_dwordx4 v6, v[80:83], s[4:5]")
    I("global_store_dwordx4 v6, v[84:87], s[4:5] offset:16")
    I("s_nop 1")
L("M_done")
I("s_endpgm")

kstart("fin_kernel")
I(f"s_cmp_ge_u32 s2, {L2_GRID}")
I("s_cbranch_scc1 F_done")
I("s_load_dwordx2 s[14:15], s[0:1], 96")
I("s_load_dwordx2 s[16:17], s[0:1], 0")
I("s_load_dwordx2 s[18:19], s[0:1], 48")
I("s_load_dwordx2 s[20:21], s[0:1], 80")
I("v_and_b32 v1, 15, v0")
I("v_bfe_u32 v2, v0, 4, 2")
I("v_lshrrev_b32 v3, 6, v0")
I("v_and_b32 v4, 63, v0")
I("s_mul_i32 s8, s2, 9363")
I("s_lshr_b32 s8, s8, 16")
I("s_mul_i32 s9, s8, 7")
I("s_sub_u32 s9, s2, s9")
I("s_lshl_b32 s9, s9, 6")
I("s_lshl_b32 s8, s8, 6")
I("s_waitcnt lgkmcnt(0)")
I(f"s_add_u32 s4, s14, {WS_W2T}")
I("s_addc_u32 s5, s15, 0")
I(f"s_add_u32 s6, s14, {WS_H}")
I("s_addc_u32 s7, s15, 0")
I(f"s_add_u32 s10, s14, {WS_YT}")
I("s_addc_u32 s11, s15, 0")
I("v_add_u32 v5, s8, v4")
I("v_mul_u32_u24 v5, 896, v5")
I("s_lshl_b32 s12, s9, 1")
I("v_lshl_add_u32 v6, v3, 5, s12")
I("v_add_u32 v5, v5, v6")
EX, EXN, EY, EDK = 232, 240, 216, 208
I(f"global_load_dwordx4 v[{EX}:{EX+3}], v5, s[16:17]")
I(f"global_load_dwordx4 v[{EX+4}:{EX+7}], v5, s[16:17] offset:16")
I(f"global_load_dwordx4 v[{EXN}:{EXN+3}], v5, s[14:15]")
I(f"global_load_dwordx4 v[{EXN+4}:{EXN+7}], v5, s[14:15] offset:16")
I(f"global_load_dwordx4 v[{EDK}:{EDK+3}], v6, s[18:19]")
I(f"global_load_dwordx4 v[{EDK+4}:{EDK+7}], v6, s[18:19] offset:16")
I("v_lshlrev_b32 v7, 11, v6")
I("v_add_u32 v6, s8, v4")
I("v_lshl_add_u32 v7, v6, 1, v7")
for dd in range(16):
    if dd and dd % 1 == 0:
        I("v_add_u32 v7, 0x1000, v7")
    I(f"global_load_ushort v{EY+dd}, v7, s[10:11]")
I("v_add_u32 v6, s9, v1")
I("v_mul_u32_u24 v6, 3584, v6")
I("v_mul_u32_u24 v7, 896, v3")
I("v_lshl_add_u32 v7, v2, 5, v7")
I("v_add_u32 v8, v6, v7")
for j in range(1, 4):
    I(f"v_add_u32 v{8+j}, {16*3584*j}, v8")
I("v_add_u32 v6, s8, v1")
I("v_mul_u32_u24 v6, 3584, v6")
I("v_add_u32 v12, v6, v7")
for j in range(1, 4):
    I(f"v_add_u32 v{12+j}, {16*3584*j}, v12")
F_ACC = 16
F_BUF = 80
gemm_core(4, 6, 8, 12, F_ACC, F_BUF, ring=4)
I("v_lshl_add_u32 v6, v3, 4, v2")
I("v_mul_u32_u24 v6, 1088, v6")
I("v_lshl_add_u32 v6, v1, 2, v6")
I("s_nop 4")
for a in range(4):
    for b in range(4):
        for r in range(4):
            c = F_ACC + 16 * a + 4 * b + r
            I(f"ds_write_b32 v6, v{c} offset:{((16*a+r)*68 + 16*b)*4}")
I("s_waitcnt lgkmcnt(0)")
I("s_barrier")
I("v_mul_u32_u24 v6, 4352, v3")
I("v_lshl_add_u32 v6, v4, 2, v6")
for dd in range(16):
    for p in range(4):
        I(f"ds_read_b32 v{80+4*dd+p}, v6 offset:{(p*64+dd)*272}")
    if dd % 3 == 2:
        I("s_waitcnt lgkmcnt(0)")
I("s_mov_b32 s22, 0xbfb8aa3b")
I("s_waitcnt lgkmcnt(0)")
for dd in range(16):
    b = 80 + 4 * dd
    h = dd & 1
    def unp(dst, reg):
        if h:
            I(f"v_and_b32 v{dst}, 0xffff0000, v{reg + dd//2}")
        else:
            I(f"v_lshlrev_b32 v{dst}, 16, v{reg + dd//2}")
    I(f"v_add_f32 v{b}, v{b}, v{b+1}")
    I(f"v_add_f32 v{b+2}, v{b+2}, v{b+3}")
    I(f"v_add_f32 v{b}, v{b}, v{b+2}")
    bf16r(b, b)
    I(f"v_mul_f32 v{b+1}, s22, v{b}")
    I(f"v_exp_f32 v{b+1}, v{b+1}")
    unp(b+2, EXN)
    unp(b+3, EDK)
    I(f"v_add_f32 v{b+1}, 1.0, v{b+1}")
    I(f"v_rcp_f32 v{b+1}, v{b+1}")
    I(f"v_mul_f32 v{b+2}, v{b+2}, v{b+3}")
    bf16r(b+2, b+2)
    I(f"v_mul_f32 v{b}, v{b}, v{b+1}")
    bf16r(b, b)
    I(f"v_lshlrev_b32 v{b+3}, 16, v{EY+dd}")
    I(f"v_add_f32 v{b+2}, v{b+2}, v{b+3}")
    bf16r(b+2, b+2)
    I(f"v_mul_f32 v{b}, v{b}, v{b+2}")
    bf16r(b, b)
    unp(b+3, EX)
    I(f"v_add_f32 v{b}, v{b}, v{b+3}")
for j in range(8):
    I(f"v_cvt_pk_bf16_f32 v{16+j}, v{80+8*j}, v{84+8*j}")
I("global_store_dwordx4 v5, v[16:19], s[20:21]")
I("global_store_dwordx4 v5, v[20:23], s[20:21] offset:16")
L("F_done")
I("s_endpgm")

E('.section .rodata,"a"')
for name, nv in (("prep_kernel", 64), ("mid_kernel", 256), ("fin_kernel", 256)):
    E(".p2align 6")
    E(f".amdhsa_kernel {name}")
    E(f"  .amdhsa_next_free_vgpr {nv}")
    E("  .amdhsa_next_free_sgpr 40")
    E(f"  .amdhsa_accum_offset {nv}")
    E("  .amdhsa_group_segment_fixed_size 0")
    E("  .amdhsa_kernarg_size 104")
    E("  .amdhsa_user_sgpr_count 2")
    E("  .amdhsa_user_sgpr_kernarg_segment_ptr 1")
    E("  .amdhsa_system_sgpr_workgroup_id_x 1")
    E("  .amdhsa_float_denorm_mode_32 3")
    E(".end_amdhsa_kernel")

open(OUT, "w").write("\n".join(l for l in lines if l is not None) + "\n")
print("wrote", OUT, len(lines), "lines")
```

```python
import sys

NAME = "recurrent_scan__ssm_conv_s4d__dense_activation_relu__prompt"
OUT = sys.argv[1] if len(sys.argv) > 1 else f"cdna_kernels/{NAME}.s"

WS_XN = 0x0000000
WS_XNT = 0x0200000
XNT_STRIDE = 4160
WS_W1T = 0x0400000
WS_W2T = 0x0600000
WS_KR = 0x0800000
KR_STRIDE = 9216
WS_H = 0x1000000
WS_YT = 0x1800000

import os
STAMP = int(os.environ.get("STAMP", "0"))
lines = []
KIDX = [0]


def E(s=""):
    lines.append(s)


STMOD = os.environ.get("STMOD", "")
def I(s):
    if STMOD and s.startswith("global_store"):
        s = s + " " + STMOD
    if STAMP and s == "s_endpgm":
        for x in ("s_mov_b64 exec, -1",
                  "s_memrealtime s[34:35]", "s_memtime s[36:37]",
                  "s_load_dwordx2 s[38:39], s[0:1], 96",
                  "s_waitcnt vmcnt(0) lgkmcnt(0)",
                  f"s_add_u32 s38, s38, {0x2000000 + (KIDX[0]-1)*0x40000}", "s_addc_u32 s39, s39, 0",
                  "s_lshl_b32 s2, s2, 2", "s_add_u32 s2, s2, s29", "s_lshl_b32 s2, s2, 5", "v_mov_b32 v1, s2",
                  "v_mov_b32 v4, s30", "v_mov_b32 v5, s31", "v_mov_b32 v6, s34", "v_mov_b32 v7, s35",
                  "v_mov_b32 v8, s32", "v_mov_b32 v9, s33", "v_mov_b32 v10, s36", "v_mov_b32 v11, s37",
                  "global_store_dwordx4 v1, v[4:7], s[38:39]", "global_store_dwordx4 v1, v[8:11], s[38:39] offset:16",
                  "v_mov_b32 v4, s40", "v_mov_b32 v5, s42", "v_mov_b32 v6, s44", "v_mov_b32 v7, s46",
                  "v_mov_b32 v8, s48", "v_mov_b32 v9, s50", "v_mov_b32 v10, s52", "v_mov_b32 v11, s54",
                  "v_add_u32 v1, 0x100000, v1",
                  "global_store_dwordx4 v1, v[4:7], s[38:39]", "global_store_dwordx4 v1, v[8:11], s[38:39] offset:16"):
            lines.append("    " + x)
    lines.append("    " + s)


def MARK(n):
    if STAMP:
        lines.append(f"    s_memtime s[{40+2*n}:{41+2*n}]")


def L(lbl):
    lines.append(lbl + ":")


HEADER = open(f"cdna_kernels/{NAME}.s.ref").read().split("; Override launch")[0]

N_K, N_LN, N_WT = 448, 128, 392
L0_GRID = N_K + N_LN + N_WT
L0_LDS = 4 * 8704
N_CONV, N_G1 = 224, 224
L1_GRID = N_CONV + N_G1
L1_LDS = 2 * KR_STRIDE + 4 * XNT_STRIDE
L2_GRID = 224
L2_LDS = 4 * 64 * 68 * 4

E(HEADER.rstrip("\n"))
E(f"; @launch kernel=prep_kernel grid=({os.environ.get('PGRID', L0_GRID)},1,1) block=(256,1,1) lds={L0_LDS}")
E(f"; @launch kernel=mid_kernel grid=({L1_GRID},1,1) block=(256,1,1) lds={L1_LDS}")
E(f"; @launch kernel=fin_kernel grid=({L2_GRID},1,1) block=(256,1,1) lds={L2_LDS}")
E('.amdgcn_target "amdgcn-amd-amdhsa--gfx950"')
E(".text")


def kstart(name):
    E(f".globl {name}")
    E(".p2align 8")
    E(f".type {name},@function")
    L(name)
    KIDX[0] += 1
    if STAMP:
        I("s_memrealtime s[30:31]")
        I("s_memtime s[32:33]")
        I("v_readfirstlane_b32 s29, v0")
        I("s_lshr_b32 s29, s29, 6")


def bf16r(dst, src):
    I(f"v_cvt_pk_bf16_f32 v{dst}, v{src}, v{src}")
    I(f"v_lshlrev_b32 v{dst}, 16, v{dst}")


def dpp_reduce(v, tmp_s):
    for sh in (1, 2, 4, 8):
        I("s_nop 1")
        I(f"v_add_f32_dpp v{v}, v{v}, v{v} row_shr:{sh} row_mask:0xf bank_mask:0xf bound_ctrl:0")
    I("s_nop 1")
    I(f"v_add_f32_dpp v{v}, v{v}, v{v} row_bcast:15 row_mask:0xa bank_mask:0xf")
    I("s_nop 1")
    I(f"v_add_f32_dpp v{v}, v{v}, v{v} row_bcast:31 row_mask:0xc bank_mask:0xf")
    I("s_nop 1")
    I(f"v_readlane_b32 s{tmp_s}, v{v}, 63")


kstart("prep_kernel")
I(f"s_cmp_ge_u32 s2, {L0_GRID}")
I("s_cbranch_scc1 P_done")
I(f"s_cmp_ge_u32 s2, {N_K + N_LN}")
I("s_cbranch_scc1 P_wt")
I(f"s_cmp_ge_u32 s2, {N_K}")
I("s_cbranch_scc1 P_ln")

I("s_load_dwordx4 s[4:7], s[0:1], 8")
I("s_load_dwordx4 s[8:11], s[0:1], 24")
I("s_load_dwordx2 s[12:13], s[0:1], 40")
I("s_load_dwordx2 s[14:15], s[0:1], 96")
I("s_lshl_b32 s3, s2, 9")
I("v_lshl_add_u32 v1, v0, 1, s3")
I("s_lshl_b32 s16, s2, 1")
I("v_mov_b32 v7, s16")
I("s_mov_b32 s20, 0x3fb8aa3b")
I("s_mov_b32 s21, 0x32a57060")
I("s_mov_b32 s22, 0x3f317218")
I("s_mov_b32 s23, 0x3e22f983")
I("s_mov_b32 s24, 0x31dc9c88")
I("s_waitcnt lgkmcnt(0)")
I("global_load_ushort v2, v1, s[4:5]")
I("global_load_ushort v3, v1, s[6:7]")
I("global_load_ushort v4, v1, s[8:9]")
I("global_load_ushort v5, v1, s[10:11]")
I("global_load_ushort v6, v7, s[12:13]")
I("s_waitcnt vmcnt(0)")
MARK(0)
for r in (2, 3, 4, 5, 6):
    I(f"v_lshlrev_b32 v{r}, 16, v{r}")


def exp_acc(dst, x, t0, t1):
    I(f"v_mul_f32 v{t0}, s20, v{x}")
    I(f"v_fma_f32 v{t1}, v{x}, s20, -v{t0}")
    I(f"v_fma_f32 v{t1}, v{x}, s21, v{t1}")
    I(f"v_exp_f32 v{dst}, v{t0}")
    I(f"v_mul_f32 v{t1}, s22, v{t1}")
    I(f"v_fma_f32 v{dst}, v{dst}, v{t1}, v{dst}")


exp_acc(8, 6, 10, 11)
bf16r(8, 8)
exp_acc(9, 2, 10, 11)
bf16r(9, 9)
I("v_mul_f32 v9, v9, v8")
I("v_mul_f32 v12, s20, v9")
I("v_sub_f32 v12, 0, v12")
I("v_mul_f32 v3, v3, v8")
I("v_mul_f32 v13, s23, v3")
I("v_fma_f32 v14, v3, s23, -v13")
I("v_fma_f32 v14, v3, s24, v14")
I("v_rndne_f32 v10, v13")
I("v_sub_f32 v10, v13, v10")
I("v_and_b32 v13, 0xffffff00, v10")
I("v_sub_f32 v10, v10, v13")
I("v_add_f32 v14, v10, v14")
I("v_mul_f32 v15, v4, v8")
I("v_add_f32 v15, v15, v15")
I("v_mul_f32 v16, v5, v8")
I("v_add_f32 v16, v16, v16")
MARK(1)
WREG = 8704
LOO = 4352
I("v_and_b32 v2, 15, v0")
I("v_bfe_u32 v3, v0, 4, 2")
I("v_lshrrev_b32 v6, 6, v0")
I(f"v_mul_u32_u24 v6, {WREG}, v6")
I("v_and_b32 v4, 63, v0")
I("v_lshl_add_u32 v4, v4, 2, v6")
I("v_mul_u32_u24 v5, 272, v2")
I("v_lshl_add_u32 v5, v3, 4, v5")
I("v_add_u32 v5, v5, v6")


def interleave(chains):
    chains = [list(c) for c in chains]
    while any(chains):
        for c in chains:
            if c:
                I(c.pop(0))


def cexp_ops(p, d, t):
    return [f"v_mul_f32 v{t}, {p}, v12",
            f"v_mul_f32 v{t+1}, {p}, v13",
            f"v_exp_f32 v{t}, v{t}",
            f"v_fract_f32 v{t+1}, v{t+1}",
            f"v_mov_b32 v{d}, {p}",
            f"v_fma_f32 v{t+1}, v{d}, v14, v{t+1}",
            f"v_cos_f32 v{d}, v{t+1}",
            f"v_sin_f32 v{d+1}, v{t+1}",
            "s_nop 0",
            f"v_mul_f32 v{d}, v{d}, v{t}",
            f"v_mul_f32 v{d+1}, v{d+1}, v{t}"]


def cmul_ops(d, a, b):
    return [f"v_mul_f32 v{d}, v{a}, v{b}",
            f"v_mul_f32 v{d+1}, v{a}, v{b+1}",
            f"v_fma_f32 v{d}, -v{a+1}, v{b+1}, v{d}",
            f"v_fma_f32 v{d+1}, v{a+1}, v{b}, v{d+1}"]


def split_ops(v, row, t, neg=False):
    n = "-" if neg else ""
    return [f"v_cvt_pk_bf16_f32 v{t}, v{v}, {n}v{v+1}",
            f"v_lshlrev_b32 v{t+1}, 16, v{t}",
            f"v_and_b32 v{t+2}, 0xffff0000, v{t}",
            f"v_sub_f32 v{t+1}, v{v}, v{t+1}",
            f"v_sub_f32 v{t+2}, {n}v{v+1}, v{t+2}",
            f"ds_write_b32 v4, v{t} offset:{row*272}",
            f"v_cvt_pk_bf16_f32 v{t+1}, v{t+1}, v{t+2}",
            f"ds_write_b32 v4, v{t+1} offset:{LOO + row*272}"]


ZQ = lambda q: 20 + 2 * q
EJ = lambda j: 40 + 2 * j
Z128 = 18
BH, BL = 72, 88
AF = 40
ACC = 124
GT = [104, 106, 108, 110]
ST = [112, 115, 118, 121]
interleave([cexp_ops("1.0", ZQ(1), 104), cexp_ops("0x41000000", EJ(1), 106), cexp_ops("0x43000000", Z128, 108)])
I("v_mov_b32 v40, 1.0")
I("v_mov_b32 v41, 0")
interleave([cmul_ops(EJ(2), EJ(1), EJ(1)), cmul_ops(ZQ(2), ZQ(1), ZQ(1)), split_ops(40, 0, ST[0], True), split_ops(EJ(1), 1, ST[1], True)])
interleave([cmul_ops(EJ(3), EJ(2), EJ(1)), cmul_ops(EJ(4), EJ(2), EJ(2)), cmul_ops(ZQ(3), ZQ(2), ZQ(1)), cmul_ops(ZQ(4), ZQ(2), ZQ(2)), split_ops(EJ(2), 2, ST[0], True)])
interleave([cmul_ops(EJ(5), EJ(4), EJ(1)), cmul_ops(EJ(6), EJ(3), EJ(3)), cmul_ops(EJ(7), EJ(4), EJ(3)), cmul_ops(EJ(8), EJ(4), EJ(4)),
            split_ops(EJ(3), 3, ST[0], True), split_ops(EJ(4), 4, ST[1], True)])
interleave([cmul_ops(ZQ(5), ZQ(4), ZQ(1)), cmul_ops(ZQ(6), ZQ(3), ZQ(3)), cmul_ops(ZQ(7), ZQ(4), ZQ(3)),
            cmul_ops(EJ(9), EJ(8), EJ(1)), cmul_ops(EJ(10), EJ(8), EJ(2)), cmul_ops(EJ(11), EJ(8), EJ(3)),
            split_ops(EJ(5), 5, ST[0], True), split_ops(EJ(6), 6, ST[1], True)])
interleave([cmul_ops(EJ(12), EJ(8), EJ(4)), cmul_ops(EJ(13), EJ(8), EJ(5)), cmul_ops(EJ(14), EJ(8), EJ(6)), cmul_ops(EJ(15), EJ(8), EJ(7)),
            split_ops(EJ(7), 7, ST[0], True), split_ops(EJ(8), 8, ST[1], True), split_ops(EJ(9), 9, ST[2], True), split_ops(EJ(10), 10, ST[3], True)])
interleave([split_ops(EJ(11 + k), 11 + k, ST[k], True) for k in range(4)])
interleave([split_ops(EJ(15), 15, ST[0], True), cmul_ops(38, 15, Z128)])
I("v_mov_b32 v36, v15")
I("v_mov_b32 v37, v16")
I("s_waitcnt lgkmcnt(0)")
for sidx in range(4):
    I(f"ds_read_b128 v[{BH+4*sidx}:{BH+4*sidx+3}], v5 offset:{64*sidx}")
    I(f"ds_read_b128 v[{BL+4*sidx}:{BL+4*sidx+3}], v5 offset:{LOO+64*sidx}")
CR_ = [36, 38, 6, 8, 10]
CK = lambda k: CR_[k % 5]


def rowval(k, q, row, gi):
    if q == 0:
        return split_ops(CK(k), row, ST[gi])
    return cmul_ops(GT[gi], CK(k), ZQ(q)) + split_ops(GT[gi], row, ST[gi])


def tile_mfma(t):
    I("s_waitcnt lgkmcnt(0)")
    for sidx in range(4):
        I(f"ds_read_b128 v[{AF+4*sidx}:{AF+4*sidx+3}], v5 offset:{64*sidx}")
        I(f"ds_read_b128 v[{AF+16+4*sidx}:{AF+16+4*sidx+3}], v5 offset:{LOO+64*sidx}")
    acc = ACC + 4 * t
    out = []
    for sidx in range(4):
        ah, al = AF + 4 * sidx, AF + 16 + 4 * sidx
        bh, bl = BH + 4 * sidx, BL + 4 * sidx
        for (x, y) in ((ah, bh), (al, bh), (ah, bl)):
            src = "0" if (sidx == 0 and (x, y) == (ah, bh)) else f"v[{acc}:{acc+3}]"
            out.append(f"v_mfma_f32_16x16x32_bf16 v[{acc}:{acc+3}], v[{x}:{x+3}], v[{y}:{y+3}], {src}")
    return out


def run_rows(rows_, extra):
    for g in range(0, len(rows_), 4):
        ch = [rowval(k, q, row, gi) for gi, (k, q, row) in enumerate(rows_[g:g + 4])]
        if extra:
            ch.append(extra.pop(0))
        interleave(ch)
    for e in extra:
        interleave([e])


run_rows([(kap, q, q + 8 * kap) for kap in (0, 1) for q in range(8)],
         [cmul_ops(CK(k), CK(k - 1), Z128) for k in (2, 3, 4)])
mf = tile_mfma(0)
I("s_waitcnt lgkmcnt(0)")
r1 = [(2 + kp, q, q // 2 + 4 * kp) for kp in (0, 1) for q in (0, 2, 4, 6)]
r1b = [(4 + kp, q, 8 + q // 4 + 2 * kp) for kp in range(4) for q in (0, 4)]
interleave([mf[:6]] + [rowval(k, q, row, gi) for gi, (k, q, row) in enumerate(r1[:4])])
interleave([mf[6:]] + [rowval(k, q, row, gi) for gi, (k, q, row) in enumerate(r1[4:])] + [cmul_ops(CK(5), CK(4), Z128)])
interleave([rowval(k, q, row, gi) for gi, (k, q, row) in enumerate(r1b[:4])] + [cmul_ops(CK(6), CK(5), Z128) + cmul_ops(CK(7), CK(6), Z128)])
interleave([rowval(k, q, row, gi) for gi, (k, q, row) in enumerate(r1b[4:])] + [cmul_ops(CK(8), CK(7), Z128)])
mf = tile_mfma(1)
I("s_waitcnt lgkmcnt(0)")
chain = []
for r in range(9):
    k = 8 + r
    chain.append(split_ops(CK(k), r, ST[r % 4]) )
seq = []
for r in range(9):
    k = 8 + r
    grp = [split_ops(CK(k), r, ST[r % 4])]
    if k < 16:
        grp.append(cmul_ops(CK(k + 1), CK(k), Z128))
    if r < 6:
        grp.append(mf[2 * r:2 * r + 2])
    interleave(grp)
mf = tile_mfma(2)
I("s_waitcnt lgkmcnt(0)")
for m in mf:
    I(m)
MARK(2)
I("s_nop 7")
I("s_nop 1")
I("v_lshrrev_b32 v19, 6, v0")
I(f"v_mul_u32_u24 v19, {WREG}, v19")
I("v_lshl_add_u32 v19, v3, 8, v19")
I("v_lshl_add_u32 v19, v2, 2, v19")
for t in range(3):
    for r in range(4):
        I(f"ds_write_b32 v19, v{ACC+4*t+r} offset:{t*1024 + r*64}")
I("s_waitcnt lgkmcnt(0)")
I("s_barrier")
MARK(3)
I("v_mov_b32 v60, 0x80")
for g in range(2):
    es = [4 * g + k for k in range(4)]
    A, B, C_, D_, F_ = 10, 14, 48, 52, 56
    def col(fmt):
        for k, e in enumerate(es):
            I(fmt.format(a=A + k, b=B + k, c=C_ + k, d=D_ + k, f=F_ + k, e=e, o=2 + e))
    col("v_lshl_add_u32 v{a}, v0, 3, {e}")
    col("v_cvt_f32_u32 v{a}, v{a}")
    col("v_cvt_pk_bf16_f32 v{a}, v{a}, v{a}")
    col("v_bfe_u32 v{b}, v{a}, 7, 8")
    col("v_lshlrev_b32 v{a}, 16, v{a}")
    col("v_subrev_u32 v{b}, 134, v{b}")
    col("v_cvt_u32_f32 v{a}, v{a}")
    col("v_med3_i32 v{b}, v{b}, 0, 3")
    col("v_lshlrev_b32 v{c}, v{b}, v60")
    col("v_sub_u32 v{f}, 3, v{b}")
    col("v_and_b32 v{c}, 0xffffff00, v{c}")
    col("v_sub_u32 v{a}, v{a}, v{c}")
    col("v_and_b32 v{c}, 7, v{a}")
    col("v_lshrrev_b32 v{d}, 7, v{a}")
    col("v_lshrrev_b32 v{c}, v{b}, v{c}")
    col("v_lshlrev_b32 v{d}, v{f}, v{d}")
    col("v_bfe_u32 v{a}, v{a}, 3, 4")
    col("v_add_u32 v{c}, v{c}, v{d}")
    col("v_min_u32 v{d}, 1, v{b}")
    col("v_lshl_add_u32 v{c}, v{c}, 4, v{a}")
    col("v_add_u32 v{d}, v{d}, v{b}")
    col("v_lshl_add_u32 v{c}, v{d}, 7, v{c}")
    col("v_lshlrev_b32 v{o}, 2, v{c}")
for e in range(8):
    for w in range(4):
        I(f"ds_read_b32 v{16 + 4*e + w}, v{2+e} offset:{w*8704}")
    if e == 3:
        I("s_waitcnt lgkmcnt(0)")
I("s_waitcnt lgkmcnt(0)")
for e in range(8):
    b = 16 + 4 * e
    I(f"v_add_f32 v{b}, v{b}, v{b+1}")
    I(f"v_add_f32 v{b+2}, v{b+2}, v{b+3}")
    I(f"v_add_f32 v{b}, v{b}, v{b+2}")
for j in range(4):
    ka, kb = 16 + 4 * (7 - 2 * j), 16 + 4 * (6 - 2 * j)
    I(f"v_cvt_pk_bf16_f32 v{48+j}, v{ka}, v{kb}")
    I(f"v_lshlrev_b32 v10, 16, v{48+j}")
    I(f"v_and_b32 v11, 0xffff0000, v{48+j}")
    I(f"v_sub_f32 v10, v{ka}, v10")
    I(f"v_sub_f32 v11, v{kb}, v11")
    I(f"v_cvt_pk_bf16_f32 v{52+j}, v10, v11")
MARK(4)
I(f"s_mul_i32 s16, s2, {KR_STRIDE}")
I(f"s_add_u32 s16, s16, {WS_KR}")
I("s_add_u32 s14, s14, s16")
I("s_addc_u32 s15, s15, 0")
I("v_lshlrev_b32 v10, 4, v0")
I("v_sub_u32 v10, 4080, v10")
I("v_add_u32 v11, 4608, v10")
I("global_store_dwordx4 v10, v[48:51], s[14:15]")
I("global_store_dwordx4 v11, v[52:55], s[14:15]")
I("v_cmp_gt_u32 vcc, 64, v0")
I("s_and_saveexec_b64 s[18:19], vcc")
I("s_cbranch_execz P_done")
I("v_and_b32 v10, 31, v0")
I("v_lshlrev_b32 v10, 4, v10")
I("v_lshrrev_b32 v11, 5, v0")
I("v_mul_u32_u24 v11, 4608, v11")
I("v_add3_u32 v10, v10, v11, 0")
I("v_add_u32 v10, 4096, v10")
for r in range(12, 16):
    I(f"v_mov_b32 v{r}, 0")
I("global_store_dwordx4 v10, v[12:15], s[14:15]")
I("s_endpgm")

L("P_ln")
I("s_load_dwordx2 s[4:5], s[0:1], 0")
I("s_load_dwordx2 s[14:15], s[0:1], 96")
I(f"s_sub_u32 s3, s2, {N_K}")
I("v_lshrrev_b32 v1, 6, v0")
I("v_and_b32 v2, 63, v0")
I("s_lshl_b32 s6, s3, 4")
I("v_lshl_add_u32 v3, v1, 2, s6")
I("v_mul_u32_u24 v3, 896, v3")
I("v_lshl_add_u32 v3, v2, 4, v3")
I("s_mul_i32 s7, s3, 14336")
I("v_lshrrev_b32 v28, 2, v2")
I("v_lshlrev_b32 v28, 10, v28")
I("v_and_b32 v29, 3, v2")
I("v_lshl_add_u32 v28, v29, 8, v28")
I("v_lshl_add_u32 v28, v1, 6, v28")
I("v_add_u32 v28, s7, v28")
I("s_mov_b32 s20, 0x3b124925")
I("s_mov_b32 s21, 0x43e00000")
I("s_mov_b32 s22, 0x3727c5ac")
for r in range(8, 24):
    I(f"v_mov_b32 v{r}, 0")
I("s_mov_b64 s[16:17], exec")
I("s_mov_b32 s18, -1")
I("s_mov_b32 s19, 0x00ffffff")
I("s_waitcnt lgkmcnt(0)")
I("s_mov_b64 exec, s[18:19]")
for k in range(4):
    I(f"global_load_dwordx4 v[{8+4*k}:{11+4*k}], v3, s[4:5] offset:{896*k}")
I("s_mov_b64 exec, s[16:17]")
I("s_waitcnt vmcnt(0)")
MARK(0)
for k in range(4):
    for j in range(4):
        I(f"v_lshlrev_b32 v{32+8*k+2*j}, 16, v{8+4*k+j}")
        I(f"v_and_b32 v{33+8*k+2*j}, 0xffff0000, v{8+4*k+j}")
def rows(fmt, **kw):
    for k in range(4):
        b = 32 + 8 * k
        I(fmt.format(k=k, s=8 + k, t=12 + k, m=16 + k, u=20 + k, w=64 + k, x=68 + k, sg=24 + k,
                     b0=b, b1=b + 1, b2=b + 2, b3=b + 3, b4=b + 4, b5=b + 5, b6=b + 6, b7=b + 7, **kw))


def dpp4():
    for sh in (1, 2, 4, 8):
        rows("v_add_f32_dpp v{s}, v{s}, v{s} row_shr:%d row_mask:0xf bank_mask:0xf bound_ctrl:0" % sh)
    rows("v_add_f32_dpp v{s}, v{s}, v{s} row_bcast:15 row_mask:0xa bank_mask:0xf")
    rows("v_add_f32_dpp v{s}, v{s}, v{s} row_bcast:31 row_mask:0xc bank_mask:0xf")
    rows("v_readlane_b32 s{sg}, v{s}, 63")


rows("v_add_f32 v{s}, v{b0}, v{b1}")
rows("v_add_f32 v{t}, v{b2}, v{b3}")
rows("v_add_f32 v{m}, v{b4}, v{b5}")
rows("v_add_f32 v{u}, v{b6}, v{b7}")
rows("v_add_f32 v{s}, v{s}, v{t}")
rows("v_add_f32 v{m}, v{m}, v{u}")
rows("v_add_f32 v{s}, v{s}, v{m}")
dpp4()
rows("v_mov_b32 v{t}, s{sg}")
rows("v_mul_f32 v{m}, s20, v{t}")
rows("v_fma_f32 v{u}, -v{m}, s21, v{t}")
rows("v_fma_f32 v{m}, v{u}, s20, v{m}")
rows("v_mov_b32 v{s}, 0")
I("s_mov_b64 exec, s[18:19]")
for j in range(8):
    rows("v_sub_f32 v{t}, v{bj}, v{m}".replace("{bj}", "{b%d}" % j))
    rows("v_fmac_f32 v{s}, v{t}, v{t}")
I("s_mov_b64 exec, s[16:17]")
I("s_nop 1")
dpp4()
rows("v_mov_b32 v{t}, s{sg}")
rows("v_mul_f32 v{u}, s20, v{t}")
rows("v_fma_f32 v{w}, -v{u}, s21, v{t}")
rows("v_fma_f32 v{u}, v{w}, s20, v{u}")
rows("v_cvt_pk_bf16_f32 v{u}, v{u}, v{u}")
rows("v_cvt_pk_bf16_f32 v{m}, v{m}, v{m}")
rows("v_lshlrev_b32 v{u}, 16, v{u}")
rows("v_lshlrev_b32 v{m}, 16, v{m}")
rows("v_add_f32 v{u}, s22, v{u}")
rows("v_cvt_pk_bf16_f32 v{u}, v{u}, v{u}")
rows("v_lshlrev_b32 v{u}, 16, v{u}")
rows("v_sqrt_f32 v{w}, v{u}")
for j in range(8):
    rows("v_sub_f32 v{bj}, v{bj}, v{m}".replace("{bj}", "{b%d}" % j))
rows("v_rcp_f32 v{x}, v{w}")
rows("v_fma_f32 v{t}, -v{w}, v{w}, v{u}")
rows("v_mul_f32 v{x}, 0.5, v{x}")
rows("v_fma_f32 v{w}, v{t}, v{x}, v{w}")
rows("v_cvt_pk_bf16_f32 v{w}, v{w}, v{w}")
rows("v_lshlrev_b32 v{w}, 16, v{w}")
rows("v_rcp_f32 v{x}, v{w}")
for j in range(0, 8, 2):
    rows("v_cvt_pk_bf16_f32 v{t}, v{bj}, v{bk}".replace("{bj}", "{b%d}" % j).replace("{bk}", "{b%d}" % (j + 1)))
    rows("v_lshlrev_b32 v{bj}, 16, v{t}".replace("{bj}", "{b%d}" % j))
    rows("v_and_b32 v{bk}, 0xffff0000, v{t}".replace("{bk}", "{b%d}" % (j + 1)))
rows("v_fma_f32 v{t}, -v{w}, v{x}, 1.0")
rows("v_fma_f32 v{x}, v{t}, v{x}, v{x}")
for j in range(8):
    rows("v_mul_f32 v{t}, v{bj}, v{x}".replace("{bj}", "{b%d}" % j))
    rows("v_fma_f32 v{u}, -v{t}, v{w}, v{bj}".replace("{bj}", "{b%d}" % j))
    rows("v_fma_f32 v{bj}, v{u}, v{x}, v{t}".replace("{bj}", "{b%d}" % j))
for j in range(4):
    for k in range(4):
        b = 32 + 8 * k
        I(f"v_cvt_pk_bf16_f32 v{8+4*k+j}, v{b+2*j}, v{b+2*j+1}")
I("v_lshlrev_b32 v30, 2, v1")
I("v_mul_u32_u24 v30, 896, v30")
I("v_lshl_add_u32 v30, v2, 4, v30")
I("s_mov_b64 exec, s[18:19]")
for k in range(4):
    I(f"global_store_dwordx4 v28, v[{8+4*k}:{11+4*k}], s[14:15] offset:{16*k}")
    I(f"ds_write_b128 v30, v[{8+4*k}:{11+4*k}] offset:{896*k}")
I("s_mov_b64 exec, s[16:17]")
MARK(1)
I("s_waitcnt lgkmcnt(0)")
I("s_barrier")
MARK(2)
I(f"s_add_u32 s14, s14, {WS_XNT}")
I("s_addc_u32 s15, s15, 0")
I("s_lshl_b32 s6, s3, 5")
I("s_add_u32 s6, s6, 32")
for p in range(2):
    if p == 1:
        I("v_cmp_gt_u32 vcc, 192, v0")
        I("s_and_saveexec_b64 s[16:17], vcc")
        I("s_cbranch_execz P_done")
    I(f"v_add_u32 v4, {256*p}, v0")
    I("v_lshlrev_b32 v5, 1, v4")
    for t in range(16):
        I(f"ds_read_u16 v{24 + t}, v5 offset:{896*t}")
        if t == 7:
            I("s_waitcnt lgkmcnt(0)")
    I(f"v_mul_u32_u24 v6, {XNT_STRIDE}, v4")
    I("v_add_u32 v7, s6, v6")
    I("s_waitcnt lgkmcnt(0)")
    for t in range(8):
        I(f"v_lshl_or_b32 v{8+t}, v{25+2*t}, 16, v{24+2*t}")
    I("global_store_dwordx4 v7, v[8:11], s[14:15]")
    I("global_store_dwordx4 v7, v[12:15], s[14:15] offset:16")
    I("s_cmp_lg_u32 s3, 0")
    I(f"s_cbranch_scc1 P_ln_nz{p}")
    for r in range(16, 20):
        I(f"v_mov_b32 v{r}, 0")
    I("global_store_dwordx4 v6, v[16:19], s[14:15]")
    I("global_store_dwordx4 v6, v[16:19], s[14:15] offset:16")
    L(f"P_ln_nz{p}")
I("s_endpgm")

L("P_wt")
I(f"s_sub_u32 s3, s2, {N_K+N_LN}")
I("s_load_dwordx4 s[4:7], s[0:1], 64")
I("s_load_dwordx2 s[14:15], s[0:1], 96")
I("s_waitcnt lgkmcnt(0)")
I("s_cmp_ge_u32 s3, 196")
I("s_cbranch_scc1 P_wt2")
I("s_mul_i32 s8, s3, 9363")
I("s_lshr_b32 s8, s8, 16")
I("s_mul_i32 s9, s8, 7")
I("s_sub_u32 s9, s3, s9")
I("s_mov_b32 s10, 3584")
I("s_mov_b32 s11, 896")
I(f"s_add_u32 s14, s14, {WS_W1T}")
I("s_addc_u32 s15, s15, 0")
I("s_branch P_wt_go")
L("P_wt2")
I("s_sub_u32 s3, s3, 196")
I("s_mul_i32 s8, s3, 2341")
I("s_lshr_b32 s8, s8, 16")
I("s_mul_i32 s9, s8, 28")
I("s_sub_u32 s9, s3, s9")
I("s_mov_b32 s10, 896")
I("s_mov_b32 s11, 3584")
I("s_mov_b32 s4, s6")
I("s_mov_b32 s5, s7")
I(f"s_add_u32 s14, s14, {WS_W2T}")
I("s_addc_u32 s15, s15, 0")
L("P_wt_go")
I("s_lshl_b32 s12, s9, 6")
I("s_lshl_b32 s13, s8, 6")
I("v_lshrrev_b32 v1, 3, v0")
I("v_and_b32 v2, 7, v0")
I("v_add_u32 v3, s12, v1")
I("v_mul_lo_u32 v3, v3, s10")
I("s_lshl_b32 s16, s13, 1")
I("v_lshl_add_u32 v4, v2, 4, s16")
I("v_add_u32 v3, v3, v4")
I("s_lshl_b32 s17, s10, 5")
I("v_add_u32 v4, s17, v3")
I("global_load_dwordx4 v[8:11], v3, s[4:5]")
I("global_load_dwordx4 v[12:15], v4, s[4:5]")
I("v_lshlrev_b32 v5, 7, v1")
I("v_lshl_add_u32 v5, v2, 4, v5")
I("s_waitcnt vmcnt(0)")
I("ds_write_b128 v5, v[8:11]")
I("ds_write_b128 v5, v[12:15] offset:4096")
I("s_waitcnt lgkmcnt(0)")
I("s_barrier")
I("v_and_b32 v1, 63, v0")
I("v_lshrrev_b32 v2, 6, v0")
I("v_lshlrev_b32 v5, 10, v2")
I("v_lshl_add_u32 v5, v1, 1, v5")
for c in range(2):
    for e in range(8):
        I(f"ds_read_u16 v{24 + 8*c + e}, v5 offset:{4096*c + 128*e}")
    if c == 0:
        I("s_waitcnt lgkmcnt(0)")
I("v_bfe_u32 v3, v1, 2, 2")
I("v_lshrrev_b32 v4, 4, v1")
I("v_and_b32 v6, 3, v1")
I("v_lshl_add_u32 v6, v4, 2, v6")
I("v_and_b32 v7, 15, v1")
I("s_cmp_eq_u32 s11, 896")
I("s_cselect_b64 vcc, -1, 0")
I("v_cndmask_b32 v3, v4, v3, vcc")
I("v_cndmask_b32 v6, v7, v6, vcc")
I("s_lshr_b32 s16, s13, 4")
I("v_add_u32 v3, s16, v3")
I("s_lshl_b32 s17, s11, 4")
I("v_mul_lo_u32 v3, v3, s17")
I("s_lshl_b32 s16, s12, 5")
I("v_add_u32 v3, s16, v3")
I("v_lshl_add_u32 v3, v2, 8, v3")
I("v_lshl_add_u32 v3, v6, 4, v3")
I("s_waitcnt lgkmcnt(0)")
for t in range(8):
    I(f"v_lshl_or_b32 v{8+t}, v{25+2*t}, 16, v{24+2*t}")
I("global_store_dwordx4 v3, v[8:11], s[14:15]")
I("global_store_dwordx4 v3, v[12:15], s[14:15] offset:1024")
L("P_done")
I("s_endpgm")


def gemm_core(sa, sb, va, vb, acc0, buf0, ring=5):
    NS = 14
    PF = ring - 1

    def loads(s):
        bb = buf0 + 32 * (s % ring)
        off = (s & 3) * 1024
        if s and (s & 3) == 0:
            I(f"s_add_u32 s{sa}, s{sa}, 4096")
            I(f"s_addc_u32 s{sa+1}, s{sa+1}, 0")
            I(f"s_add_u32 s{sb}, s{sb}, 4096")
            I(f"s_addc_u32 s{sb+1}, s{sb+1}, 0")
        for j in range(4):
            I(f"global_load_dwordx4 v[{bb+4*j}:{bb+4*j+3}], v{va+j}, s[{sa}:{sa+1}] offset:{off}")
        for j in range(4):
            I(f"global_load_dwordx4 v[{bb+16+4*j}:{bb+16+4*j+3}], v{vb+j}, s[{sb}:{sb+1}] offset:{off}")

    for s in range(PF):
        loads(s)
    for s in range(NS):
        if s + PF < NS:
            loads(s + PF)
            I(f"s_waitcnt vmcnt({8*PF})")
        else:
            I(f"s_waitcnt vmcnt({8*(NS-1-s)})")
        bb = buf0 + 32 * (s % ring)
        for a in range(4):
            for b in range(4):
                c = acc0 + 16 * a + 4 * b
                src = "0" if s == 0 else f"v[{c}:{c+3}]"
                I(f"v_mfma_f32_16x16x32_bf16 v[{c}:{c+3}], v[{bb+4*a}:{bb+4*a+3}], v[{bb+16+4*b}:{bb+16+4*b+3}], {src}")


kstart("mid_kernel")
I(f"s_cmp_ge_u32 s2, {L1_GRID}")
I("s_cbranch_scc1 M_done")
I("s_load_dwordx2 s[14:15], s[0:1], 96")
I("v_and_b32 v1, 15, v0")
I("v_bfe_u32 v2, v0, 4, 2")
I("v_lshrrev_b32 v3, 6, v0")
I(f"s_cmp_ge_u32 s2, {N_CONV}")
I("s_cbranch_scc1 M_gemm")

I(f"s_mul_i32 s4, s2, {2*KR_STRIDE}")
I(f"s_add_u32 s4, s4, {WS_KR}")
I(f"s_mul_i32 s6, s2, {2*XNT_STRIDE}")
I(f"s_add_u32 s6, s6, {WS_XNT}")
I("s_waitcnt lgkmcnt(0)")
I("s_add_u32 s4, s14, s4")
I("s_addc_u32 s5, s15, 0")
I("s_add_u32 s6, s14, s6")
I("s_addc_u32 s7, s15, 0")
I("v_lshlrev_b32 v4, 4, v0")
I("v_add_u32 v5, 0x1000, v4")
I("v_add_u32 v6, 0x2000, v4")
I("v_add_u32 v7, 0x3000, v4")
I("v_add_u32 v8, 0x4000, v4")
I("global_load_dwordx4 v[16:19], v4, s[4:5]")
I("global_load_dwordx4 v[20:23], v5, s[4:5]")
I("global_load_dwordx4 v[24:27], v6, s[4:5]")
I("global_load_dwordx4 v[28:31], v7, s[4:5]")
I(f"v_add_u32 v9, {XNT_STRIDE}, v4")
I("global_load_dwordx4 v[36:39], v4, s[6:7]")
I("global_load_dwordx4 v[40:43], v4, s[6:7] offset:2")
I("global_load_dwordx4 v[44:47], v9, s[6:7]")
I("global_load_dwordx4 v[48:51], v9, s[6:7] offset:2")
I("s_mov_b64 s[16:17], exec")
I("v_cmp_gt_u32 vcc, 128, v0")
I("s_and_saveexec_b64 s[18:19], vcc")
I("global_load_dwordx4 v[32:35], v8, s[4:5]")
I("s_mov_b64 exec, s[16:17]")
I("v_cmp_gt_u32 vcc, 3, v0")
I("s_and_saveexec_b64 s[18:19], vcc")
I("v_add_u32 v10, 0x1000, v9")
I("global_load_dwordx4 v[52:55], v5, s[6:7]")
I("global_load_dwordx4 v[56:59], v5, s[6:7] offset:2")
I("global_load_dwordx4 v[60:63], v10, s[6:7]")
I("global_load_dwordx4 v[64:67], v10, s[6:7] offset:2")
I("s_mov_b64 exec, s[16:17]")
I("s_waitcnt vmcnt(0)")
UB = 2 * KR_STRIDE
I("ds_write_b128 v4, v[16:19]")
I("ds_write_b128 v5, v[20:23]")
I("ds_write_b128 v6, v[24:27]")
I("ds_write_b128 v7, v[28:31]")
I(f"ds_write_b128 v4, v[36:39] offset:{UB}")
I(f"ds_write_b128 v4, v[40:43] offset:{UB+XNT_STRIDE}")
I(f"ds_write_b128 v4, v[44:47] offset:{UB+2*XNT_STRIDE}")
I(f"ds_write_b128 v4, v[48:51] offset:{UB+3*XNT_STRIDE}")
I("v_cmp_gt_u32 vcc, 128, v0")
I("s_and_saveexec_b64 s[18:19], vcc")
I("ds_write_b128 v8, v[32:35]")
I("s_mov_b64 exec, s[16:17]")
I("v_cmp_gt_u32 vcc, 3, v0")
I("s_and_saveexec_b64 s[18:19], vcc")
I(f"ds_write_b128 v5, v[52:55] offset:{UB}")
I(f"ds_write_b128 v5, v[56:59] offset:{UB+XNT_STRIDE}")
I(f"ds_write_b128 v5, v[60:63] offset:{UB+2*XNT_STRIDE}")
I(f"ds_write_b128 v5, v[64:67] offset:{UB+3*XNT_STRIDE}")
I("s_mov_b64 exec, s[16:17]")
I("s_waitcnt lgkmcnt(0)")
I("s_barrier")
I("v_lshrrev_b32 v4, 1, v3")
I("v_lshl_add_u32 v5, v2, 3, v1")
I("v_add_u32 v5, 1, v5")
I("v_and_b32 v7, 1, v5")
I("v_sub_u32 v5, v5, v7")
I("v_lshlrev_b32 v5, 1, v5")
I(f"v_mul_u32_u24 v7, {XNT_STRIDE}, v7")
I("v_add_u32 v5, v5, v7")
I(f"v_mul_u32_u24 v7, {2*XNT_STRIDE}, v4")
I("v_add_u32 v5, v5, v7")
I(f"v_add_u32 v224, {UB}, v5")
for c in range(1, 8):
    I(f"v_add_u32 v{224+c}, {512*c}, v224")
I(f"v_mul_u32_u24 v6, {KR_STRIDE}, v4")
I("v_lshl_add_u32 v6, v2, 4, v6")
I("v_lshlrev_b32 v7, 5, v1")
I("v_sub_u32 v6, v6, v7")
I("v_add_u32 v6, 480, v6")
I("v_readfirstlane_b32 s8, v3")
I("s_and_b32 s9, s8, 1")
I("s_cmp_eq_u32 s9, 1")
I("s_cbranch_scc1 M_conv_b")

CA0 = 16
CBUF = 32


def conv_body(TS, tag):
    nmax = max(TS)

    def reads(r):
        bb = CBUF + 96 * (r & 1)
        out = []
        for c in range(nmax + 1):
            out.append(f"ds_read2_b32 v[{bb+4*c}:{bb+4*c+1}], v{224+c} offset0:{16*r} offset1:{16*r+1}")
            out.append(f"ds_read2_b32 v[{bb+4*c+2}:{bb+4*c+3}], v{224+c} offset0:{16*r+2} offset1:{16*r+3}")
        for n in range(nmax + 1):
            o = 3584 - 512 * n + 64 * r
            out.append(f"ds_read_b128 v[{bb+32+8*n}:{bb+32+8*n+3}], v6 offset:{o}")
            out.append(f"ds_read_b128 v[{bb+36+8*n}:{bb+36+8*n+3}], v6 offset:{o+4608}")
        return out

    for x in reads(0):
        I(x)
    for r in range(8):
        I("s_waitcnt lgkmcnt(0)")
        nxt = reads(r + 1) if r < 7 else []
        bb = CBUF + 96 * (r & 1)
        mf = []
        for ti, T in enumerate(TS):
            acc = CA0 + 4 * ti
            for c in range(T + 1):
                n = T - c
                first = (r == 0 and c == 0)
                src = "0" if first else f"v[{acc}:{acc+3}]"
                mf.append(f"v_mfma_f32_16x16x32_bf16 v[{acc}:{acc+3}], v[{bb+4*c}:{bb+4*c+3}], v[{bb+32+8*n}:{bb+32+8*n+3}], {src}")
                mf.append(f"v_mfma_f32_16x16x32_bf16 v[{acc}:{acc+3}], v[{bb+4*c}:{bb+4*c+3}], v[{bb+36+8*n}:{bb+36+8*n+3}], v[{acc}:{acc+3}]")
        k = 0
        for idx, m in enumerate(mf):
            I(m)
            if k < len(nxt):
                I(nxt[k]); k += 1
        while k < len(nxt):
            I(nxt[k]); k += 1
    I("s_nop 7")
    I("s_nop 1")
    I(f"s_lshl_b32 s10, s2, 13")
    I(f"s_add_u32 s10, s10, {WS_YT}")
    I("s_add_u32 s10, s14, s10")
    I("s_addc_u32 s11, s15, 0")
    I("v_lshlrev_b32 v7, 12, v4")
    I("v_lshl_add_u32 v7, v1, 5, v7")
    I("v_lshl_add_u32 v7, v2, 3, v7")
    for ti, T in enumerate(TS):
        acc = CA0 + 4 * ti
        I(f"v_cvt_pk_bf16_f32 v{8+2*ti}, v{acc}, v{acc+1}")
        I(f"v_cvt_pk_bf16_f32 v{9+2*ti}, v{acc+2}, v{acc+3}")
        I(f"global_store_dwordx2 v7, v[{8+2*ti}:{9+2*ti}], s[10:11] offset:{512*T}")
    I("s_endpgm")


conv_body((7, 4, 3, 0), "a")
L("M_conv_b")
conv_body((6, 5, 2, 1), "b")

L("M_gemm")
I(f"s_sub_u32 s3, s2, {N_CONV}")
I("s_and_b32 s10, s3, 7")
I("s_lshr_b32 s3, s3, 3")
I("s_mul_i32 s8, s3, 4682")
I("s_lshr_b32 s8, s8, 16")
I("s_mul_i32 s9, s8, 14")
I("s_sub_u32 s9, s3, s9")
I("s_lshl_b32 s10, s10, 1")
I("s_add_u32 s8, s8, s10")
I("s_waitcnt lgkmcnt(0)")
I(f"s_add_u32 s4, s14, {WS_W1T}")
I("s_addc_u32 s5, s15, 0")
I(f"s_add_u32 s6, s14, {WS_XN}")
I("s_addc_u32 s7, s15, 0")
I("s_lshl_b32 s9, s9, 7")
I("s_lshl_b32 s8, s8, 7")
I("v_and_b32 v4, 1, v3")
I("v_lshl_add_u32 v4, v4, 6, s9")
I("v_lshrrev_b32 v5, 1, v3")
I("v_lshl_add_u32 v5, v5, 6, s8")
I("v_and_b32 v7, 63, v0")
I("v_lshlrev_b32 v7, 4, v7")
I("v_mul_u32_u24 v6, 896, v4")
I("v_add_u32 v8, v6, v7")
for j in range(1, 4):
    I(f"v_add_u32 v{8+j}, {14336*j}, v8")
I("v_mul_u32_u24 v6, 896, v5")
I("v_add_u32 v12, v6, v7")
for j in range(1, 4):
    I(f"v_add_u32 v{12+j}, {14336*j}, v12")
G_ACC = 16
G_BUF = 80
gemm_core(4, 6, 8, 12, G_ACC, G_BUF)
I(f"s_add_u32 s4, s14, {WS_H}")
I("s_addc_u32 s5, s15, 0")
I("v_mul_u32_u24 v6, 3584, v5")
I("v_lshl_add_u32 v6, v4, 5, v6")
I("v_lshrrev_b32 v7, 1, v2")
I("v_lshl_add_u32 v6, v7, 10, v6")
I("v_and_b32 v7, 1, v2")
I("v_lshl_add_u32 v6, v7, 9, v6")
I("v_lshl_add_u32 v6, v1, 4, v6")
I("s_nop 4")
for b in range(4):
    for a in range(4):
        c = G_ACC + 16 * a + 4 * b
        for r in range(4):
            I(f"v_max_f32 v{c+r}, 0, v{c+r}")
        I(f"v_cvt_pk_bf16_f32 v{80+2*a}, v{c}, v{c+1}")
        I(f"v_cvt_pk_bf16_f32 v{81+2*a}, v{c+2}, v{c+3}")
    if b > 0:
        I(f"v_add_u32 v6, {57344}, v6")
    I("global_store_dwordx4 v6, v[80:83], s[4:5]")
    I("global_store_dwordx4 v6, v[84:87], s[4:5] offset:256")
    I("s_nop 1")
L("M_done")
I("s_endpgm")

kstart("fin_kernel")
I(f"s_cmp_ge_u32 s2, {L2_GRID}")
I("s_cbranch_scc1 F_done")
I("s_load_dwordx2 s[14:15], s[0:1], 96")
I("s_load_dwordx2 s[16:17], s[0:1], 0")
I("s_load_dwordx2 s[18:19], s[0:1], 48")
I("s_load_dwordx2 s[20:21], s[0:1], 80")
I("v_and_b32 v1, 15, v0")
I("v_bfe_u32 v2, v0, 4, 2")
I("v_lshrrev_b32 v3, 6, v0")
I("v_and_b32 v4, 63, v0")
I("s_and_b32 s10, s2, 7")
I("s_lshr_b32 s3, s2, 3")
I("s_mul_i32 s8, s3, 9363")
I("s_lshr_b32 s8, s8, 16")
I("s_mul_i32 s9, s8, 7")
I("s_sub_u32 s9, s3, s9")
I("s_lshl_b32 s10, s10, 2")
I("s_add_u32 s8, s8, s10")
I("s_lshl_b32 s9, s9, 6")
I("s_lshl_b32 s8, s8, 6")
I("s_waitcnt lgkmcnt(0)")
I(f"s_add_u32 s4, s14, {WS_W2T}")
I("s_addc_u32 s5, s15, 0")
I(f"s_add_u32 s6, s14, {WS_H}")
I("s_addc_u32 s7, s15, 0")
I(f"s_add_u32 s10, s14, {WS_YT}")
I("s_addc_u32 s11, s15, 0")
I("v_add_u32 v5, s8, v4")
I("v_mul_u32_u24 v5, 896, v5")
I("s_lshl_b32 s12, s9, 1")
I("v_lshl_add_u32 v6, v3, 5, s12")
I("v_add_u32 v5, v5, v6")
EX, EXN, EY, EDK = 232, 240, 216, 208
I(f"global_load_dwordx4 v[{EX}:{EX+3}], v5, s[16:17]")
I(f"global_load_dwordx4 v[{EX+4}:{EX+7}], v5, s[16:17] offset:16")
I("v_add_u32 v7, s8, v4")
I("v_lshrrev_b32 v8, 4, v7")
I("v_mul_u32_u24 v8, 14336, v8")
I("v_and_b32 v7, 15, v7")
I("v_lshl_add_u32 v8, v7, 4, v8")
I("v_lshrrev_b32 v7, 6, v6")
I("v_lshl_add_u32 v8, v7, 10, v8")
I("v_bfe_u32 v7, v6, 4, 2")
I("v_lshl_add_u32 v8, v7, 8, v8")
I(f"global_load_dwordx4 v[{EXN}:{EXN+3}], v8, s[14:15]")
I(f"global_load_dwordx4 v[{EXN+4}:{EXN+7}], v8, s[14:15] offset:256")
I(f"global_load_dwordx4 v[{EDK}:{EDK+3}], v6, s[18:19]")
I(f"global_load_dwordx4 v[{EDK+4}:{EDK+7}], v6, s[18:19] offset:16")
I("v_lshlrev_b32 v7, 11, v6")
I("v_add_u32 v6, s8, v4")
I("v_lshl_add_u32 v7, v6, 1, v7")
for dd in range(16):
    if dd and dd % 1 == 0:
        I("v_add_u32 v7, 0x1000, v7")
    I(f"global_load_ushort v{EY+dd}, v7, s[10:11]")
I("v_mul_u32_u24 v7, 14336, v3")
I("v_lshl_add_u32 v7, v4, 4, v7")
I("s_mul_i32 s12, s9, 3584")
I("v_add_u32 v8, s12, v7")
for j in range(1, 4):
    I(f"v_add_u32 v{8+j}, {57344*j}, v8")
I("s_mul_i32 s12, s8, 3584")
I("v_add_u32 v12, s12, v7")
for j in range(1, 4):
    I(f"v_add_u32 v{12+j}, {57344*j}, v12")
F_ACC = 16
F_BUF = 80
gemm_core(4, 6, 8, 12, F_ACC, F_BUF, ring=4)
I("v_lshl_add_u32 v6, v3, 4, v2")
I("v_mul_u32_u24 v6, 1088, v6")
I("v_lshl_add_u32 v6, v1, 2, v6")
I("s_nop 4")
for a in range(4):
    for b in range(4):
        for r in range(4):
            c = F_ACC + 16 * a + 4 * b + r
            I(f"ds_write_b32 v6, v{c} offset:{((16*a+r)*68 + 16*b)*4}")
I("s_waitcnt lgkmcnt(0)")
I("s_barrier")
I("v_mul_u32_u24 v6, 4352, v3")
I("v_lshl_add_u32 v6, v4, 2, v6")
for dd in range(16):
    for p in range(4):
        I(f"ds_read_b32 v{80+4*dd+p}, v6 offset:{(p*64+dd)*272}")
    if dd % 3 == 2:
        I("s_waitcnt lgkmcnt(0)")
I("s_mov_b32 s22, 0xbfb8aa3b")
I("s_waitcnt lgkmcnt(0)")
for dd in range(16):
    b = 80 + 4 * dd
    h = dd & 1
    def unp(dst, reg):
        if h:
            I(f"v_and_b32 v{dst}, 0xffff0000, v{reg + dd//2}")
        else:
            I(f"v_lshlrev_b32 v{dst}, 16, v{reg + dd//2}")
    I(f"v_add_f32 v{b}, v{b}, v{b+1}")
    I(f"v_add_f32 v{b+2}, v{b+2}, v{b+3}")
    I(f"v_add_f32 v{b}, v{b}, v{b+2}")
    bf16r(b, b)
    I(f"v_mul_f32 v{b+1}, s22, v{b}")
    I(f"v_exp_f32 v{b+1}, v{b+1}")
    unp(b+2, EXN)
    unp(b+3, EDK)
    I(f"v_add_f32 v{b+1}, 1.0, v{b+1}")
    I(f"v_rcp_f32 v{b+1}, v{b+1}")
    I(f"v_mul_f32 v{b+2}, v{b+2}, v{b+3}")
    bf16r(b+2, b+2)
    I(f"v_mul_f32 v{b}, v{b}, v{b+1}")
    bf16r(b, b)
    I(f"v_lshlrev_b32 v{b+3}, 16, v{EY+dd}")
    I(f"v_add_f32 v{b+2}, v{b+2}, v{b+3}")
    bf16r(b+2, b+2)
    I(f"v_mul_f32 v{b}, v{b}, v{b+2}")
    bf16r(b, b)
    unp(b+3, EX)
    I(f"v_add_f32 v{b}, v{b}, v{b+3}")
for j in range(8):
    I(f"v_cvt_pk_bf16_f32 v{16+j}, v{80+8*j}, v{84+8*j}")
I("global_store_dwordx4 v5, v[16:19], s[20:21]")
I("global_store_dwordx4 v5, v[20:23], s[20:21] offset:16")
L("F_done")
I("s_endpgm")

E('.section .rodata,"a"')
for name, nv in (("prep_kernel", 136), ("mid_kernel", 256), ("fin_kernel", 256)):
    E(".p2align 6")
    E(f".amdhsa_kernel {name}")
    E(f"  .amdhsa_next_free_vgpr {nv}")
    E("  .amdhsa_next_free_sgpr 64")
    E(f"  .amdhsa_accum_offset {nv}")
    E("  .amdhsa_group_segment_fixed_size 0")
    E("  .amdhsa_kernarg_size 104")
    E("  .amdhsa_user_sgpr_count 2")
    E("  .amdhsa_user_sgpr_kernarg_segment_ptr 1")
    E("  .amdhsa_system_sgpr_workgroup_id_x 1")
    E("  .amdhsa_float_denorm_mode_32 3")
    E(".end_amdhsa_kernel")

open(OUT, "w").write("\n".join(l for l in lines if l is not None) + "\n")
print("wrote", OUT, len(lines), "lines")
```

```python
import sys

NAME = "recurrent_scan__ssm_conv_s4d__dense_activation_relu__prompt"
OUT = sys.argv[1] if len(sys.argv) > 1 else f"cdna_kernels/{NAME}.s"

WS_XN = 0x0000000
WS_XNT = 0x0200000
XNT_STRIDE = 4160
WS_W1T = 0x0400000
WS_W2T = 0x0600000
WS_KR = 0x0800000
KR_STRIDE = 9216
WS_H = 0x1000000
WS_YT = 0x1800000

import os
STAMP = int(os.environ.get("STAMP", "0"))
lines = []
KIDX = [0]


def E(s=""):
    lines.append(s)


STMOD = os.environ.get("STMOD", "")
def I(s):
    if STMOD and s.startswith("global_store"):
        s = s + " " + STMOD
    if STAMP and s == "s_endpgm":
        for x in ("s_mov_b64 exec, -1",
                  "s_memrealtime s[34:35]", "s_memtime s[36:37]",
                  "s_load_dwordx2 s[38:39], s[0:1], 96",
                  "s_waitcnt vmcnt(0) lgkmcnt(0)",
                  f"s_add_u32 s38, s38, {0x2000000 + (KIDX[0]-1)*0x40000}", "s_addc_u32 s39, s39, 0",
                  "s_lshl_b32 s2, s2, 2", "s_add_u32 s2, s2, s29", "s_lshl_b32 s2, s2, 5", "v_mov_b32 v1, s2",
                  "v_mov_b32 v4, s30", "v_mov_b32 v5, s31", "v_mov_b32 v6, s34", "v_mov_b32 v7, s35",
                  "v_mov_b32 v8, s32", "v_mov_b32 v9, s33", "v_mov_b32 v10, s36", "v_mov_b32 v11, s37",
                  "global_store_dwordx4 v1, v[4:7], s[38:39]", "global_store_dwordx4 v1, v[8:11], s[38:39] offset:16",
                  "v_mov_b32 v4, s40", "v_mov_b32 v5, s42", "v_mov_b32 v6, s44", "v_mov_b32 v7, s46",
                  "v_mov_b32 v8, s48", "v_mov_b32 v9, s50", "v_mov_b32 v10, s52", "v_mov_b32 v11, s54",
                  "v_add_u32 v1, 0x100000, v1",
                  "global_store_dwordx4 v1, v[4:7], s[38:39]", "global_store_dwordx4 v1, v[8:11], s[38:39] offset:16"):
            lines.append("    " + x)
    lines.append("    " + s)


def MARK(n):
    if STAMP:
        lines.append(f"    s_memtime s[{40+2*n}:{41+2*n}]")


def L(lbl):
    lines.append(lbl + ":")


HEADER = open(f"cdna_kernels/{NAME}.s.ref").read().split("; Override launch")[0]

N_K, N_LN, N_WT = 448, 128, 392
L0_GRID = N_K + N_LN + N_WT
L0_LDS = 4 * 8704
N_CONV, N_G1 = 224, 224
L1_GRID = N_CONV + N_G1
L1_LDS = 65536
L2_GRID = 224
L2_LDS = 4 * 64 * 68 * 4

E(HEADER.rstrip("\n"))
E(f"; @launch kernel=prep_kernel grid=({os.environ.get('PGRID', L0_GRID)},1,1) block=(256,1,1) lds={L0_LDS}")
E(f"; @launch kernel=mid_kernel grid=({L1_GRID},1,1) block=(256,1,1) lds={L1_LDS}")
E(f"; @launch kernel=fin_kernel grid=({L2_GRID},1,1) block=(256,1,1) lds={L2_LDS}")
E('.amdgcn_target "amdgcn-amd-amdhsa--gfx950"')
E(".text")


def kstart(name):
    E(f".globl {name}")
    E(".p2align 8")
    E(f".type {name},@function")
    L(name)
    KIDX[0] += 1
    if STAMP:
        I("s_memrealtime s[30:31]")
        I("s_memtime s[32:33]")
        I("v_readfirstlane_b32 s29, v0")
        I("s_lshr_b32 s29, s29, 6")


def bf16r(dst, src):
    I(f"v_cvt_pk_bf16_f32 v{dst}, v{src}, v{src}")
    I(f"v_lshlrev_b32 v{dst}, 16, v{dst}")


def dpp_reduce(v, tmp_s):
    for sh in (1, 2, 4, 8):
        I("s_nop 1")
        I(f"v_add_f32_dpp v{v}, v{v}, v{v} row_shr:{sh} row_mask:0xf bank_mask:0xf bound_ctrl:0")
    I("s_nop 1")
    I(f"v_add_f32_dpp v{v}, v{v}, v{v} row_bcast:15 row_mask:0xa bank_mask:0xf")
    I("s_nop 1")
    I(f"v_add_f32_dpp v{v}, v{v}, v{v} row_bcast:31 row_mask:0xc bank_mask:0xf")
    I("s_nop 1")
    I(f"v_readlane_b32 s{tmp_s}, v{v}, 63")


kstart("prep_kernel")
I(f"s_cmp_ge_u32 s2, {L0_GRID}")
I("s_cbranch_scc1 P_done")
I(f"s_cmp_ge_u32 s2, {N_K + N_LN}")
I("s_cbranch_scc1 P_wt")
I(f"s_cmp_ge_u32 s2, {N_K}")
I("s_cbranch_scc1 P_ln")

I("s_load_dwordx4 s[4:7], s[0:1], 8")
I("s_load_dwordx4 s[8:11], s[0:1], 24")
I("s_load_dwordx2 s[12:13], s[0:1], 40")
I("s_load_dwordx2 s[14:15], s[0:1], 96")
I("s_lshl_b32 s3, s2, 9")
I("v_lshl_add_u32 v1, v0, 1, s3")
I("s_lshl_b32 s16, s2, 1")
I("v_mov_b32 v7, s16")
I("s_mov_b32 s20, 0x3fb8aa3b")
I("s_mov_b32 s21, 0x32a57060")
I("s_mov_b32 s22, 0x3f317218")
I("s_mov_b32 s23, 0x3e22f983")
I("s_mov_b32 s24, 0x31dc9c88")
I("s_waitcnt lgkmcnt(0)")
I("global_load_ushort v2, v1, s[4:5]")
I("global_load_ushort v3, v1, s[6:7]")
I("global_load_ushort v4, v1, s[8:9]")
I("global_load_ushort v5, v1, s[10:11]")
I("global_load_ushort v6, v7, s[12:13]")
I("s_waitcnt vmcnt(0)")
MARK(0)
for r in (2, 3, 4, 5, 6):
    I(f"v_lshlrev_b32 v{r}, 16, v{r}")


def exp_acc(dst, x, t0, t1):
    I(f"v_mul_f32 v{t0}, s20, v{x}")
    I(f"v_fma_f32 v{t1}, v{x}, s20, -v{t0}")
    I(f"v_fma_f32 v{t1}, v{x}, s21, v{t1}")
    I(f"v_exp_f32 v{dst}, v{t0}")
    I(f"v_mul_f32 v{t1}, s22, v{t1}")
    I(f"v_fma_f32 v{dst}, v{dst}, v{t1}, v{dst}")


exp_acc(8, 6, 10, 11)
bf16r(8, 8)
exp_acc(9, 2, 10, 11)
bf16r(9, 9)
I("v_mul_f32 v9, v9, v8")
I("v_mul_f32 v12, s20, v9")
I("v_sub_f32 v12, 0, v12")
I("v_mul_f32 v3, v3, v8")
I("v_mul_f32 v13, s23, v3")
I("v_fma_f32 v14, v3, s23, -v13")
I("v_fma_f32 v14, v3, s24, v14")
I("v_rndne_f32 v10, v13")
I("v_sub_f32 v10, v13, v10")
I("v_and_b32 v13, 0xffffff00, v10")
I("v_sub_f32 v10, v10, v13")
I("v_add_f32 v14, v10, v14")
I("v_mul_f32 v15, v4, v8")
I("v_add_f32 v15, v15, v15")
I("v_mul_f32 v16, v5, v8")
I("v_add_f32 v16, v16, v16")
MARK(1)
WREG = 8704
LOO = 4352
I("v_and_b32 v2, 15, v0")
I("v_bfe_u32 v3, v0, 4, 2")
I("v_lshrrev_b32 v6, 6, v0")
I(f"v_mul_u32_u24 v6, {WREG}, v6")
I("v_and_b32 v4, 63, v0")
I("v_lshl_add_u32 v4, v4, 2, v6")
I("v_mul_u32_u24 v5, 272, v2")
I("v_lshl_add_u32 v5, v3, 4, v5")
I("v_add_u32 v5, v5, v6")


def interleave(chains):
    chains = [list(c) for c in chains]
    while any(chains):
        for c in chains:
            if c:
                I(c.pop(0))


def cexp_ops(p, d, t):
    return [f"v_mul_f32 v{t}, {p}, v12",
            f"v_mul_f32 v{t+1}, {p}, v13",
            f"v_exp_f32 v{t}, v{t}",
            f"v_fract_f32 v{t+1}, v{t+1}",
            f"v_mov_b32 v{d}, {p}",
            f"v_fma_f32 v{t+1}, v{d}, v14, v{t+1}",
            f"v_cos_f32 v{d}, v{t+1}",
            f"v_sin_f32 v{d+1}, v{t+1}",
            "s_nop 0",
            f"v_mul_f32 v{d}, v{d}, v{t}",
            f"v_mul_f32 v{d+1}, v{d+1}, v{t}"]


def cmul_ops(d, a, b):
    return [f"v_mul_f32 v{d}, v{a}, v{b}",
            f"v_mul_f32 v{d+1}, v{a}, v{b+1}",
            f"v_fma_f32 v{d}, -v{a+1}, v{b+1}, v{d}",
            f"v_fma_f32 v{d+1}, v{a+1}, v{b}, v{d+1}"]


def split_ops(v, row, t, neg=False):
    n = "-" if neg else ""
    return [f"v_cvt_pk_bf16_f32 v{t}, v{v}, {n}v{v+1}",
            f"v_lshlrev_b32 v{t+1}, 16, v{t}",
            f"v_and_b32 v{t+2}, 0xffff0000, v{t}",
            f"v_sub_f32 v{t+1}, v{v}, v{t+1}",
            f"v_sub_f32 v{t+2}, {n}v{v+1}, v{t+2}",
            f"ds_write_b32 v4, v{t} offset:{row*272}",
            f"v_cvt_pk_bf16_f32 v{t+1}, v{t+1}, v{t+2}",
            f"ds_write_b32 v4, v{t+1} offset:{LOO + row*272}"]


ZQ = lambda q: 20 + 2 * q
EJ = lambda j: 40 + 2 * j
Z128 = 18
BH, BL = 72, 88
AF = 40
ACC = 124
GT = [104, 106, 108, 110]
ST = [112, 115, 118, 121]
interleave([cexp_ops("1.0", ZQ(1), 104), cexp_ops("0x41000000", EJ(1), 106), cexp_ops("0x43000000", Z128, 108)])
I("v_mov_b32 v40, 1.0")
I("v_mov_b32 v41, 0")
interleave([cmul_ops(EJ(2), EJ(1), EJ(1)), cmul_ops(ZQ(2), ZQ(1), ZQ(1)), split_ops(40, 0, ST[0], True), split_ops(EJ(1), 1, ST[1], True)])
interleave([cmul_ops(EJ(3), EJ(2), EJ(1)), cmul_ops(EJ(4), EJ(2), EJ(2)), cmul_ops(ZQ(3), ZQ(2), ZQ(1)), cmul_ops(ZQ(4), ZQ(2), ZQ(2)), split_ops(EJ(2), 2, ST[0], True)])
interleave([cmul_ops(EJ(5), EJ(4), EJ(1)), cmul_ops(EJ(6), EJ(3), EJ(3)), cmul_ops(EJ(7), EJ(4), EJ(3)), cmul_ops(EJ(8), EJ(4), EJ(4)),
            split_ops(EJ(3), 3, ST[0], True), split_ops(EJ(4), 4, ST[1], True)])
interleave([cmul_ops(ZQ(5), ZQ(4), ZQ(1)), cmul_ops(ZQ(6), ZQ(3), ZQ(3)), cmul_ops(ZQ(7), ZQ(4), ZQ(3)),
            cmul_ops(EJ(9), EJ(8), EJ(1)), cmul_ops(EJ(10), EJ(8), EJ(2)), cmul_ops(EJ(11), EJ(8), EJ(3)),
            split_ops(EJ(5), 5, ST[0], True), split_ops(EJ(6), 6, ST[1], True)])
interleave([cmul_ops(EJ(12), EJ(8), EJ(4)), cmul_ops(EJ(13), EJ(8), EJ(5)), cmul_ops(EJ(14), EJ(8), EJ(6)), cmul_ops(EJ(15), EJ(8), EJ(7)),
            split_ops(EJ(7), 7, ST[0], True), split_ops(EJ(8), 8, ST[1], True), split_ops(EJ(9), 9, ST[2], True), split_ops(EJ(10), 10, ST[3], True)])
interleave([split_ops(EJ(11 + k), 11 + k, ST[k], True) for k in range(4)])
interleave([split_ops(EJ(15), 15, ST[0], True), cmul_ops(38, 15, Z128)])
I("v_mov_b32 v36, v15")
I("v_mov_b32 v37, v16")
I("s_waitcnt lgkmcnt(0)")
for sidx in range(4):
    I(f"ds_read_b128 v[{BH+4*sidx}:{BH+4*sidx+3}], v5 offset:{64*sidx}")
    I(f"ds_read_b128 v[{BL+4*sidx}:{BL+4*sidx+3}], v5 offset:{LOO+64*sidx}")
CR_ = [36, 38, 6, 8, 10]
CK = lambda k: CR_[k % 5]


def rowval(k, q, row, gi):
    if q == 0:
        return split_ops(CK(k), row, ST[gi])
    return cmul_ops(GT[gi], CK(k), ZQ(q)) + split_ops(GT[gi], row, ST[gi])


def tile_mfma(t):
    I("s_waitcnt lgkmcnt(0)")
    for sidx in range(4):
        I(f"ds_read_b128 v[{AF+4*sidx}:{AF+4*sidx+3}], v5 offset:{64*sidx}")
        I(f"ds_read_b128 v[{AF+16+4*sidx}:{AF+16+4*sidx+3}], v5 offset:{LOO+64*sidx}")
    acc = ACC + 4 * t
    out = []
    for sidx in range(4):
        ah, al = AF + 4 * sidx, AF + 16 + 4 * sidx
        bh, bl = BH + 4 * sidx, BL + 4 * sidx
        for (x, y) in ((ah, bh), (al, bh), (ah, bl)):
            src = "0" if (sidx == 0 and (x, y) == (ah, bh)) else f"v[{acc}:{acc+3}]"
            out.append(f"v_mfma_f32_16x16x32_bf16 v[{acc}:{acc+3}], v[{x}:{x+3}], v[{y}:{y+3}], {src}")
    return out


def run_rows(rows_, extra):
    for g in range(0, len(rows_), 4):
        ch = [rowval(k, q, row, gi) for gi, (k, q, row) in enumerate(rows_[g:g + 4])]
        if extra:
            ch.append(extra.pop(0))
        interleave(ch)
    for e in extra:
        interleave([e])


run_rows([(kap, q, q + 8 * kap) for kap in (0, 1) for q in range(8)],
         [cmul_ops(CK(k), CK(k - 1), Z128) for k in (2, 3, 4)])
mf = tile_mfma(0)
I("s_waitcnt lgkmcnt(0)")
r1 = [(2 + kp, q, q // 2 + 4 * kp) for kp in (0, 1) for q in (0, 2, 4, 6)]
r1b = [(4 + kp, q, 8 + q // 4 + 2 * kp) for kp in range(4) for q in (0, 4)]
interleave([mf[:6]] + [rowval(k, q, row, gi) for gi, (k, q, row) in enumerate(r1[:4])])
interleave([mf[6:]] + [rowval(k, q, row, gi) for gi, (k, q, row) in enumerate(r1[4:])] + [cmul_ops(CK(5), CK(4), Z128)])
interleave([rowval(k, q, row, gi) for gi, (k, q, row) in enumerate(r1b[:4])] + [cmul_ops(CK(6), CK(5), Z128) + cmul_ops(CK(7), CK(6), Z128)])
interleave([rowval(k, q, row, gi) for gi, (k, q, row) in enumerate(r1b[4:])] + [cmul_ops(CK(8), CK(7), Z128)])
mf = tile_mfma(1)
I("s_waitcnt lgkmcnt(0)")
chain = []
for r in range(9):
    k = 8 + r
    chain.append(split_ops(CK(k), r, ST[r % 4]) )
seq = []
for r in range(9):
    k = 8 + r
    grp = [split_ops(CK(k), r, ST[r % 4])]
    if k < 16:
        grp.append(cmul_ops(CK(k + 1), CK(k), Z128))
    if r < 6:
        grp.append(mf[2 * r:2 * r + 2])
    interleave(grp)
mf = tile_mfma(2)
I("s_waitcnt lgkmcnt(0)")
for m in mf:
    I(m)
MARK(2)
I("s_nop 7")
I("s_nop 1")
I("v_lshrrev_b32 v19, 6, v0")
I(f"v_mul_u32_u24 v19, {WREG}, v19")
I("v_lshl_add_u32 v19, v3, 8, v19")
I("v_lshl_add_u32 v19, v2, 2, v19")
for t in range(3):
    for r in range(4):
        I(f"ds_write_b32 v19, v{ACC+4*t+r} offset:{t*1024 + r*64}")
I("s_waitcnt lgkmcnt(0)")
I("s_barrier")
MARK(3)
I("v_mov_b32 v60, 0x80")
for g in range(2):
    es = [4 * g + k for k in range(4)]
    A, B, C_, D_, F_ = 10, 14, 48, 52, 56
    def col(fmt):
        for k, e in enumerate(es):
            I(fmt.format(a=A + k, b=B + k, c=C_ + k, d=D_ + k, f=F_ + k, e=e, o=2 + e))
    col("v_lshl_add_u32 v{a}, v0, 3, {e}")
    col("v_cvt_f32_u32 v{a}, v{a}")
    col("v_cvt_pk_bf16_f32 v{a}, v{a}, v{a}")
    col("v_bfe_u32 v{b}, v{a}, 7, 8")
    col("v_lshlrev_b32 v{a}, 16, v{a}")
    col("v_subrev_u32 v{b}, 134, v{b}")
    col("v_cvt_u32_f32 v{a}, v{a}")
    col("v_med3_i32 v{b}, v{b}, 0, 3")
    col("v_lshlrev_b32 v{c}, v{b}, v60")
    col("v_sub_u32 v{f}, 3, v{b}")
    col("v_and_b32 v{c}, 0xffffff00, v{c}")
    col("v_sub_u32 v{a}, v{a}, v{c}")
    col("v_and_b32 v{c}, 7, v{a}")
    col("v_lshrrev_b32 v{d}, 7, v{a}")
    col("v_lshrrev_b32 v{c}, v{b}, v{c}")
    col("v_lshlrev_b32 v{d}, v{f}, v{d}")
    col("v_bfe_u32 v{a}, v{a}, 3, 4")
    col("v_add_u32 v{c}, v{c}, v{d}")
    col("v_min_u32 v{d}, 1, v{b}")
    col("v_lshl_add_u32 v{c}, v{c}, 4, v{a}")
    col("v_add_u32 v{d}, v{d}, v{b}")
    col("v_lshl_add_u32 v{c}, v{d}, 7, v{c}")
    col("v_lshlrev_b32 v{o}, 2, v{c}")
for e in range(8):
    for w in range(4):
        I(f"ds_read_b32 v{16 + 4*e + w}, v{2+e} offset:{w*8704}")
    if e == 3:
        I("s_waitcnt lgkmcnt(0)")
I("s_waitcnt lgkmcnt(0)")
for e in range(8):
    b = 16 + 4 * e
    I(f"v_add_f32 v{b}, v{b}, v{b+1}")
    I(f"v_add_f32 v{b+2}, v{b+2}, v{b+3}")
    I(f"v_add_f32 v{b}, v{b}, v{b+2}")
for j in range(4):
    ka, kb = 16 + 4 * (7 - 2 * j), 16 + 4 * (6 - 2 * j)
    I(f"v_cvt_pk_bf16_f32 v{48+j}, v{ka}, v{kb}")
    I(f"v_lshlrev_b32 v10, 16, v{48+j}")
    I(f"v_and_b32 v11, 0xffff0000, v{48+j}")
    I(f"v_sub_f32 v10, v{ka}, v10")
    I(f"v_sub_f32 v11, v{kb}, v11")
    I(f"v_cvt_pk_bf16_f32 v{52+j}, v10, v11")
MARK(4)
I(f"s_mul_i32 s16, s2, {KR_STRIDE}")
I(f"s_add_u32 s16, s16, {WS_KR}")
I("s_add_u32 s14, s14, s16")
I("s_addc_u32 s15, s15, 0")
I("v_lshlrev_b32 v10, 4, v0")
I("v_sub_u32 v10, 4080, v10")
I("v_add_u32 v11, 4608, v10")
I("global_store_dwordx4 v10, v[48:51], s[14:15]")
I("global_store_dwordx4 v11, v[52:55], s[14:15]")
I("v_cmp_gt_u32 vcc, 64, v0")
I("s_and_saveexec_b64 s[18:19], vcc")
I("s_cbranch_execz P_done")
I("v_and_b32 v10, 31, v0")
I("v_lshlrev_b32 v10, 4, v10")
I("v_lshrrev_b32 v11, 5, v0")
I("v_mul_u32_u24 v11, 4608, v11")
I("v_add3_u32 v10, v10, v11, 0")
I("v_add_u32 v10, 4096, v10")
for r in range(12, 16):
    I(f"v_mov_b32 v{r}, 0")
I("global_store_dwordx4 v10, v[12:15], s[14:15]")
I("s_endpgm")

L("P_ln")
I("s_setprio 3")
I("s_load_dwordx2 s[4:5], s[0:1], 0")
I("s_load_dwordx2 s[14:15], s[0:1], 96")
I(f"s_sub_u32 s3, s2, {N_K}")
I("v_lshrrev_b32 v1, 6, v0")
I("v_and_b32 v2, 63, v0")
I("s_lshl_b32 s6, s3, 4")
I("v_lshl_add_u32 v3, v1, 2, s6")
I("v_mul_u32_u24 v3, 896, v3")
I("v_lshl_add_u32 v3, v2, 4, v3")
I("s_mul_i32 s7, s3, 14336")
I("v_lshrrev_b32 v28, 2, v2")
I("v_lshlrev_b32 v28, 10, v28")
I("v_and_b32 v29, 3, v2")
I("v_lshl_add_u32 v28, v29, 8, v28")
I("v_lshl_add_u32 v28, v1, 6, v28")
I("v_add_u32 v28, s7, v28")
I("s_mov_b32 s20, 0x3b124925")
I("s_mov_b32 s21, 0x43e00000")
I("s_mov_b32 s22, 0x3727c5ac")
for r in range(8, 24):
    I(f"v_mov_b32 v{r}, 0")
I("s_mov_b64 s[16:17], exec")
I("s_mov_b32 s18, -1")
I("s_mov_b32 s19, 0x00ffffff")
I("s_waitcnt lgkmcnt(0)")
I("s_mov_b64 exec, s[18:19]")
for k in range(4):
    I(f"global_load_dwordx4 v[{8+4*k}:{11+4*k}], v3, s[4:5] offset:{896*k}")
I("s_mov_b64 exec, s[16:17]")
I("s_waitcnt vmcnt(0)")
MARK(0)
for k in range(4):
    for j in range(4):
        I(f"v_lshlrev_b32 v{32+8*k+2*j}, 16, v{8+4*k+j}")
        I(f"v_and_b32 v{33+8*k+2*j}, 0xffff0000, v{8+4*k+j}")
def rows(fmt, **kw):
    for k in range(4):
        b = 32 + 8 * k
        I(fmt.format(k=k, s=8 + k, t=12 + k, m=16 + k, u=20 + k, w=64 + k, x=68 + k, sg=24 + k,
                     b0=b, b1=b + 1, b2=b + 2, b3=b + 3, b4=b + 4, b5=b + 5, b6=b + 6, b7=b + 7, **kw))


def dpp4():
    for sh in (1, 2, 4, 8):
        rows("v_add_f32_dpp v{s}, v{s}, v{s} row_shr:%d row_mask:0xf bank_mask:0xf bound_ctrl:0" % sh)
    rows("v_add_f32_dpp v{s}, v{s}, v{s} row_bcast:15 row_mask:0xa bank_mask:0xf")
    rows("v_add_f32_dpp v{s}, v{s}, v{s} row_bcast:31 row_mask:0xc bank_mask:0xf")
    rows("v_readlane_b32 s{sg}, v{s}, 63")


rows("v_add_f32 v{s}, v{b0}, v{b1}")
rows("v_add_f32 v{t}, v{b2}, v{b3}")
rows("v_add_f32 v{m}, v{b4}, v{b5}")
rows("v_add_f32 v{u}, v{b6}, v{b7}")
rows("v_add_f32 v{s}, v{s}, v{t}")
rows("v_add_f32 v{m}, v{m}, v{u}")
rows("v_add_f32 v{s}, v{s}, v{m}")
dpp4()
rows("v_mov_b32 v{t}, s{sg}")
rows("v_mul_f32 v{m}, s20, v{t}")
rows("v_fma_f32 v{u}, -v{m}, s21, v{t}")
rows("v_fma_f32 v{m}, v{u}, s20, v{m}")
rows("v_mov_b32 v{s}, 0")
I("s_mov_b64 exec, s[18:19]")
for j in range(8):
    rows("v_sub_f32 v{t}, v{bj}, v{m}".replace("{bj}", "{b%d}" % j))
    rows("v_fmac_f32 v{s}, v{t}, v{t}")
I("s_mov_b64 exec, s[16:17]")
I("s_nop 1")
dpp4()
rows("v_mov_b32 v{t}, s{sg}")
rows("v_mul_f32 v{u}, s20, v{t}")
rows("v_fma_f32 v{w}, -v{u}, s21, v{t}")
rows("v_fma_f32 v{u}, v{w}, s20, v{u}")
rows("v_cvt_pk_bf16_f32 v{u}, v{u}, v{u}")
rows("v_cvt_pk_bf16_f32 v{m}, v{m}, v{m}")
rows("v_lshlrev_b32 v{u}, 16, v{u}")
rows("v_lshlrev_b32 v{m}, 16, v{m}")
rows("v_add_f32 v{u}, s22, v{u}")
rows("v_cvt_pk_bf16_f32 v{u}, v{u}, v{u}")
rows("v_lshlrev_b32 v{u}, 16, v{u}")
rows("v_sqrt_f32 v{w}, v{u}")
for j in range(8):
    rows("v_sub_f32 v{bj}, v{bj}, v{m}".replace("{bj}", "{b%d}" % j))
rows("v_rcp_f32 v{x}, v{w}")
rows("v_fma_f32 v{t}, -v{w}, v{w}, v{u}")
rows("v_mul_f32 v{x}, 0.5, v{x}")
rows("v_fma_f32 v{w}, v{t}, v{x}, v{w}")
rows("v_cvt_pk_bf16_f32 v{w}, v{w}, v{w}")
rows("v_lshlrev_b32 v{w}, 16, v{w}")
rows("v_rcp_f32 v{x}, v{w}")
for j in range(0, 8, 2):
    rows("v_cvt_pk_bf16_f32 v{t}, v{bj}, v{bk}".replace("{bj}", "{b%d}" % j).replace("{bk}", "{b%d}" % (j + 1)))
    rows("v_lshlrev_b32 v{bj}, 16, v{t}".replace("{bj}", "{b%d}" % j))
    rows("v_and_b32 v{bk}, 0xffff0000, v{t}".replace("{bk}", "{b%d}" % (j + 1)))
rows("v_fma_f32 v{t}, -v{w}, v{x}, 1.0")
rows("v_fma_f32 v{x}, v{t}, v{x}, v{x}")
for j in range(8):
    rows("v_mul_f32 v{t}, v{bj}, v{x}".replace("{bj}", "{b%d}" % j))
    rows("v_fma_f32 v{u}, -v{t}, v{w}, v{bj}".replace("{bj}", "{b%d}" % j))
    rows("v_fma_f32 v{bj}, v{u}, v{x}, v{t}".replace("{bj}", "{b%d}" % j))
for j in range(4):
    for k in range(4):
        b = 32 + 8 * k
        I(f"v_cvt_pk_bf16_f32 v{8+4*k+j}, v{b+2*j}, v{b+2*j+1}")
I("v_lshlrev_b32 v30, 2, v1")
I("v_mul_u32_u24 v30, 896, v30")
I("v_lshl_add_u32 v30, v2, 4, v30")
I("s_mov_b64 exec, s[18:19]")
for k in range(4):
    I(f"global_store_dwordx4 v28, v[{8+4*k}:{11+4*k}], s[14:15] offset:{16*k}")
    I(f"ds_write_b128 v30, v[{8+4*k}:{11+4*k}] offset:{896*k}")
I("s_mov_b64 exec, s[16:17]")
MARK(1)
I("s_waitcnt lgkmcnt(0)")
I("s_barrier")
MARK(2)
I(f"s_add_u32 s14, s14, {WS_XNT}")
I("s_addc_u32 s15, s15, 0")
I("s_lshl_b32 s6, s3, 5")
I("s_add_u32 s6, s6, 32")
for p in range(2):
    if p == 1:
        I("v_cmp_gt_u32 vcc, 192, v0")
        I("s_and_saveexec_b64 s[16:17], vcc")
        I("s_cbranch_execz P_done")
    I(f"v_add_u32 v4, {256*p}, v0")
    I("v_lshlrev_b32 v5, 1, v4")
    for t in range(16):
        I(f"ds_read_u16 v{24 + t}, v5 offset:{896*t}")
        if t == 7:
            I("s_waitcnt lgkmcnt(0)")
    I(f"v_mul_u32_u24 v6, {XNT_STRIDE}, v4")
    I("v_add_u32 v7, s6, v6")
    I("s_waitcnt lgkmcnt(0)")
    for t in range(8):
        I(f"v_lshl_or_b32 v{8+t}, v{25+2*t}, 16, v{24+2*t}")
    I("global_store_dwordx4 v7, v[8:11], s[14:15]")
    I("global_store_dwordx4 v7, v[12:15], s[14:15] offset:16")
    I("s_cmp_lg_u32 s3, 0")
    I(f"s_cbranch_scc1 P_ln_nz{p}")
    for r in range(16, 20):
        I(f"v_mov_b32 v{r}, 0")
    I("global_store_dwordx4 v6, v[16:19], s[14:15]")
    I("global_store_dwordx4 v6, v[16:19], s[14:15] offset:16")
    L(f"P_ln_nz{p}")
I("s_endpgm")

L("P_wt")
I("s_setprio 2")
I(f"s_sub_u32 s3, s2, {N_K+N_LN}")
I("s_load_dwordx4 s[4:7], s[0:1], 64")
I("s_load_dwordx2 s[14:15], s[0:1], 96")
I("s_waitcnt lgkmcnt(0)")
I("s_cmp_ge_u32 s3, 196")
I("s_cbranch_scc1 P_wt2")
I("s_mul_i32 s8, s3, 9363")
I("s_lshr_b32 s8, s8, 16")
I("s_mul_i32 s9, s8, 7")
I("s_sub_u32 s9, s3, s9")
I("s_mov_b32 s10, 3584")
I("s_mov_b32 s11, 896")
I(f"s_add_u32 s14, s14, {WS_W1T}")
I("s_addc_u32 s15, s15, 0")
I("s_branch P_wt_go")
L("P_wt2")
I("s_sub_u32 s3, s3, 196")
I("s_mul_i32 s8, s3, 2341")
I("s_lshr_b32 s8, s8, 16")
I("s_mul_i32 s9, s8, 28")
I("s_sub_u32 s9, s3, s9")
I("s_mov_b32 s10, 896")
I("s_mov_b32 s11, 3584")
I("s_mov_b32 s4, s6")
I("s_mov_b32 s5, s7")
I(f"s_add_u32 s14, s14, {WS_W2T}")
I("s_addc_u32 s15, s15, 0")
L("P_wt_go")
I("s_lshl_b32 s12, s9, 6")
I("s_lshl_b32 s13, s8, 6")
I("v_lshrrev_b32 v1, 3, v0")
I("v_and_b32 v2, 7, v0")
I("v_add_u32 v3, s12, v1")
I("v_mul_lo_u32 v3, v3, s10")
I("s_lshl_b32 s16, s13, 1")
I("v_lshl_add_u32 v4, v2, 4, s16")
I("v_add_u32 v3, v3, v4")
I("s_lshl_b32 s17, s10, 5")
I("v_add_u32 v4, s17, v3")
I("global_load_dwordx4 v[8:11], v3, s[4:5]")
I("global_load_dwordx4 v[12:15], v4, s[4:5]")
I("v_lshlrev_b32 v5, 7, v1")
I("v_lshl_add_u32 v5, v2, 4, v5")
I("s_waitcnt vmcnt(0)")
I("ds_write_b128 v5, v[8:11]")
I("ds_write_b128 v5, v[12:15] offset:4096")
I("s_waitcnt lgkmcnt(0)")
I("s_barrier")
I("v_and_b32 v1, 63, v0")
I("v_lshrrev_b32 v2, 6, v0")
I("v_lshlrev_b32 v5, 10, v2")
I("v_lshl_add_u32 v5, v1, 1, v5")
for c in range(2):
    for e in range(8):
        I(f"ds_read_u16 v{24 + 8*c + e}, v5 offset:{4096*c + 128*e}")
    if c == 0:
        I("s_waitcnt lgkmcnt(0)")
I("v_bfe_u32 v3, v1, 2, 2")
I("v_lshrrev_b32 v4, 4, v1")
I("v_and_b32 v6, 3, v1")
I("v_lshl_add_u32 v6, v4, 2, v6")
I("v_and_b32 v7, 15, v1")
I("s_cmp_eq_u32 s11, 896")
I("s_cselect_b64 vcc, -1, 0")
I("v_cndmask_b32 v3, v4, v3, vcc")
I("v_cndmask_b32 v6, v7, v6, vcc")
I("s_lshr_b32 s16, s13, 4")
I("v_add_u32 v3, s16, v3")
I("s_lshl_b32 s17, s11, 4")
I("v_mul_lo_u32 v3, v3, s17")
I("s_lshl_b32 s16, s12, 5")
I("v_add_u32 v3, s16, v3")
I("v_lshl_add_u32 v3, v2, 8, v3")
I("v_lshl_add_u32 v3, v6, 4, v3")
I("s_waitcnt lgkmcnt(0)")
for t in range(8):
    I(f"v_lshl_or_b32 v{8+t}, v{25+2*t}, 16, v{24+2*t}")
I("global_store_dwordx4 v3, v[8:11], s[14:15]")
I("global_store_dwordx4 v3, v[12:15], s[14:15] offset:1024")
L("P_done")
I("s_endpgm")


def gemm_core(sa, sb, va, vb, acc0, buf0, ring=5, late=None, nlate=0):
    NS = 14
    PF = ring - 1

    def loads(s):
        bb = buf0 + 32 * (s % ring)
        off = (s & 3) * 1024
        if s and (s & 3) == 0:
            I(f"s_add_u32 s{sa}, s{sa}, 4096")
            I(f"s_addc_u32 s{sa+1}, s{sa+1}, 0")
            I(f"s_add_u32 s{sb}, s{sb}, 4096")
            I(f"s_addc_u32 s{sb+1}, s{sb+1}, 0")
        for j in range(4):
            I(f"global_load_dwordx4 v[{bb+4*j}:{bb+4*j+3}], v{va+j}, s[{sa}:{sa+1}] offset:{off}")
        for j in range(4):
            I(f"global_load_dwordx4 v[{bb+16+4*j}:{bb+16+4*j+3}], v{vb+j}, s[{sb}:{sb+1}] offset:{off}")

    for s in range(PF):
        loads(s)
    for s in range(NS):
        if s + PF < NS:
            loads(s + PF)
            if s + PF == NS - 1 and late is not None:
                late()
                I(f"s_waitcnt vmcnt({8*PF + nlate})")
            else:
                I(f"s_waitcnt vmcnt({8*PF})")
        else:
            I(f"s_waitcnt vmcnt({8*(NS-1-s) + nlate})")
        if s in (0, 4, 9):
            MARK({0: 0, 4: 1, 9: 2}[s])
        bb = buf0 + 32 * (s % ring)
        for a in range(4):
            for b in range(4):
                c = acc0 + 16 * a + 4 * b
                src = "0" if s == 0 else f"v[{c}:{c+3}]"
                I(f"v_mfma_f32_16x16x32_bf16 v[{c}:{c+3}], v[{bb+4*a}:{bb+4*a+3}], v[{bb+16+4*b}:{bb+16+4*b+3}], {src}")


kstart("mid_kernel")
I(f"s_cmp_ge_u32 s2, {L1_GRID}")
I("s_cbranch_scc1 M_done")
I("s_load_dwordx2 s[14:15], s[0:1], 96")
I("v_and_b32 v1, 15, v0")
I("v_bfe_u32 v2, v0, 4, 2")
I("v_lshrrev_b32 v3, 6, v0")
I(f"s_cmp_ge_u32 s2, {N_CONV}")
I("s_cbranch_scc1 M_gemm")

I(f"s_mul_i32 s4, s2, {2*KR_STRIDE}")
I(f"s_add_u32 s4, s4, {WS_KR}")
I(f"s_mul_i32 s6, s2, {2*XNT_STRIDE}")
I(f"s_add_u32 s6, s6, {WS_XNT}")
I("s_waitcnt lgkmcnt(0)")
I("s_add_u32 s4, s14, s4")
I("s_addc_u32 s5, s15, 0")
I("s_add_u32 s6, s14, s6")
I("s_addc_u32 s7, s15, 0")
I("v_lshlrev_b32 v4, 4, v0")
I("v_add_u32 v5, 0x1000, v4")
I("v_add_u32 v6, 0x2000, v4")
I("v_add_u32 v7, 0x3000, v4")
I("v_add_u32 v8, 0x4000, v4")
I("global_load_dwordx4 v[16:19], v4, s[4:5]")
I("global_load_dwordx4 v[20:23], v5, s[4:5]")
I("global_load_dwordx4 v[24:27], v6, s[4:5]")
I("global_load_dwordx4 v[28:31], v7, s[4:5]")
I(f"v_add_u32 v9, {XNT_STRIDE}, v4")
I("global_load_dwordx4 v[36:39], v4, s[6:7]")
I("global_load_dwordx4 v[40:43], v4, s[6:7] offset:2")
I("global_load_dwordx4 v[44:47], v9, s[6:7]")
I("global_load_dwordx4 v[48:51], v9, s[6:7] offset:2")
I("s_mov_b64 s[16:17], exec")
I("v_cmp_gt_u32 vcc, 128, v0")
I("s_and_saveexec_b64 s[18:19], vcc")
I("global_load_dwordx4 v[32:35], v8, s[4:5]")
I("s_mov_b64 exec, s[16:17]")
I("v_cmp_gt_u32 vcc, 3, v0")
I("s_and_saveexec_b64 s[18:19], vcc")
I("v_add_u32 v10, 0x1000, v9")
I("global_load_dwordx4 v[52:55], v5, s[6:7]")
I("global_load_dwordx4 v[56:59], v5, s[6:7] offset:2")
I("global_load_dwordx4 v[60:63], v10, s[6:7]")
I("global_load_dwordx4 v[64:67], v10, s[6:7] offset:2")
I("s_mov_b64 exec, s[16:17]")
I("s_waitcnt vmcnt(0)")
UB = 2 * KR_STRIDE
I("ds_write_b128 v4, v[16:19]")
I("ds_write_b128 v5, v[20:23]")
I("ds_write_b128 v6, v[24:27]")
I("ds_write_b128 v7, v[28:31]")
I(f"ds_write_b128 v4, v[36:39] offset:{UB}")
I(f"ds_write_b128 v4, v[40:43] offset:{UB+XNT_STRIDE}")
I(f"ds_write_b128 v4, v[44:47] offset:{UB+2*XNT_STRIDE}")
I(f"ds_write_b128 v4, v[48:51] offset:{UB+3*XNT_STRIDE}")
I("v_cmp_gt_u32 vcc, 128, v0")
I("s_and_saveexec_b64 s[18:19], vcc")
I("ds_write_b128 v8, v[32:35]")
I("s_mov_b64 exec, s[16:17]")
I("v_cmp_gt_u32 vcc, 3, v0")
I("s_and_saveexec_b64 s[18:19], vcc")
I(f"ds_write_b128 v5, v[52:55] offset:{UB}")
I(f"ds_write_b128 v5, v[56:59] offset:{UB+XNT_STRIDE}")
I(f"ds_write_b128 v5, v[60:63] offset:{UB+2*XNT_STRIDE}")
I(f"ds_write_b128 v5, v[64:67] offset:{UB+3*XNT_STRIDE}")
I("s_mov_b64 exec, s[16:17]")
I("s_waitcnt lgkmcnt(0)")
I("s_barrier")
I("v_lshrrev_b32 v4, 1, v3")
I("v_lshl_add_u32 v5, v2, 3, v1")
I("v_add_u32 v5, 1, v5")
I("v_and_b32 v7, 1, v5")
I("v_sub_u32 v5, v5, v7")
I("v_lshlrev_b32 v5, 1, v5")
I(f"v_mul_u32_u24 v7, {XNT_STRIDE}, v7")
I("v_add_u32 v5, v5, v7")
I(f"v_mul_u32_u24 v7, {2*XNT_STRIDE}, v4")
I("v_add_u32 v5, v5, v7")
I("v_and_b32 v7, 1, v3")
I("v_lshl_add_u32 v5, v7, 8, v5")
I(f"v_add_u32 v232, {UB}, v5")
for c in range(1, 8):
    I(f"v_add_u32 v{232+c}, {512*c}, v232")
I(f"v_mul_u32_u24 v6, {KR_STRIDE}, v4")
I("v_lshl_add_u32 v6, v2, 4, v6")
I("v_lshl_add_u32 v6, v7, 8, v6")
I("v_lshlrev_b32 v7, 5, v1")
I("v_sub_u32 v6, v6, v7")
I("v_add_u32 v6, 480, v6")
CA0 = 8
CBUF = 40


def creads(r):
    bb = CBUF + 96 * (r & 1)
    out = []
    for c in range(8):
        out.append(f"ds_read2_b32 v[{bb+4*c}:{bb+4*c+1}], v{232+c} offset0:{16*r} offset1:{16*r+1}")
        out.append(f"ds_read2_b32 v[{bb+4*c+2}:{bb+4*c+3}], v{232+c} offset0:{16*r+2} offset1:{16*r+3}")
    for n in range(8):
        o = 3584 - 512 * n + 64 * r
        out.append(f"ds_read_b128 v[{bb+32+8*n}:{bb+32+8*n+3}], v6 offset:{o}")
        out.append(f"ds_read_b128 v[{bb+36+8*n}:{bb+36+8*n+3}], v6 offset:{o+4608}")
    return out


for x in creads(0):
    I(x)
for r in range(4):
    I("s_waitcnt lgkmcnt(0)")
    nxt = creads(r + 1) if r < 3 else []
    bb = CBUF + 96 * (r & 1)
    mf = []
    for T in range(8):
        acc = CA0 + 4 * T
        for c in range(T + 1):
            n = T - c
            first = (r == 0 and c == 0)
            src = "0" if first else f"v[{acc}:{acc+3}]"
            mf.append(f"v_mfma_f32_16x16x32_bf16 v[{acc}:{acc+3}], v[{bb+4*c}:{bb+4*c+3}], v[{bb+32+8*n}:{bb+32+8*n+3}], {src}")
            mf.append(f"v_mfma_f32_16x16x32_bf16 v[{acc}:{acc+3}], v[{bb+4*c}:{bb+4*c+3}], v[{bb+36+8*n}:{bb+36+8*n+3}], v[{acc}:{acc+3}]")
    k = 0
    for idx, m in enumerate(mf):
        I(m)
        if k < len(nxt) and idx % 2 == 1:
            I(nxt[k]); k += 1
    while k < len(nxt):
        I(nxt[k]); k += 1
I("s_barrier")
I("v_and_b32 v5, 63, v0")
I("v_lshlrev_b32 v5, 4, v5")
I("v_lshl_add_u32 v6, v3, 12, v5")
I("v_xor_b32 v7, 1, v3")
I("v_lshl_add_u32 v5, v7, 12, v5")
I(f"s_lshl_b32 s10, s2, 13")
I(f"s_add_u32 s10, s10, {WS_YT}")
I("s_add_u32 s10, s14, s10")
I("s_addc_u32 s11, s15, 0")
I("v_lshlrev_b32 v7, 12, v4")
I("v_lshl_add_u32 v7, v1, 5, v7")
I("v_lshl_add_u32 v7, v2, 3, v7")
I("v_readfirstlane_b32 s8, v3")
I("s_and_b32 s9, s8, 1")
I("s_cmp_eq_u32 s9, 1")
I("s_cbranch_scc1 M_conv_b")
for h in range(2):
    if h:
        L("M_conv_b")
    keep = [4 * h + j for j in range(4)]
    give = [4 * (1 - h) + j for j in range(4)]
    for j, T in enumerate(give):
        I(f"ds_write_b128 v6, v[{CA0+4*T}:{CA0+4*T+3}] offset:{1024*j}")
    I("s_waitcnt lgkmcnt(0)")
    I("s_barrier")
    for j in range(4):
        I(f"ds_read_b128 v[{40+4*j}:{43+4*j}], v5 offset:{1024*j}")
    I("s_waitcnt lgkmcnt(0)")
    for j, T in enumerate(keep):
        acc = CA0 + 4 * T
        for r_ in range(4):
            I(f"v_add_f32 v{acc+r_}, v{acc+r_}, v{40+4*j+r_}")
        I(f"v_cvt_pk_bf16_f32 v{56+2*j}, v{acc}, v{acc+1}")
        I(f"v_cvt_pk_bf16_f32 v{57+2*j}, v{acc+2}, v{acc+3}")
        I(f"global_store_dwordx2 v7, v[{56+2*j}:{57+2*j}], s[10:11] offset:{512*T}")
    I("s_endpgm")

L("M_gemm")
I("s_setprio 3")
I(f"s_sub_u32 s3, s2, {N_CONV}")
I("s_and_b32 s10, s3, 7")
I("s_lshr_b32 s3, s3, 3")
I("s_mul_i32 s8, s3, 9363")
I("s_lshr_b32 s8, s8, 16")
I("s_mul_i32 s9, s8, 7")
I("s_sub_u32 s9, s3, s9")
I("s_and_b32 s11, s10, 1")
I("s_mul_i32 s11, s11, 7")
I("s_add_u32 s9, s9, s11")
I("s_lshr_b32 s10, s10, 1")
I("s_lshl_b32 s10, s10, 2")
I("s_add_u32 s8, s8, s10")
I("s_waitcnt lgkmcnt(0)")
I(f"s_add_u32 s4, s14, {WS_W1T}")
I("s_addc_u32 s5, s15, 0")
I(f"s_add_u32 s6, s14, {WS_XN}")
I("s_addc_u32 s7, s15, 0")
I("s_lshl_b32 s9, s9, 7")
I("s_lshl_b32 s8, s8, 7")
I("v_and_b32 v4, 1, v3")
I("v_lshl_add_u32 v4, v4, 6, s9")
I("v_lshrrev_b32 v5, 1, v3")
I("v_lshl_add_u32 v5, v5, 6, s8")
I("v_and_b32 v7, 63, v0")
I("v_lshlrev_b32 v7, 4, v7")
I("s_mul_i32 s10, s9, 896")
I("s_mul_i32 s11, s8, 896")
I("v_mul_u32_u24 v6, 28672, v3")
I("v_add_u32 v6, v6, v7")
I("v_add_u32 v8, s10, v6")
I("v_add_u32 v9, 14336, v8")
I("v_add_u32 v10, s11, v6")
I("v_add_u32 v11, 14336, v10")
I("v_readfirstlane_b32 s12, v3")
I("s_lshl_b32 s12, s12, 11")
I("v_and_b32 v12, 1, v3")
I("v_lshl_add_u32 v12, v12, 12, v7")
I("v_lshrrev_b32 v13, 1, v3")
I("v_lshl_add_u32 v13, v13, 12, v7")
I("v_add_u32 v13, 0x2000, v13")
G_ACC = 16
G_FR = 80


def g1_dma(st):
    slot = (st % 4) * 16384
    if st:
        I("s_add_u32 s4, s4, 1024")
        I("s_addc_u32 s5, s5, 0")
        I("s_add_u32 s6, s6, 1024")
        I("s_addc_u32 s7, s7, 0")
    for (va, sb, off) in ((8, 4, 0), (9, 4, 1024), (10, 6, 8192), (11, 6, 9216)):
        I(f"s_add_u32 m0, s12, {slot + off}")
        I("s_nop 0")
        I(f"global_load_lds_dwordx4 v{va}, s[{sb}:{sb+1}]")


def g1_reads(st):
    slot = (st % 4) * 16384
    fb = G_FR + 32 * (st & 1)
    for j in range(4):
        I(f"ds_read_b128 v[{fb+4*j}:{fb+4*j+3}], v12 offset:{slot + 1024*j}")
    for j in range(4):
        I(f"ds_read_b128 v[{fb+16+4*j}:{fb+16+4*j+3}], v13 offset:{slot + 1024*j}")


NS1 = 14
for st in range(4):
    g1_dma(st)
I("s_waitcnt vmcnt(12)")
I("s_barrier")
g1_reads(0)
for st in range(NS1):
    if st in (0, 4, 9):
        MARK({0: 0, 4: 1, 9: 2}[st])
    if st + 1 < NS1:
        newer = min(NS1 - 1, st + 3) - (st + 1)
        I(f"s_waitcnt vmcnt({4*newer}) lgkmcnt(0)")
        I("s_barrier")
        if st + 4 < NS1:
            g1_dma(st + 4)
        g1_reads(st + 1)
    else:
        I("s_waitcnt lgkmcnt(0)")
    fb = G_FR + 32 * (st & 1)
    for a_ in range(4):
        for b_ in range(4):
            c = G_ACC + 16 * a_ + 4 * b_
            src = "0" if st == 0 else f"v[{c}:{c+3}]"
            I(f"v_mfma_f32_16x16x32_bf16 v[{c}:{c+3}], v[{fb+4*a_}:{fb+4*a_+3}], v[{fb+16+4*b_}:{fb+16+4*b_+3}], {src}")
MARK(3)
I(f"s_add_u32 s4, s14, {WS_H}")
I("s_addc_u32 s5, s15, 0")
I("v_mul_u32_u24 v6, 3584, v5")
I("v_lshl_add_u32 v6, v4, 5, v6")
I("v_lshrrev_b32 v7, 1, v2")
I("v_lshl_add_u32 v6, v7, 10, v6")
I("v_and_b32 v7, 1, v2")
I("v_lshl_add_u32 v6, v7, 9, v6")
I("v_lshl_add_u32 v6, v1, 4, v6")
I("s_nop 4")
for b in range(4):
    for a in range(4):
        c = G_ACC + 16 * a + 4 * b
        for r in range(4):
            I(f"v_max_f32 v{c+r}, 0, v{c+r}")
        I(f"v_cvt_pk_bf16_f32 v{80+2*a}, v{c}, v{c+1}")
        I(f"v_cvt_pk_bf16_f32 v{81+2*a}, v{c+2}, v{c+3}")
    if b > 0:
        I(f"v_add_u32 v6, {57344}, v6")
    I("global_store_dwordx4 v6, v[80:83], s[4:5]")
    I("global_store_dwordx4 v6, v[84:87], s[4:5] offset:256")
    I("s_nop 1")
L("M_done")
I("s_endpgm")

kstart("fin_kernel")
I(f"s_cmp_ge_u32 s2, {L2_GRID}")
I("s_cbranch_scc1 F_done")
I("s_load_dwordx2 s[14:15], s[0:1], 96")
I("s_load_dwordx2 s[16:17], s[0:1], 0")
I("s_load_dwordx2 s[18:19], s[0:1], 48")
I("s_load_dwordx2 s[20:21], s[0:1], 80")
I("v_and_b32 v1, 15, v0")
I("v_bfe_u32 v2, v0, 4, 2")
I("v_lshrrev_b32 v3, 6, v0")
I("v_and_b32 v4, 63, v0")
I("s_and_b32 s10, s2, 7")
I("s_lshr_b32 s3, s2, 3")
I("s_mul_i32 s8, s3, 9363")
I("s_lshr_b32 s8, s8, 16")
I("s_mul_i32 s9, s8, 7")
I("s_sub_u32 s9, s3, s9")
I("s_lshl_b32 s10, s10, 2")
I("s_add_u32 s8, s8, s10")
I("s_lshl_b32 s9, s9, 6")
I("s_lshl_b32 s8, s8, 6")
I("s_waitcnt lgkmcnt(0)")
I(f"s_add_u32 s4, s14, {WS_W2T}")
I("s_addc_u32 s5, s15, 0")
I(f"s_add_u32 s6, s14, {WS_H}")
I("s_addc_u32 s7, s15, 0")
I(f"s_add_u32 s10, s14, {WS_YT}")
I("s_addc_u32 s11, s15, 0")
EX, EXN, EY, EDK = 232, 240, 216, 208


def fin_late():
    I("v_lshrrev_b32 v249, 2, v4")
    I("v_lshl_add_u32 v249, v3, 4, v249")
    I("v_add_u32 v250, s8, v249")
    I("v_and_b32 v251, 3, v4")
    I("v_mul_u32_u24 v5, 896, v250")
    I("s_lshl_b32 s12, s9, 1")
    I("v_lshl_add_u32 v6, v251, 5, s12")
    I("v_add_u32 v5, v5, v6")
    I(f"global_load_dwordx4 v[{EX}:{EX+3}], v5, s[16:17]")
    I(f"global_load_dwordx4 v[{EX+4}:{EX+7}], v5, s[16:17] offset:16")
    I("v_lshrrev_b32 v248, 4, v250")
    I("v_mul_u32_u24 v248, 14336, v248")
    I("v_and_b32 v7, 15, v250")
    I("v_lshl_add_u32 v248, v7, 4, v248")
    I("v_lshrrev_b32 v7, 6, v6")
    I("v_lshl_add_u32 v248, v7, 10, v248")
    I("v_bfe_u32 v7, v6, 4, 2")
    I("v_lshl_add_u32 v248, v7, 8, v248")
    I(f"global_load_dwordx4 v[{EXN}:{EXN+3}], v248, s[14:15]")
    I(f"global_load_dwordx4 v[{EXN+4}:{EXN+7}], v248, s[14:15] offset:256")
    I(f"global_load_dwordx4 v[{EDK}:{EDK+3}], v6, s[18:19]")
    I(f"global_load_dwordx4 v[{EDK+4}:{EDK+7}], v6, s[18:19] offset:16")
    I("v_lshlrev_b32 v7, 11, v6")
    I("v_lshl_add_u32 v7, v250, 1, v7")
    for dd in range(16):
        if dd:
            I("v_add_u32 v7, 0x1000, v7")
        I(f"global_load_ushort v{EY+dd}, v7, s[10:11]")


I("v_mul_u32_u24 v7, 14336, v3")
I("v_lshl_add_u32 v7, v4, 4, v7")
I("s_mul_i32 s12, s9, 3584")
I("v_add_u32 v8, s12, v7")
for j in range(1, 4):
    I(f"v_add_u32 v{8+j}, {57344*j}, v8")
I("s_mul_i32 s12, s8, 3584")
I("v_add_u32 v12, s12, v7")
for j in range(1, 4):
    I(f"v_add_u32 v{12+j}, {57344*j}, v12")
F_ACC = 16
F_BUF = 80
gemm_core(4, 6, 8, 12, F_ACC, F_BUF, ring=4, late=fin_late, nlate=22)
MARK(3)
I("v_lshl_add_u32 v6, v3, 6, v1")
I("v_mul_u32_u24 v6, 272, v6")
I("v_lshl_add_u32 v6, v2, 4, v6")
I("s_nop 4")
for a_ in range(4):
    for b_ in range(4):
        c = F_ACC + 16 * a_ + 4 * b_
        I(f"ds_write_b128 v6, v[{c}:{c+3}] offset:{16*b_*272 + 64*a_}")
I("s_waitcnt lgkmcnt(0)")
I("s_barrier")
I("v_mul_u32_u24 v6, 272, v249")
I("v_lshl_add_u32 v6, v251, 6, v6")
for p in range(4):
    for j in range(4):
        I(f"ds_read_b128 v[{80+16*p+4*j}:{83+16*p+4*j}], v6 offset:{p*64*272 + 16*j}")
MARK(4)
I("s_mov_b32 s22, 0xbfb8aa3b")
I("s_waitcnt vmcnt(0) lgkmcnt(0)")


def epi_ops(dd):
    o = 80 + dd
    t1, t2, t3 = 144 + dd, 160 + dd, 176 + dd
    h = dd & 1

    def unp(dst, reg):
        if h:
            return f"v_and_b32 v{dst}, 0xffff0000, v{reg + dd//2}"
        return f"v_lshlrev_b32 v{dst}, 16, v{reg + dd//2}"

    def bfr(r):
        return [f"v_cvt_pk_bf16_f32 v{r}, v{r}, v{r}", f"v_lshlrev_b32 v{r}, 16, v{r}"]
    ops = [f"v_add_f32 v{o}, v{o}, v{o+16}",
           f"v_add_f32 v{o+32}, v{o+32}, v{o+48}",
           unp(t2, EXN), unp(t3, EDK),
           f"v_add_f32 v{o}, v{o}, v{o+32}",
           f"v_mul_f32 v{t2}, v{t2}, v{t3}"] + bfr(o) + bfr(t2) + [
           f"v_mul_f32 v{t1}, s22, v{o}",
           f"v_lshlrev_b32 v{t3}, 16, v{EY+dd}",
           f"v_exp_f32 v{t1}, v{t1}",
           f"v_add_f32 v{t2}, v{t2}, v{t3}",
           f"v_add_f32 v{t1}, 1.0, v{t1}"] + bfr(t2) + [
           f"v_rcp_f32 v{t1}, v{t1}",
           unp(t3, EX),
           f"v_mul_f32 v{o}, v{o}, v{t1}"] + bfr(o) + [
           f"v_mul_f32 v{o}, v{o}, v{t2}"] + bfr(o) + [
           f"v_add_f32 v{o}, v{o}, v{t3}"]
    return ops


for g in range(0, 16, 4):
    interleave([epi_ops(dd) for dd in range(g, g + 4)])
for j in range(8):
    I(f"v_cvt_pk_bf16_f32 v{16+j}, v{80+2*j}, v{81+2*j}")
I("global_store_dwordx4 v5, v[16:19], s[20:21]")
I("global_store_dwordx4 v5, v[20:23], s[20:21] offset:16")
L("F_done")
I("s_endpgm")

E('.section .rodata,"a"')
for name, nv in (("prep_kernel", 136), ("mid_kernel", 256), ("fin_kernel", 256)):
    E(".p2align 6")
    E(f".amdhsa_kernel {name}")
    E(f"  .amdhsa_next_free_vgpr {nv}")
    E("  .amdhsa_next_free_sgpr 64")
    E(f"  .amdhsa_accum_offset {nv}")
    E("  .amdhsa_group_segment_fixed_size 0")
    E("  .amdhsa_kernarg_size 104")
    E("  .amdhsa_user_sgpr_count 2")
    E("  .amdhsa_user_sgpr_kernarg_segment_ptr 1")
    E("  .amdhsa_system_sgpr_workgroup_id_x 1")
    E("  .amdhsa_float_denorm_mode_32 3")
    E(".end_amdhsa_kernel")

open(OUT, "w").write("\n".join(l for l in lines if l is not None) + "\n")
print("wrote", OUT, len(lines), "lines")
```

```python
import sys, os

NAME = "recurrent_scan__ssm_conv_s4d__dense_activation_relu__prompt"
OUT = sys.argv[1] if len(sys.argv) > 1 else f"cdna_kernels/{NAME}.s"
STAMP = int(os.environ.get("STAMP", "0"))

WS_XN = 0x0000000
WS_XNT = 0x0200000
XNT_STRIDE = 4160
WS_W1T = 0x0400000
WS_W2T = 0x0600000
KR_STRIDE = 9216
WS_H = 0x1000000
WS_YT = 0x1800000
WS_FLG = 0x1C00000
LNF, W1F, W2F, HF, YF = 0, 1024, 2048, 3072, 4096

NA, NB = 224, 224
GRID = NA + NB
LDS = 70144

lines = []


def E(s=""):
    lines.append(s)


def I(s):
    if STAMP and s == "s_endpgm":
        for x in ("s_mov_b64 exec, -1",
                  "s_memrealtime s[34:35]", "s_memtime s[36:37]",
                  "s_waitcnt vmcnt(0) lgkmcnt(0)",
                  f"s_add_u32 s38, s64, {0x2000000}", "s_addc_u32 s39, s65, 0",
                  "s_lshl_b32 s2, s28, 2", "s_add_u32 s2, s2, s69", "s_lshl_b32 s2, s2, 5", "v_mov_b32 v1, s2",
                  "v_mov_b32 v4, s30", "v_mov_b32 v5, s31", "v_mov_b32 v6, s34", "v_mov_b32 v7, s35",
                  "v_mov_b32 v8, s32", "v_mov_b32 v9, s33", "v_mov_b32 v10, s36", "v_mov_b32 v11, s37",
                  "global_store_dwordx4 v1, v[4:7], s[38:39]", "global_store_dwordx4 v1, v[8:11], s[38:39] offset:16",
                  "v_mov_b32 v4, s40", "v_mov_b32 v5, s42", "v_mov_b32 v6, s44", "v_mov_b32 v7, s46",
                  "v_mov_b32 v8, s48", "v_mov_b32 v9, s50", "v_mov_b32 v10, s52", "v_mov_b32 v11, s54",
                  "v_add_u32 v1, 0x100000, v1",
                  "global_store_dwordx4 v1, v[4:7], s[38:39]", "global_store_dwordx4 v1, v[8:11], s[38:39] offset:16"):
            lines.append("    " + x)
    lines.append("    " + s)


def MARK(n):
    if STAMP:
        lines.append(f"    s_memtime s[{40+2*n}:{41+2*n}]")


def L(lbl):
    lines.append(lbl + ":")


_uid = [0]


def uid(p):
    _uid[0] += 1
    return f"{p}_{_uid[0]}"


def interleave(chains):
    chains = [list(c) for c in chains]
    while any(chains):
        for c in chains:
            if c:
                I(c.pop(0))


def bf16r(dst, src):
    I(f"v_cvt_pk_bf16_f32 v{dst}, v{src}, v{src}")
    I(f"v_lshlrev_b32 v{dst}, 16, v{dst}")


def get_nonce():
    a, b = uid("N_poll"), uid("N_ok")
    I("s_cmp_lg_u32 s68, 0")
    I(f"s_cbranch_scc1 {b}")
    I("v_mov_b32 v253, 0")
    L(a)
    I("global_load_dword v254, v253, s[66:67] sc1")
    I("s_waitcnt vmcnt(0)")
    I("v_readfirstlane_b32 s68, v254")
    I("s_cmp_lg_u32 s68, 0")
    I(f"s_cbranch_scc1 {b}")
    I("s_sleep 4")
    I(f"s_branch {a}")
    L(b)


def publish(soff):
    e = uid("PB_end")
    I("s_waitcnt vmcnt(0) lgkmcnt(0)")
    I("s_barrier")
    I("s_cmp_lg_u32 s69, 0")
    I(f"s_cbranch_scc1 {e}")
    get_nonce()
    I(f"v_mov_b32 v253, s{soff}")
    I("v_mov_b32 v254, s68")
    I("s_mov_b64 s[72:73], exec")
    I("s_mov_b64 exec, 1")
    I("global_store_dword v253, v254, s[70:71] sc1")
    I("s_mov_b64 exec, s[72:73]")
    L(e)


def wait_flags(specs, first_sleep=0):
    e = uid("W_end")
    I("s_cmp_lg_u32 s69, 0")
    I(f"s_cbranch_scc1 {e}")
    get_nonce()
    if first_sleep:
        I(f"s_sleep {first_sleep}")
    for (soff, n) in specs:
        a, b = uid("W_poll"), uid("W_ok")
        I("v_and_b32 v253, 63, v0")
        I(f"v_min_u32 v253, {n-1}, v253")
        I(f"v_lshl_add_u32 v253, v253, 2, s{soff}")
        L(a)
        I("global_load_dword v254, v253, s[70:71] sc1")
        I("s_waitcnt vmcnt(0)")
        I("v_cmp_ne_u32 vcc, s68, v254")
        I("s_cmp_eq_u64 vcc, 0")
        I(f"s_cbranch_scc1 {b}")
        I("s_sleep 6")
        I(f"s_branch {a}")
        L(b)
    L(e)
    I("s_barrier")


HEADER = open(f"cdna_kernels/{NAME}.s.ref").read().split("; Override launch")[0]
E(HEADER.rstrip("\n"))
E(f"; @launch grid=({GRID},1,1) block=(256,1,1) lds={LDS}")
E('.amdgcn_target "amdgcn-amd-amdhsa--gfx950"')
E(".text")
E(f".globl {NAME}_kernel")
E(".p2align 8")
E(f".type {NAME}_kernel,@function")
L(f"{NAME}_kernel")
I(f"s_cmp_ge_u32 s2, {GRID}")
I("s_cbranch_scc1 X_exit")
I("s_mov_b32 s28, s2")
if STAMP:
    I("s_memrealtime s[30:31]")
    I("s_memtime s[32:33]")
I("s_load_dwordx4 s[64:67], s[0:1], 88")
I("v_readfirstlane_b32 s69, v0")
I("s_lshr_b32 s69, s69, 6")
I("s_mov_b32 s68, 0")
I("s_waitcnt lgkmcnt(0)")
I("s_mov_b32 s72, s64")
I("s_mov_b32 s73, s65")
I("s_mov_b32 s64, s66")
I("s_mov_b32 s65, s67")
I("s_mov_b32 s66, s72")
I("s_mov_b32 s67, s73")
I(f"s_add_u32 s70, s64, {WS_FLG}")
I("s_addc_u32 s71, s65, 0")
I("s_or_b32 s72, s2, s69")
I("s_cmp_lg_u32 s72, 0")
I("s_cbranch_scc1 X_nononce")
I("s_memrealtime s[72:73]")
I("s_waitcnt lgkmcnt(0)")
I("s_or_b32 s68, s72, 1")
I("v_mov_b32 v253, 0")
I("v_mov_b32 v254, s68")
I("s_mov_b64 exec, 1")
I("global_store_dword v253, v254, s[66:67] sc1")
I("s_mov_b64 exec, -1")
L("X_nononce")
I(f"s_cmp_ge_u32 s2, {NA}")
I("s_cbranch_scc1 B_start")

I("s_setprio 3")
I("s_cmp_ge_u32 s2, 128")
I("s_cbranch_scc1 A_wtonly")
I("s_load_dwordx2 s[4:5], s[0:1], 0")
I("s_mov_b32 s14, s64")
I("s_mov_b32 s15, s65")
I("s_mov_b32 s3, s2")
I("v_lshrrev_b32 v1, 6, v0")
I("v_and_b32 v2, 63, v0")
I("s_lshl_b32 s6, s3, 4")
I("v_lshl_add_u32 v3, v1, 2, s6")
I("v_mul_u32_u24 v3, 896, v3")
I("v_lshl_add_u32 v3, v2, 4, v3")
I("s_mul_i32 s7, s3, 14336")
I("v_lshrrev_b32 v29, 2, v2")
I("v_lshlrev_b32 v29, 10, v29")
I("v_and_b32 v28, 3, v2")
I("v_lshl_add_u32 v29, v28, 8, v29")
I("v_lshl_add_u32 v29, v1, 6, v29")
I("s_mov_b32 s20, 0x3b124925")
I("s_mov_b32 s21, 0x43e00000")
I("s_mov_b32 s22, 0x3727c5ac")
for r in range(8, 24):
    I(f"v_mov_b32 v{r}, 0")
I("s_mov_b64 s[16:17], exec")
I("s_mov_b32 s18, -1")
I("s_mov_b32 s19, 0x00ffffff")
I("s_waitcnt lgkmcnt(0)")
I("s_mov_b64 exec, s[18:19]")
for k in range(4):
    I(f"global_load_dwordx4 v[{8+4*k}:{11+4*k}], v3, s[4:5] offset:{896*k}")
I("s_mov_b64 exec, s[16:17]")
I("s_waitcnt vmcnt(0)")
for k in range(4):
    for j in range(4):
        I(f"v_lshlrev_b32 v{32+8*k+2*j}, 16, v{8+4*k+j}")
        I(f"v_and_b32 v{33+8*k+2*j}, 0xffff0000, v{8+4*k+j}")


def rows(fmt, **kw):
    for k in range(4):
        b = 32 + 8 * k
        I(fmt.format(k=k, s=8 + k, t=12 + k, m=16 + k, u=20 + k, w=64 + k, x=68 + k, sg=24 + k,
                     b0=b, b1=b + 1, b2=b + 2, b3=b + 3, b4=b + 4, b5=b + 5, b6=b + 6, b7=b + 7, **kw))


def dpp4():
    for sh in (1, 2, 4, 8):
        rows("v_add_f32_dpp v{s}, v{s}, v{s} row_shr:%d row_mask:0xf bank_mask:0xf bound_ctrl:0" % sh)
    rows("v_add_f32_dpp v{s}, v{s}, v{s} row_bcast:15 row_mask:0xa bank_mask:0xf")
    rows("v_add_f32_dpp v{s}, v{s}, v{s} row_bcast:31 row_mask:0xc bank_mask:0xf")
    rows("v_readlane_b32 s{sg}, v{s}, 63")


rows("v_add_f32 v{s}, v{b0}, v{b1}")
rows("v_add_f32 v{t}, v{b2}, v{b3}")
rows("v_add_f32 v{m}, v{b4}, v{b5}")
rows("v_add_f32 v{u}, v{b6}, v{b7}")
rows("v_add_f32 v{s}, v{s}, v{t}")
rows("v_add_f32 v{m}, v{m}, v{u}")
rows("v_add_f32 v{s}, v{s}, v{m}")
dpp4()
rows("v_mov_b32 v{t}, s{sg}")
rows("v_mul_f32 v{m}, s20, v{t}")
rows("v_fma_f32 v{u}, -v{m}, s21, v{t}")
rows("v_fma_f32 v{m}, v{u}, s20, v{m}")
rows("v_mov_b32 v{s}, 0")
I("s_mov_b64 exec, s[18:19]")
for j in range(8):
    rows("v_sub_f32 v{t}, v{bj}, v{m}".replace("{bj}", "{b%d}" % j))
    rows("v_fmac_f32 v{s}, v{t}, v{t}")
I("s_mov_b64 exec, s[16:17]")
I("s_nop 1")
dpp4()
rows("v_mov_b32 v{t}, s{sg}")
rows("v_mul_f32 v{u}, s20, v{t}")
rows("v_fma_f32 v{w}, -v{u}, s21, v{t}")
rows("v_fma_f32 v{u}, v{w}, s20, v{u}")
rows("v_cvt_pk_bf16_f32 v{u}, v{u}, v{u}")
rows("v_cvt_pk_bf16_f32 v{m}, v{m}, v{m}")
rows("v_lshlrev_b32 v{u}, 16, v{u}")
rows("v_lshlrev_b32 v{m}, 16, v{m}")
rows("v_add_f32 v{u}, s22, v{u}")
rows("v_cvt_pk_bf16_f32 v{u}, v{u}, v{u}")
rows("v_lshlrev_b32 v{u}, 16, v{u}")
rows("v_sqrt_f32 v{w}, v{u}")
for j in range(8):
    rows("v_sub_f32 v{bj}, v{bj}, v{m}".replace("{bj}", "{b%d}" % j))
rows("v_rcp_f32 v{x}, v{w}")
rows("v_fma_f32 v{t}, -v{w}, v{w}, v{u}")
rows("v_mul_f32 v{x}, 0.5, v{x}")
rows("v_fma_f32 v{w}, v{t}, v{x}, v{w}")
rows("v_cvt_pk_bf16_f32 v{w}, v{w}, v{w}")
rows("v_lshlrev_b32 v{w}, 16, v{w}")
rows("v_rcp_f32 v{x}, v{w}")
for j in range(0, 8, 2):
    rows("v_cvt_pk_bf16_f32 v{t}, v{bj}, v{bk}".replace("{bj}", "{b%d}" % j).replace("{bk}", "{b%d}" % (j + 1)))
    rows("v_lshlrev_b32 v{bj}, 16, v{t}".replace("{bj}", "{b%d}" % j))
    rows("v_and_b32 v{bk}, 0xffff0000, v{t}".replace("{bk}", "{b%d}" % (j + 1)))
rows("v_fma_f32 v{t}, -v{w}, v{x}, 1.0")
rows("v_fma_f32 v{x}, v{t}, v{x}, v{x}")
for j in range(8):
    rows("v_mul_f32 v{t}, v{bj}, v{x}".replace("{bj}", "{b%d}" % j))
    rows("v_fma_f32 v{u}, -v{t}, v{w}, v{bj}".replace("{bj}", "{b%d}" % j))
    rows("v_fma_f32 v{bj}, v{u}, v{x}, v{t}".replace("{bj}", "{b%d}" % j))
for j in range(4):
    for k in range(4):
        b = 32 + 8 * k
        I(f"v_cvt_pk_bf16_f32 v{8+4*k+j}, v{b+2*j}, v{b+2*j+1}")
I("v_lshlrev_b32 v30, 2, v1")
I("v_mul_u32_u24 v30, 896, v30")
I("v_lshl_add_u32 v30, v2, 4, v30")
I("s_mov_b64 exec, s[18:19]")
for k in range(4):
    I(f"ds_write_b128 v29, v[{8+4*k}:{11+4*k}] offset:{16384 + 16*k}")
    I(f"ds_write_b128 v30, v[{8+4*k}:{11+4*k}] offset:{896*k}")
I("s_mov_b64 exec, s[16:17]")
I("s_waitcnt lgkmcnt(0)")
I("s_barrier")
I("v_lshlrev_b32 v4, 4, v0")
I("v_add_u32 v5, s7, v4")
for q in range(3):
    I(f"ds_read_b128 v[{8+4*q}:{11+4*q}], v4 offset:{16384 + 4096*q}")
I("v_cmp_gt_u32 vcc, 128, v0")
I("s_and_saveexec_b64 s[16:17], vcc")
I(f"ds_read_b128 v[20:23], v4 offset:{16384 + 12288}")
I("v_add_u32 v6, 0x3000, v5")
I("s_waitcnt lgkmcnt(0)")
I("global_store_dwordx4 v6, v[20:23], s[14:15] sc1")
I("s_mov_b64 exec, s[16:17]")
I("v_add_u32 v6, 0x1000, v5")
I("v_add_u32 v7, 0x2000, v5")
I("s_waitcnt lgkmcnt(0)")
I("global_store_dwordx4 v5, v[8:11], s[14:15] sc1")
I("global_store_dwordx4 v6, v[12:15], s[14:15] sc1")
I("global_store_dwordx4 v7, v[16:19], s[14:15] sc1")
I(f"s_add_u32 s14, s14, {WS_XNT}")
I("s_addc_u32 s15, s15, 0")
I("s_lshl_b32 s6, s3, 5")
I("s_add_u32 s6, s6, 32")
for p in range(2):
    if p == 1:
        I("v_cmp_gt_u32 vcc, 192, v0")
        I("s_and_saveexec_b64 s[16:17], vcc")
    I(f"v_add_u32 v4, {256*p}, v0")
    I("v_lshlrev_b32 v5, 1, v4")
    for t in range(16):
        I(f"ds_read_u16 v{32 + t}, v5 offset:{896*t}")
        if t == 7:
            I("s_waitcnt lgkmcnt(0)")
    I(f"v_mul_u32_u24 v6, {XNT_STRIDE}, v4")
    I("v_add_u32 v7, s6, v6")
    I("s_waitcnt lgkmcnt(0)")
    for t in range(8):
        I(f"v_lshl_or_b32 v{48+8*p+t}, v{33+2*t}, 16, v{32+2*t}")
    I(f"global_store_dwordx4 v7, v[{48+8*p}:{51+8*p}], s[14:15] sc1")
    I(f"global_store_dwordx4 v7, v[{52+8*p}:{55+8*p}], s[14:15] offset:16 sc1")
    I("s_cmp_lg_u32 s3, 0")
    I(f"s_cbranch_scc1 A_ln_nz{p}")
    for r in range(24, 28):
        I(f"v_mov_b32 v{r}, 0")
    I("global_store_dwordx4 v6, v[24:27], s[14:15] sc1")
    I("global_store_dwordx4 v6, v[24:27], s[14:15] offset:16 sc1")
    L(f"A_ln_nz{p}")
I("s_mov_b64 exec, -1")
I("s_lshl_b32 s74, s3, 2")
publish(74)
I("s_add_u32 s3, s2, 264")
I("s_mov_b32 s75, 1")
I("s_branch A_wt")
L("A_wtonly")
I("s_cmp_ge_u32 s2, 216")
I("s_cbranch_scc1 A_g1")
I("s_sub_u32 s3, s2, 128")
I("s_mul_i32 s3, s3, 3")
I("s_mov_b32 s75, 3")
L("A_wt")
I("s_load_dwordx4 s[4:7], s[0:1], 64")
I("s_mov_b32 s14, s64")
I("s_mov_b32 s15, s65")
I("s_waitcnt lgkmcnt(0)")
I("s_cmp_ge_u32 s3, 196")
I("s_cbranch_scc1 A_wt2")
I("s_mul_i32 s8, s3, 9363")
I("s_lshr_b32 s8, s8, 16")
I("s_mul_i32 s9, s8, 7")
I("s_sub_u32 s9, s3, s9")
I("s_mov_b32 s10, 3584")
I("s_mov_b32 s11, 896")
I(f"s_add_u32 s14, s14, {WS_W1T}")
I("s_addc_u32 s15, s15, 0")
I("s_and_b32 s74, s8, 1")
I("s_mul_i32 s74, s74, 7")
I("s_add_u32 s74, s74, s9")
I("s_lshl_b32 s74, s74, 2")
I("s_lshr_b32 s12, s8, 1")
I("s_lshl_b32 s12, s12, 6")
I("s_add_u32 s74, s74, s12")
I(f"s_add_u32 s74, s74, {W1F}")
I("s_branch A_wt_go")
L("A_wt2")
I("s_sub_u32 s12, s3, 196")
I("s_mul_i32 s8, s12, 2341")
I("s_lshr_b32 s8, s8, 16")
I("s_mul_i32 s9, s8, 28")
I("s_sub_u32 s9, s12, s9")
I("s_mov_b32 s10, 896")
I("s_mov_b32 s11, 3584")
I("s_mov_b32 s4, s6")
I("s_mov_b32 s5, s7")
I(f"s_add_u32 s14, s14, {WS_W2T}")
I("s_addc_u32 s15, s15, 0")
I("s_lshl_b32 s74, s8, 7")
I("s_lshl_b32 s12, s9, 2")
I("s_add_u32 s74, s74, s12")
I(f"s_add_u32 s74, s74, {W2F}")
L("A_wt_go")
I("s_lshl_b32 s12, s9, 6")
I("s_lshl_b32 s13, s8, 6")
I("v_lshrrev_b32 v1, 3, v0")
I("v_and_b32 v2, 7, v0")
I("v_add_u32 v3, s12, v1")
I("v_mul_lo_u32 v3, v3, s10")
I("s_lshl_b32 s16, s13, 1")
I("v_lshl_add_u32 v4, v2, 4, s16")
I("v_add_u32 v3, v3, v4")
I("s_lshl_b32 s17, s10, 5")
I("v_add_u32 v4, s17, v3")
I("global_load_dwordx4 v[8:11], v3, s[4:5]")
I("global_load_dwordx4 v[12:15], v4, s[4:5]")
I("v_lshlrev_b32 v5, 7, v1")
I("v_lshl_add_u32 v5, v2, 4, v5")
I("s_waitcnt vmcnt(0)")
I("ds_write_b128 v5, v[8:11]")
I("ds_write_b128 v5, v[12:15] offset:4096")
I("s_waitcnt lgkmcnt(0)")
I("s_barrier")
I("v_and_b32 v1, 15, v0")
I("v_bfe_u32 v2, v0, 4, 2")
I("v_lshrrev_b32 v3, 6, v0")
I("v_lshrrev_b32 v4, 2, v1")
I("v_lshlrev_b32 v4, 4, v4")
I("v_lshl_add_u32 v4, v3, 2, v4")
I("v_and_b32 v6, 3, v1")
I("v_add_u32 v4, v4, v6")
I("v_lshl_add_u32 v6, v3, 4, v1")
I("s_cmp_eq_u32 s11, 896")
I("s_cselect_b64 vcc, -1, 0")
I("v_cndmask_b32 v4, v6, v4, vcc")
I("v_lshlrev_b32 v5, 10, v2")
I("v_lshl_add_u32 v5, v4, 1, v5")
for c in range(2):
    for e in range(8):
        I(f"ds_read_u16 v{24 + 8*c + e}, v5 offset:{4096*c + 128*e}")
    if c == 0:
        I("s_waitcnt lgkmcnt(0)")
I("s_lshr_b32 s16, s13, 4")
I("v_add_u32 v3, s16, v3")
I("s_lshl_b32 s17, s11, 4")
I("v_mul_lo_u32 v3, v3, s17")
I("s_lshl_b32 s16, s12, 5")
I("v_add_u32 v3, s16, v3")
I("v_and_b32 v4, 63, v0")
I("v_lshl_add_u32 v3, v4, 4, v3")
I("s_waitcnt lgkmcnt(0)")
for t in range(8):
    I(f"v_lshl_or_b32 v{8+t}, v{25+2*t}, 16, v{24+2*t}")
I("global_store_dwordx4 v3, v[8:11], s[14:15] sc1")
I("global_store_dwordx4 v3, v[12:15], s[14:15] offset:1024 sc1")
publish(74)
I("s_add_u32 s3, s3, 1")
I("s_sub_u32 s75, s75, 1")
I("s_cmp_lg_u32 s75, 0")
I("s_cbranch_scc1 A_wt")

L("A_g1")
MARK(0)
I("v_and_b32 v1, 15, v0")
I("v_bfe_u32 v2, v0, 4, 2")
I("v_lshrrev_b32 v3, 6, v0")
I("s_and_b32 s10, s2, 7")
I("s_lshr_b32 s3, s2, 3")
I("s_mul_i32 s8, s3, 9363")
I("s_lshr_b32 s8, s8, 16")
I("s_mul_i32 s9, s8, 7")
I("s_sub_u32 s9, s3, s9")
I("s_and_b32 s11, s10, 1")
I("s_mul_i32 s11, s11, 7")
I("s_add_u32 s9, s9, s11")
I("s_lshr_b32 s10, s10, 1")
I("s_lshl_b32 s10, s10, 2")
I("s_add_u32 s8, s8, s10")
I("s_lshl_b32 s76, s8, 5")
I("s_lshl_b32 s77, s9, 6")
I(f"s_add_u32 s77, s77, {W1F}")
I("s_lshl_b32 s74, s8, 6")
I("s_lshl_b32 s10, s9, 2")
I("s_add_u32 s74, s74, s10")
I(f"s_add_u32 s74, s74, {HF}")
wait_flags([(76, 8), (77, 14)])
MARK(1)
I(f"s_add_u32 s4, s64, {WS_W1T}")
I("s_addc_u32 s5, s65, 0")
I(f"s_add_u32 s6, s64, {WS_XN}")
I("s_addc_u32 s7, s65, 0")
I("s_lshl_b32 s9, s9, 7")
I("s_lshl_b32 s8, s8, 7")
I("v_and_b32 v4, 1, v3")
I("v_lshl_add_u32 v4, v4, 6, s9")
I("v_lshrrev_b32 v5, 1, v3")
I("v_lshl_add_u32 v5, v5, 6, s8")
I("v_and_b32 v7, 63, v0")
I("v_lshlrev_b32 v7, 4, v7")
I("s_mul_i32 s10, s9, 896")
I("s_mul_i32 s11, s8, 896")
I("v_mul_u32_u24 v6, 28672, v3")
I("v_add_u32 v6, v6, v7")
I("v_add_u32 v8, s10, v6")
I("v_add_u32 v9, 14336, v8")
I("v_add_u32 v10, s11, v6")
I("v_add_u32 v11, 14336, v10")
I("s_lshl_b32 s12, s69, 11")
I("v_and_b32 v12, 1, v3")
I("v_lshl_add_u32 v12, v12, 12, v7")
I("v_lshrrev_b32 v13, 1, v3")
I("v_lshl_add_u32 v13, v13, 12, v7")
I("v_add_u32 v13, 0x2000, v13")
G_ACC = 16
G_FR = 80


def g1_dma(st):
    slot = (st % 4) * 16384
    if st:
        I("s_add_u32 s4, s4, 1024")
        I("s_addc_u32 s5, s5, 0")
        I("s_add_u32 s6, s6, 1024")
        I("s_addc_u32 s7, s7, 0")
    for (va, sb, off) in ((8, 4, 0), (9, 4, 1024), (10, 6, 8192), (11, 6, 9216)):
        I(f"s_add_u32 m0, s12, {slot + off}")
        I("s_nop 0")
        I(f"global_load_lds_dwordx4 v{va}, s[{sb}:{sb+1}] sc1")


def g1_reads(st):
    slot = (st % 4) * 16384
    fb = G_FR + 32 * (st & 1)
    for j in range(4):
        I(f"ds_read_b128 v[{fb+4*j}:{fb+4*j+3}], v12 offset:{slot + 1024*j}")
    for j in range(4):
        I(f"ds_read_b128 v[{fb+16+4*j}:{fb+16+4*j+3}], v13 offset:{slot + 1024*j}")


NS1 = 14
for st in range(4):
    g1_dma(st)
I("s_waitcnt vmcnt(12)")
I("s_barrier")
g1_reads(0)
for st in range(NS1):
    if st + 1 < NS1:
        newer = min(NS1 - 1, st + 3) - (st + 1)
        I(f"s_waitcnt vmcnt({4*newer}) lgkmcnt(0)")
        I("s_barrier")
        if st + 4 < NS1:
            g1_dma(st + 4)
        g1_reads(st + 1)
    else:
        I("s_waitcnt lgkmcnt(0)")
    fb = G_FR + 32 * (st & 1)
    for a_ in range(4):
        for b_ in range(4):
            c = G_ACC + 16 * a_ + 4 * b_
            src = "0" if st == 0 else f"v[{c}:{c+3}]"
            I(f"v_mfma_f32_16x16x32_bf16 v[{c}:{c+3}], v[{fb+4*a_}:{fb+4*a_+3}], v[{fb+16+4*b_}:{fb+16+4*b_+3}], {src}")
I(f"s_add_u32 s4, s64, {WS_H}")
I("s_addc_u32 s5, s65, 0")
I("v_mul_u32_u24 v6, 3584, v5")
I("v_lshl_add_u32 v6, v4, 5, v6")
I("v_lshrrev_b32 v7, 1, v2")
I("v_lshl_add_u32 v6, v7, 10, v6")
I("v_and_b32 v7, 1, v2")
I("v_lshl_add_u32 v6, v7, 9, v6")
I("v_lshl_add_u32 v6, v1, 4, v6")
I("s_nop 4")
for b in range(4):
    for a in range(4):
        c = G_ACC + 16 * a + 4 * b
        for r in range(4):
            I(f"v_max_f32 v{c+r}, 0, v{c+r}")
        I(f"v_cvt_pk_bf16_f32 v{80+8*b+2*a}, v{c}, v{c+1}")
        I(f"v_cvt_pk_bf16_f32 v{81+8*b+2*a}, v{c+2}, v{c+3}")
    if b > 0:
        I(f"v_add_u32 v6, {57344}, v6")
    I(f"global_store_dwordx4 v6, v[{80+8*b}:{83+8*b}], s[4:5] sc1")
    I(f"global_store_dwordx4 v6, v[{84+8*b}:{87+8*b}], s[4:5] offset:256 sc1")
publish(74)
MARK(2)

I("s_load_dwordx2 s[16:17], s[0:1], 0")
I("s_load_dwordx2 s[18:19], s[0:1], 48")
I("s_load_dwordx2 s[20:21], s[0:1], 80")
I("s_mov_b32 s14, s64")
I("s_mov_b32 s15, s65")
I("v_and_b32 v4, 63, v0")
I("s_and_b32 s10, s2, 7")
I("s_lshr_b32 s3, s2, 3")
I("s_mul_i32 s8, s3, 9363")
I("s_lshr_b32 s8, s8, 16")
I("s_mul_i32 s9, s8, 7")
I("s_sub_u32 s9, s3, s9")
I("s_lshl_b32 s10, s10, 2")
I("s_add_u32 s8, s8, s10")
I("s_lshr_b32 s76, s8, 1")
I("s_lshl_b32 s76, s76, 6")
I(f"s_add_u32 s76, s76, {HF}")
I("s_lshl_b32 s77, s9, 7")
I(f"s_add_u32 s78, s77, {YF}")
I(f"s_add_u32 s77, s77, {W2F}")
I("s_lshl_b32 s9, s9, 6")
I("s_lshl_b32 s8, s8, 6")
wait_flags([(77, 28), (76, 14)])
MARK(3)
I("s_waitcnt lgkmcnt(0)")
I(f"s_add_u32 s4, s64, {WS_W2T}")
I("s_addc_u32 s5, s65, 0")
I(f"s_add_u32 s6, s64, {WS_H}")
I("s_addc_u32 s7, s65, 0")
I(f"s_add_u32 s10, s64, {WS_YT}")
I("s_addc_u32 s11, s65, 0")
EX, EXN, EY, EDK = 232, 240, 216, 208


def fin_late():
    I("v_lshrrev_b32 v249, 2, v4")
    I("v_lshl_add_u32 v249, v3, 4, v249")
    I("v_add_u32 v250, s8, v249")
    I("v_and_b32 v251, 3, v4")
    I("v_mul_u32_u24 v5, 896, v250")
    I("s_lshl_b32 s12, s9, 1")
    I("v_lshl_add_u32 v6, v251, 5, s12")
    I("v_add_u32 v5, v5, v6")
    I(f"global_load_dwordx4 v[{EX}:{EX+3}], v5, s[16:17]")
    I(f"global_load_dwordx4 v[{EX+4}:{EX+7}], v5, s[16:17] offset:16")
    I("v_lshrrev_b32 v248, 4, v250")
    I("v_mul_u32_u24 v248, 14336, v248")
    I("v_and_b32 v7, 15, v250")
    I("v_lshl_add_u32 v248, v7, 4, v248")
    I("v_lshrrev_b32 v7, 6, v6")
    I("v_lshl_add_u32 v248, v7, 10, v248")
    I("v_bfe_u32 v7, v6, 4, 2")
    I("v_lshl_add_u32 v248, v7, 8, v248")
    I(f"global_load_dwordx4 v[{EXN}:{EXN+3}], v248, s[14:15] sc1")
    I(f"global_load_dwordx4 v[{EXN+4}:{EXN+7}], v248, s[14:15] offset:256 sc1")
    I(f"global_load_dwordx4 v[{EDK}:{EDK+3}], v6, s[18:19]")
    I(f"global_load_dwordx4 v[{EDK+4}:{EDK+7}], v6, s[18:19] offset:16")
    I("v_lshlrev_b32 v7, 11, v6")
    I("v_lshl_add_u32 v252, v250, 1, v7")


def gemm_core(sa, sb, va, vb, acc0, buf0, ring, late, nlate):
    NS = 14
    PF = ring - 1

    def loads(s):
        bb = buf0 + 32 * (s % ring)
        off = (s & 3) * 1024
        if s and (s & 3) == 0:
            I(f"s_add_u32 s{sa}, s{sa}, 4096")
            I(f"s_addc_u32 s{sa+1}, s{sa+1}, 0")
            I(f"s_add_u32 s{sb}, s{sb}, 4096")
            I(f"s_addc_u32 s{sb+1}, s{sb+1}, 0")
        for j in range(4):
            I(f"global_load_dwordx4 v[{bb+4*j}:{bb+4*j+3}], v{va+j}, s[{sa}:{sa+1}] offset:{off} sc1")
        for j in range(4):
            I(f"global_load_dwordx4 v[{bb+16+4*j}:{bb+16+4*j+3}], v{vb+j}, s[{sb}:{sb+1}] offset:{off} sc1")

    for s in range(PF):
        loads(s)
    for s in range(NS):
        if s + PF < NS:
            loads(s + PF)
            if s + PF == NS - 1:
                late()
                I(f"s_waitcnt vmcnt({8*PF + nlate})")
            else:
                I(f"s_waitcnt vmcnt({8*PF})")
        else:
            I(f"s_waitcnt vmcnt({8*(NS-1-s) + nlate})")
        bb = buf0 + 32 * (s % ring)
        for a in range(4):
            for b in range(4):
                c = acc0 + 16 * a + 4 * b
                src = "0" if s == 0 else f"v[{c}:{c+3}]"
                I(f"v_mfma_f32_16x16x32_bf16 v[{c}:{c+3}], v[{bb+4*a}:{bb+4*a+3}], v[{bb+16+4*b}:{bb+16+4*b+3}], {src}")


I("v_mul_u32_u24 v7, 14336, v3")
I("v_lshl_add_u32 v7, v4, 4, v7")
I("s_mul_i32 s12, s9, 3584")
I("v_add_u32 v8, s12, v7")
for j in range(1, 4):
    I(f"v_add_u32 v{8+j}, {57344*j}, v8")
I("s_mul_i32 s12, s8, 3584")
I("v_add_u32 v12, s12, v7")
for j in range(1, 4):
    I(f"v_add_u32 v{12+j}, {57344*j}, v12")
F_ACC = 16
F_BUF = 80
gemm_core(4, 6, 8, 12, F_ACC, F_BUF, 4, fin_late, 6)
MARK(4)
I("v_lshl_add_u32 v6, v3, 6, v1")
I("v_mul_u32_u24 v6, 272, v6")
I("v_lshl_add_u32 v6, v2, 4, v6")
I("s_nop 4")
for a_ in range(4):
    for b_ in range(4):
        c = F_ACC + 16 * a_ + 4 * b_
        I(f"ds_write_b128 v6, v[{c}:{c+3}] offset:{16*b_*272 + 64*a_}")
I("s_waitcnt lgkmcnt(0)")
wait_flags([(78, 32)])
MARK(5)
for dd in range(16):
    if dd:
        I("v_add_u32 v252, 0x1000, v252")
    I(f"global_load_ushort v{EY+dd}, v252, s[10:11] sc1")
I("v_mul_u32_u24 v6, 272, v249")
I("v_lshl_add_u32 v6, v251, 6, v6")
for p in range(4):
    for j in range(4):
        I(f"ds_read_b128 v[{80+16*p+4*j}:{83+16*p+4*j}], v6 offset:{p*64*272 + 16*j}")
I("s_mov_b32 s22, 0xbfb8aa3b")
I("s_waitcnt vmcnt(16) lgkmcnt(0)")


def bfr(r):
    return [f"v_cvt_pk_bf16_f32 v{r}, v{r}, v{r}", f"v_lshlrev_b32 v{r}, 16, v{r}"]


def epi1(dd):
    o = 80 + dd
    t1, t2, t3 = 144 + dd, 160 + dd, 176 + dd
    h = dd & 1

    def unp(dst, reg):
        if h:
            return f"v_and_b32 v{dst}, 0xffff0000, v{reg + dd//2}"
        return f"v_lshlrev_b32 v{dst}, 16, v{reg + dd//2}"
    return [f"v_add_f32 v{o}, v{o}, v{o+16}",
            f"v_add_f32 v{o+32}, v{o+32}, v{o+48}",
            unp(t2, EXN), unp(t3, EDK),
            f"v_add_f32 v{o}, v{o}, v{o+32}",
            f"v_mul_f32 v{t2}, v{t2}, v{t3}"] + bfr(o) + bfr(t2) + [
            f"v_mul_f32 v{t1}, s22, v{o}",
            unp(t3, EX),
            f"v_exp_f32 v{t1}, v{t1}",
            "s_nop 0",
            f"v_add_f32 v{t1}, 1.0, v{t1}",
            f"v_rcp_f32 v{t1}, v{t1}",
            "s_nop 0",
            f"v_mul_f32 v{o}, v{o}, v{t1}"] + bfr(o)


def epi2(dd):
    o = 80 + dd
    t1, t2, t3 = 144 + dd, 160 + dd, 176 + dd
    return [f"v_lshlrev_b32 v{t1}, 16, v{EY+dd}",
            f"v_add_f32 v{t2}, v{t2}, v{t1}"] + bfr(t2) + [
            f"v_mul_f32 v{o}, v{o}, v{t2}"] + bfr(o) + [
            f"v_add_f32 v{o}, v{o}, v{t3}"]


for g in range(0, 16, 4):
    interleave([epi1(dd) for dd in range(g, g + 4)])
I("s_waitcnt vmcnt(0)")
for g in range(0, 16, 4):
    interleave([epi2(dd) for dd in range(g, g + 4)])
for j in range(8):
    I(f"v_cvt_pk_bf16_f32 v{16+j}, v{80+2*j}, v{81+2*j}")
I("global_store_dwordx4 v5, v[16:19], s[20:21]")
I("global_store_dwordx4 v5, v[20:23], s[20:21] offset:16")
I("s_endpgm")

L("B_start")
I(f"s_sub_u32 s2, s2, {NA}")
KSTG = 35072
UB = 2 * KR_STRIDE
I("s_load_dwordx4 s[4:7], s[0:1], 8")
I("s_load_dwordx4 s[8:11], s[0:1], 24")
I("s_load_dwordx2 s[12:13], s[0:1], 40")
I("s_lshl_b32 s3, s2, 10")
I("v_lshl_add_u32 v1, v0, 1, s3")
I("s_lshl_b32 s16, s2, 2")
I("v_mov_b32 v7, s16")
I("s_mov_b32 s20, 0x3fb8aa3b")
I("s_mov_b32 s21, 0x32a57060")
I("s_mov_b32 s22, 0x3f317218")
I("s_mov_b32 s23, 0x3e22f983")
I("s_mov_b32 s24, 0x31dc9c88")
I("s_waitcnt lgkmcnt(0)")
for ch in range(2):
    rb = 140 + 5 * ch
    I(f"global_load_ushort v{rb}, v1, s[4:5] offset:{512*ch}")
    I(f"global_load_ushort v{rb+1}, v1, s[6:7] offset:{512*ch}")
    I(f"global_load_ushort v{rb+2}, v1, s[8:9] offset:{512*ch}")
    I(f"global_load_ushort v{rb+3}, v1, s[10:11] offset:{512*ch}")
    I(f"global_load_ushort v{rb+4}, v7, s[12:13] offset:{2*ch}")
I("s_mov_b32 s74, 0")
I("s_waitcnt vmcnt(0)")
L("B_kloop")
for k, r in enumerate((2, 3, 4, 5, 6)):
    I(f"v_lshlrev_b32 v{r}, 16, v{140+k}")


def exp_acc(dst, x, t0, t1):
    I(f"v_mul_f32 v{t0}, s20, v{x}")
    I(f"v_fma_f32 v{t1}, v{x}, s20, -v{t0}")
    I(f"v_fma_f32 v{t1}, v{x}, s21, v{t1}")
    I(f"v_exp_f32 v{dst}, v{t0}")
    I(f"v_mul_f32 v{t1}, s22, v{t1}")
    I(f"v_fma_f32 v{dst}, v{dst}, v{t1}, v{dst}")


exp_acc(8, 6, 10, 11)
bf16r(8, 8)
exp_acc(9, 2, 10, 11)
bf16r(9, 9)
I("v_mul_f32 v9, v9, v8")
I("v_mul_f32 v12, s20, v9")
I("v_sub_f32 v12, 0, v12")
I("v_mul_f32 v3, v3, v8")
I("v_mul_f32 v13, s23, v3")
I("v_fma_f32 v14, v3, s23, -v13")
I("v_fma_f32 v14, v3, s24, v14")
I("v_rndne_f32 v10, v13")
I("v_sub_f32 v10, v13, v10")
I("v_and_b32 v13, 0xffffff00, v10")
I("v_sub_f32 v10, v10, v13")
I("v_add_f32 v14, v10, v14")
I("v_mul_f32 v15, v4, v8")
I("v_add_f32 v15, v15, v15")
I("v_mul_f32 v16, v5, v8")
I("v_add_f32 v16, v16, v16")
WREG = 8704
LOO = 4352
I("v_and_b32 v2, 15, v0")
I("v_bfe_u32 v3, v0, 4, 2")
I("v_lshrrev_b32 v6, 6, v0")
I(f"v_mul_u32_u24 v6, {WREG}, v6")
I(f"v_add_u32 v6, {KSTG}, v6")
I("v_and_b32 v4, 63, v0")
I("v_lshl_add_u32 v4, v4, 2, v6")
I("v_mul_u32_u24 v5, 272, v2")
I("v_lshl_add_u32 v5, v3, 4, v5")
I("v_add_u32 v5, v5, v6")


def cexp_ops(p, d, t):
    return [f"v_mul_f32 v{t}, {p}, v12",
            f"v_mul_f32 v{t+1}, {p}, v13",
            f"v_exp_f32 v{t}, v{t}",
            f"v_fract_f32 v{t+1}, v{t+1}",
            f"v_mov_b32 v{d}, {p}",
            f"v_fma_f32 v{t+1}, v{d}, v14, v{t+1}",
            f"v_cos_f32 v{d}, v{t+1}",
            f"v_sin_f32 v{d+1}, v{t+1}",
            "s_nop 0",
            f"v_mul_f32 v{d}, v{d}, v{t}",
            f"v_mul_f32 v{d+1}, v{d+1}, v{t}"]


def cmul_ops(d, a, b):
    return [f"v_mul_f32 v{d}, v{a}, v{b}",
            f"v_mul_f32 v{d+1}, v{a}, v{b+1}",
            f"v_fma_f32 v{d}, -v{a+1}, v{b+1}, v{d}",
            f"v_fma_f32 v{d+1}, v{a+1}, v{b}, v{d+1}"]


def split_ops(v, row, t, neg=False):
    n = "-" if neg else ""
    return [f"v_cvt_pk_bf16_f32 v{t}, v{v}, {n}v{v+1}",
            f"v_lshlrev_b32 v{t+1}, 16, v{t}",
            f"v_and_b32 v{t+2}, 0xffff0000, v{t}",
            f"v_sub_f32 v{t+1}, v{v}, v{t+1}",
            f"v_sub_f32 v{t+2}, {n}v{v+1}, v{t+2}",
            f"ds_write_b32 v4, v{t} offset:{row*272}",
            f"v_cvt_pk_bf16_f32 v{t+1}, v{t+1}, v{t+2}",
            f"ds_write_b32 v4, v{t+1} offset:{LOO + row*272}"]


ZQ = lambda q: 20 + 2 * q
EJ = lambda j: 40 + 2 * j
Z128 = 18
BH, BL = 72, 88
AF = 40
ACC = 124
GT = [104, 106, 108, 110]
ST = [112, 115, 118, 121]
interleave([cexp_ops("1.0", ZQ(1), 104), cexp_ops("0x41000000", EJ(1), 106), cexp_ops("0x43000000", Z128, 108)])
I("v_mov_b32 v40, 1.0")
I("v_mov_b32 v41, 0")
interleave([cmul_ops(EJ(2), EJ(1), EJ(1)), cmul_ops(ZQ(2), ZQ(1), ZQ(1)), split_ops(40, 0, ST[0], True), split_ops(EJ(1), 1, ST[1], True)])
interleave([cmul_ops(EJ(3), EJ(2), EJ(1)), cmul_ops(EJ(4), EJ(2), EJ(2)), cmul_ops(ZQ(3), ZQ(2), ZQ(1)), cmul_ops(ZQ(4), ZQ(2), ZQ(2)), split_ops(EJ(2), 2, ST[0], True)])
interleave([cmul_ops(EJ(5), EJ(4), EJ(1)), cmul_ops(EJ(6), EJ(3), EJ(3)), cmul_ops(EJ(7), EJ(4), EJ(3)), cmul_ops(EJ(8), EJ(4), EJ(4)),
            split_ops(EJ(3), 3, ST[0], True), split_ops(EJ(4), 4, ST[1], True)])
interleave([cmul_ops(ZQ(5), ZQ(4), ZQ(1)), cmul_ops(ZQ(6), ZQ(3), ZQ(3)), cmul_ops(ZQ(7), ZQ(4), ZQ(3)),
            cmul_ops(EJ(9), EJ(8), EJ(1)), cmul_ops(EJ(10), EJ(8), EJ(2)), cmul_ops(EJ(11), EJ(8), EJ(3)),
            split_ops(EJ(5), 5, ST[0], True), split_ops(EJ(6), 6, ST[1], True)])
interleave([cmul_ops(EJ(12), EJ(8), EJ(4)), cmul_ops(EJ(13), EJ(8), EJ(5)), cmul_ops(EJ(14), EJ(8), EJ(6)), cmul_ops(EJ(15), EJ(8), EJ(7)),
            split_ops(EJ(7), 7, ST[0], True), split_ops(EJ(8), 8, ST[1], True), split_ops(EJ(9), 9, ST[2], True), split_ops(EJ(10), 10, ST[3], True)])
interleave([split_ops(EJ(11 + k), 11 + k, ST[k], True) for k in range(4)])
interleave([split_ops(EJ(15), 15, ST[0], True), cmul_ops(38, 15, Z128)])
I("v_mov_b32 v36, v15")
I("v_mov_b32 v37, v16")
I("s_waitcnt lgkmcnt(0)")
for sidx in range(4):
    I(f"ds_read_b128 v[{BH+4*sidx}:{BH+4*sidx+3}], v5 offset:{64*sidx}")
    I(f"ds_read_b128 v[{BL+4*sidx}:{BL+4*sidx+3}], v5 offset:{LOO+64*sidx}")
CR_ = [36, 38, 6, 8, 10]
CK = lambda k: CR_[k % 5]


def rowval(k, q, row, gi):
    if q == 0:
        return split_ops(CK(k), row, ST[gi])
    return cmul_ops(GT[gi], CK(k), ZQ(q)) + split_ops(GT[gi], row, ST[gi])


def tile_mfma(t):
    I("s_waitcnt lgkmcnt(0)")
    for sidx in range(4):
        I(f"ds_read_b128 v[{AF+4*sidx}:{AF+4*sidx+3}], v5 offset:{64*sidx}")
        I(f"ds_read_b128 v[{AF+16+4*sidx}:{AF+16+4*sidx+3}], v5 offset:{LOO+64*sidx}")
    acc = ACC + 4 * t
    out = []
    for sidx in range(4):
        ah, al = AF + 4 * sidx, AF + 16 + 4 * sidx
        bh, bl = BH + 4 * sidx, BL + 4 * sidx
        for (x, y) in ((ah, bh), (al, bh), (ah, bl)):
            src = "0" if (sidx == 0 and (x, y) == (ah, bh)) else f"v[{acc}:{acc+3}]"
            out.append(f"v_mfma_f32_16x16x32_bf16 v[{acc}:{acc+3}], v[{x}:{x+3}], v[{y}:{y+3}], {src}")
    return out


def run_rows(rows_, extra):
    for g in range(0, len(rows_), 4):
        ch = [rowval(k, q, row, gi) for gi, (k, q, row) in enumerate(rows_[g:g + 4])]
        if extra:
            ch.append(extra.pop(0))
        interleave(ch)
    for e in extra:
        interleave([e])


run_rows([(kap, q, q + 8 * kap) for kap in (0, 1) for q in range(8)],
         [cmul_ops(CK(k), CK(k - 1), Z128) for k in (2, 3, 4)])
mf = tile_mfma(0)
I("s_waitcnt lgkmcnt(0)")
r1 = [(2 + kp, q, q // 2 + 4 * kp) for kp in (0, 1) for q in (0, 2, 4, 6)]
r1b = [(4 + kp, q, 8 + q // 4 + 2 * kp) for kp in range(4) for q in (0, 4)]
interleave([mf[:6]] + [rowval(k, q, row, gi) for gi, (k, q, row) in enumerate(r1[:4])])
interleave([mf[6:]] + [rowval(k, q, row, gi) for gi, (k, q, row) in enumerate(r1[4:])] + [cmul_ops(CK(5), CK(4), Z128)])
interleave([rowval(k, q, row, gi) for gi, (k, q, row) in enumerate(r1b[:4])] + [cmul_ops(CK(6), CK(5), Z128) + cmul_ops(CK(7), CK(6), Z128)])
interleave([rowval(k, q, row, gi) for gi, (k, q, row) in enumerate(r1b[4:])] + [cmul_ops(CK(8), CK(7), Z128)])
mf = tile_mfma(1)
I("s_waitcnt lgkmcnt(0)")
for r in range(9):
    k = 8 + r
    grp = [split_ops(CK(k), r, ST[r % 4])]
    if k < 16:
        grp.append(cmul_ops(CK(k + 1), CK(k), Z128))
    if r < 6:
        grp.append(mf[2 * r:2 * r + 2])
    interleave(grp)
mf = tile_mfma(2)
I("s_waitcnt lgkmcnt(0)")
for m in mf:
    I(m)
I("s_nop 7")
I("s_nop 1")
I("v_lshrrev_b32 v19, 6, v0")
I(f"v_mul_u32_u24 v19, {WREG}, v19")
I("v_lshl_add_u32 v19, v3, 8, v19")
I("v_lshl_add_u32 v19, v2, 2, v19")
for t in range(3):
    for r in range(4):
        I(f"ds_write_b32 v19, v{ACC+4*t+r} offset:{KSTG + t*1024 + r*64}")
I("s_waitcnt lgkmcnt(0)")
I("s_barrier")
I("v_mov_b32 v60, 0x80")
for g in range(2):
    es = [4 * g + k for k in range(4)]
    A_, B_, C_, D_, F_ = 10, 14, 48, 52, 56

    def col(fmt):
        for k, e in enumerate(es):
            I(fmt.format(a=A_ + k, b=B_ + k, c=C_ + k, d=D_ + k, f=F_ + k, e=e, o=2 + e))
    col("v_lshl_add_u32 v{a}, v0, 3, {e}")
    col("v_cvt_f32_u32 v{a}, v{a}")
    col("v_cvt_pk_bf16_f32 v{a}, v{a}, v{a}")
    col("v_bfe_u32 v{b}, v{a}, 7, 8")
    col("v_lshlrev_b32 v{a}, 16, v{a}")
    col("v_subrev_u32 v{b}, 134, v{b}")
    col("v_cvt_u32_f32 v{a}, v{a}")
    col("v_med3_i32 v{b}, v{b}, 0, 3")
    col("v_lshlrev_b32 v{c}, v{b}, v60")
    col("v_sub_u32 v{f}, 3, v{b}")
    col("v_and_b32 v{c}, 0xffffff00, v{c}")
    col("v_sub_u32 v{a}, v{a}, v{c}")
    col("v_and_b32 v{c}, 7, v{a}")
    col("v_lshrrev_b32 v{d}, 7, v{a}")
    col("v_lshrrev_b32 v{c}, v{b}, v{c}")
    col("v_lshlrev_b32 v{d}, v{f}, v{d}")
    col("v_bfe_u32 v{a}, v{a}, 3, 4")
    col("v_add_u32 v{c}, v{c}, v{d}")
    col("v_min_u32 v{d}, 1, v{b}")
    col("v_lshl_add_u32 v{c}, v{c}, 4, v{a}")
    col("v_add_u32 v{d}, v{d}, v{b}")
    col("v_lshl_add_u32 v{c}, v{d}, 7, v{c}")
    col("v_lshlrev_b32 v{o}, 2, v{c}")
for e in range(8):
    for w in range(4):
        I(f"ds_read_b32 v{16 + 4*e + w}, v{2+e} offset:{KSTG + w*8704}")
    if e == 3:
        I("s_waitcnt lgkmcnt(0)")
I("s_waitcnt lgkmcnt(0)")
for e in range(8):
    b = 16 + 4 * e
    I(f"v_add_f32 v{b}, v{b}, v{b+1}")
    I(f"v_add_f32 v{b+2}, v{b+2}, v{b+3}")
    I(f"v_add_f32 v{b}, v{b}, v{b+2}")
for j in range(4):
    ka, kb = 16 + 4 * (7 - 2 * j), 16 + 4 * (6 - 2 * j)
    I(f"v_cvt_pk_bf16_f32 v{48+j}, v{ka}, v{kb}")
    I(f"v_lshlrev_b32 v10, 16, v{48+j}")
    I(f"v_and_b32 v11, 0xffff0000, v{48+j}")
    I(f"v_sub_f32 v10, v{ka}, v10")
    I(f"v_sub_f32 v11, v{kb}, v11")
    I(f"v_cvt_pk_bf16_f32 v{52+j}, v10, v11")
I("v_lshlrev_b32 v10, 4, v0")
I("v_sub_u32 v10, 4080, v10")
I("v_add_u32 v10, s74, v10")
I("ds_write_b128 v10, v[48:51]")
I("ds_write_b128 v10, v[52:55] offset:4608")
I("v_cmp_gt_u32 vcc, 64, v0")
I("s_and_saveexec_b64 s[18:19], vcc")
I("v_and_b32 v10, 31, v0")
I("v_lshlrev_b32 v10, 4, v10")
I("v_lshrrev_b32 v11, 5, v0")
I("v_mul_u32_u24 v11, 4608, v11")
I("v_add3_u32 v10, v10, v11, s74")
for r in range(12, 16):
    I(f"v_mov_b32 v{r}, 0")
I("ds_write_b128 v10, v[12:15] offset:4096")
I("s_mov_b64 exec, s[18:19]")
I("s_waitcnt lgkmcnt(0)")
I("s_barrier")
for k in range(5):
    I(f"v_mov_b32 v{140+k}, v{145+k}")
I(f"s_add_u32 s74, s74, {KR_STRIDE}")
I(f"s_cmp_lg_u32 s74, {2*KR_STRIDE}")
I("s_cbranch_scc1 B_kloop")
MARK(0)
I(f"s_mov_b32 s76, {LNF}")
I(f"s_mov_b32 s77, {LNF + 256}")
wait_flags([(76, 64), (77, 64)])
MARK(1)
I("v_and_b32 v1, 15, v0")
I("v_bfe_u32 v2, v0, 4, 2")
I("v_lshrrev_b32 v3, 6, v0")
I(f"s_mul_i32 s6, s2, {2*XNT_STRIDE}")
I(f"s_add_u32 s6, s6, {WS_XNT}")
I("s_add_u32 s6, s64, s6")
I("s_addc_u32 s7, s65, 0")
I("v_lshlrev_b32 v4, 4, v0")
I("v_add_u32 v5, 0x1000, v4")
I(f"v_add_u32 v9, {XNT_STRIDE}, v4")
I("global_load_dwordx4 v[36:39], v4, s[6:7] sc1")
I("global_load_dwordx4 v[40:43], v4, s[6:7] offset:2 sc1")
I("global_load_dwordx4 v[44:47], v9, s[6:7] sc1")
I("global_load_dwordx4 v[48:51], v9, s[6:7] offset:2 sc1")
I("s_mov_b64 s[16:17], exec")
I("v_cmp_gt_u32 vcc, 3, v0")
I("s_and_saveexec_b64 s[18:19], vcc")
I("v_add_u32 v10, 0x1000, v9")
I("global_load_dwordx4 v[52:55], v5, s[6:7] sc1")
I("global_load_dwordx4 v[56:59], v5, s[6:7] offset:2 sc1")
I("global_load_dwordx4 v[60:63], v10, s[6:7] sc1")
I("global_load_dwordx4 v[64:67], v10, s[6:7] offset:2 sc1")
I("s_mov_b64 exec, s[16:17]")
I("s_waitcnt vmcnt(0)")
I(f"ds_write_b128 v4, v[36:39] offset:{UB}")
I(f"ds_write_b128 v4, v[40:43] offset:{UB+XNT_STRIDE}")
I(f"ds_write_b128 v4, v[44:47] offset:{UB+2*XNT_STRIDE}")
I(f"ds_write_b128 v4, v[48:51] offset:{UB+3*XNT_STRIDE}")
I("v_cmp_gt_u32 vcc, 3, v0")
I("s_and_saveexec_b64 s[18:19], vcc")
I(f"ds_write_b128 v5, v[52:55] offset:{UB}")
I(f"ds_write_b128 v5, v[56:59] offset:{UB+XNT_STRIDE}")
I(f"ds_write_b128 v5, v[60:63] offset:{UB+2*XNT_STRIDE}")
I(f"ds_write_b128 v5, v[64:67] offset:{UB+3*XNT_STRIDE}")
I("s_mov_b64 exec, s[16:17]")
I("s_waitcnt lgkmcnt(0)")
I("s_barrier")
MARK(2)
I("v_lshrrev_b32 v4, 1, v3")
I("v_lshl_add_u32 v5, v2, 3, v1")
I("v_add_u32 v5, 1, v5")
I("v_and_b32 v7, 1, v5")
I("v_sub_u32 v5, v5, v7")
I("v_lshlrev_b32 v5, 1, v5")
I(f"v_mul_u32_u24 v7, {XNT_STRIDE}, v7")
I("v_add_u32 v5, v5, v7")
I(f"v_mul_u32_u24 v7, {2*XNT_STRIDE}, v4")
I("v_add_u32 v5, v5, v7")
I("v_and_b32 v7, 1, v3")
I("v_lshl_add_u32 v5, v7, 8, v5")
I(f"v_add_u32 v232, {UB}, v5")
for c in range(1, 8):
    I(f"v_add_u32 v{232+c}, {512*c}, v232")
I(f"v_mul_u32_u24 v6, {KR_STRIDE}, v4")
I("v_lshl_add_u32 v6, v2, 4, v6")
I("v_lshl_add_u32 v6, v7, 8, v6")
I("v_lshlrev_b32 v7, 5, v1")
I("v_sub_u32 v6, v6, v7")
I("v_add_u32 v6, 480, v6")
CA0 = 8
CBUF = 40


def creads(r):
    bb = CBUF + 96 * (r & 1)
    out = []
    for c in range(8):
        out.append(f"ds_read2_b32 v[{bb+4*c}:{bb+4*c+1}], v{232+c} offset0:{16*r} offset1:{16*r+1}")
        out.append(f"ds_read2_b32 v[{bb+4*c+2}:{bb+4*c+3}], v{232+c} offset0:{16*r+2} offset1:{16*r+3}")
    for n in range(8):
        o = 3584 - 512 * n + 64 * r
        out.append(f"ds_read_b128 v[{bb+32+8*n}:{bb+32+8*n+3}], v6 offset:{o}")
        out.append(f"ds_read_b128 v[{bb+36+8*n}:{bb+36+8*n+3}], v6 offset:{o+4608}")
    return out


for x in creads(0):
    I(x)
for r in range(4):
    I("s_waitcnt lgkmcnt(0)")
    nxt = creads(r + 1) if r < 3 else []
    bb = CBUF + 96 * (r & 1)
    mf = []
    for T in range(8):
        acc = CA0 + 4 * T
        for c in range(T + 1):
            n = T - c
            first = (r == 0 and c == 0)
            src = "0" if first else f"v[{acc}:{acc+3}]"
            mf.append(f"v_mfma_f32_16x16x32_bf16 v[{acc}:{acc+3}], v[{bb+4*c}:{bb+4*c+3}], v[{bb+32+8*n}:{bb+32+8*n+3}], {src}")
            mf.append(f"v_mfma_f32_16x16x32_bf16 v[{acc}:{acc+3}], v[{bb+4*c}:{bb+4*c+3}], v[{bb+36+8*n}:{bb+36+8*n+3}], v[{acc}:{acc+3}]")
    k = 0
    for idx, m in enumerate(mf):
        I(m)
        if k < len(nxt) and idx % 2 == 1:
            I(nxt[k]); k += 1
    while k < len(nxt):
        I(nxt[k]); k += 1
I("s_barrier")
I("v_and_b32 v5, 63, v0")
I("v_lshlrev_b32 v5, 4, v5")
I("v_lshl_add_u32 v6, v3, 12, v5")
I("v_xor_b32 v7, 1, v3")
I("v_lshl_add_u32 v5, v7, 12, v5")
I("s_lshl_b32 s10, s2, 13")
I(f"s_add_u32 s10, s10, {WS_YT}")
I("s_add_u32 s10, s64, s10")
I("s_addc_u32 s11, s65, 0")
I("v_lshlrev_b32 v7, 12, v4")
I("v_lshl_add_u32 v7, v1, 5, v7")
I("v_lshl_add_u32 v7, v2, 3, v7")
I("s_lshl_b32 s74, s2, 2")
I(f"s_add_u32 s74, s74, {YF}")
I("s_and_b32 s9, s69, 1")
I("s_cmp_eq_u32 s9, 1")
I("s_cbranch_scc1 B_cv1")
for h in range(2):
    if h:
        L("B_cv1")
    keep = [4 * h + j for j in range(4)]
    give = [4 * (1 - h) + j for j in range(4)]
    for j, T in enumerate(give):
        I(f"ds_write_b128 v6, v[{CA0+4*T}:{CA0+4*T+3}] offset:{1024*j}")
    I("s_waitcnt lgkmcnt(0)")
    I("s_barrier")
    for j in range(4):
        I(f"ds_read_b128 v[{40+4*j}:{43+4*j}], v5 offset:{1024*j}")
    I("s_waitcnt lgkmcnt(0)")
    for j, T in enumerate(keep):
        acc = CA0 + 4 * T
        for r_ in range(4):
            I(f"v_add_f32 v{acc+r_}, v{acc+r_}, v{40+4*j+r_}")
        I(f"v_cvt_pk_bf16_f32 v{56+2*j}, v{acc}, v{acc+1}")
        I(f"v_cvt_pk_bf16_f32 v{57+2*j}, v{acc+2}, v{acc+3}")
        I(f"global_store_dwordx2 v7, v[{56+2*j}:{57+2*j}], s[10:11] offset:{512*T} sc1")
    if h == 0:
        I("s_branch B_pub")
L("B_pub")
MARK(3)
publish(74)
I("s_endpgm")
L("X_exit")
lines.append("    s_endpgm")

E('.section .rodata,"a"')
E(".p2align 6")
E(f".amdhsa_kernel {NAME}_kernel")
E("  .amdhsa_next_free_vgpr 256")
E("  .amdhsa_next_free_sgpr 96")
E("  .amdhsa_accum_offset 256")
E("  .amdhsa_group_segment_fixed_size 0")
E("  .amdhsa_kernarg_size 104")
E("  .amdhsa_user_sgpr_count 2")
E("  .amdhsa_user_sgpr_kernarg_segment_ptr 1")
E("  .amdhsa_system_sgpr_workgroup_id_x 1")
E("  .amdhsa_float_denorm_mode_32 3")
E(".end_amdhsa_kernel")
open(OUT, "w").write("\n".join(lines) + "\n")
print("wrote", OUT, len(lines), "lines")
```

```python
import sys, os

NAME = "recurrent_scan__ssm_conv_s4d__dense_activation_relu__prompt"
OUT = sys.argv[1] if len(sys.argv) > 1 else f"cdna_kernels/{NAME}.s"
STAMP = int(os.environ.get("STAMP", "0"))

WS_XN = 0x0000000
WS_XNT = 0x0200000
XNT_STRIDE = 4160
WS_W1T = 0x0400000
WS_W2T = 0x0600000
KR_STRIDE = 9216
WS_H = 0x1000000
WS_YT = 0x1800000
WS_FLG = 0x1C00000
LNF, W1F, W2F, HF, YF, LNF2, DUMMYF = 0, 1024, 2048, 3072, 4096, 5120, 6144

NA, NB = 224, 224
GRID = NA + NB
LDS = 70144

lines = []


def E(s=""):
    lines.append(s)


def I(s):
    if STAMP and s == "s_endpgm":
        for x in ("s_mov_b64 exec, -1",
                  "s_memrealtime s[34:35]", "s_memtime s[36:37]",
                  "s_waitcnt vmcnt(0) lgkmcnt(0)",
                  f"s_add_u32 s38, s64, {0x2000000}", "s_addc_u32 s39, s65, 0",
                  "s_lshl_b32 s2, s28, 2", "s_add_u32 s2, s2, s69", "s_lshl_b32 s2, s2, 5", "v_mov_b32 v1, s2",
                  "v_mov_b32 v4, s30", "v_mov_b32 v5, s31", "v_mov_b32 v6, s34", "v_mov_b32 v7, s35",
                  "v_mov_b32 v8, s32", "v_mov_b32 v9, s33", "v_mov_b32 v10, s36", "v_mov_b32 v11, s37",
                  "global_store_dwordx4 v1, v[4:7], s[38:39]", "global_store_dwordx4 v1, v[8:11], s[38:39] offset:16",
                  "v_mov_b32 v4, s40", "v_mov_b32 v5, s42", "v_mov_b32 v6, s44", "v_mov_b32 v7, s46",
                  "v_mov_b32 v8, s48", "v_mov_b32 v9, s50", "v_mov_b32 v10, s52", "v_mov_b32 v11, s54",
                  "v_add_u32 v1, 0x100000, v1",
                  "global_store_dwordx4 v1, v[4:7], s[38:39]", "global_store_dwordx4 v1, v[8:11], s[38:39] offset:16"):
            lines.append("    " + x)
    lines.append("    " + s)


def KMARK(n):
    if STAMP and os.environ.get("KM"):
        lines.append(f"    s_memtime s[{40+2*n}:{41+2*n}]")


def MARK(n):
    if STAMP and not os.environ.get("KM"):
        lines.append(f"    s_memtime s[{40+2*n}:{41+2*n}]")


def L(lbl):
    lines.append(lbl + ":")


_uid = [0]


def uid(p):
    _uid[0] += 1
    return f"{p}_{_uid[0]}"


def interleave(chains):
    chains = [list(c) for c in chains]
    while any(chains):
        for c in chains:
            if c:
                I(c.pop(0))


def bf16r(dst, src):
    I(f"v_cvt_pk_bf16_f32 v{dst}, v{src}, v{src}")
    I(f"v_lshlrev_b32 v{dst}, 16, v{dst}")


def get_nonce():
    a, b = uid("N_poll"), uid("N_ok")
    I("s_cmp_lg_u32 s68, 0")
    I(f"s_cbranch_scc1 {b}")
    I("s_waitcnt vmcnt(0)")
    I("v_readfirstlane_b32 s68, v255")
    I("s_cmp_lg_u32 s68, 0")
    I(f"s_cbranch_scc1 {b}")
    I("v_mov_b32 v253, 0")
    L(a)
    I("global_load_dword v254, v253, s[66:67] sc1")
    I("s_waitcnt vmcnt(0)")
    I("v_readfirstlane_b32 s68, v254")
    I("s_cmp_lg_u32 s68, 0")
    I(f"s_cbranch_scc1 {b}")
    I("s_sleep 4")
    I(f"s_branch {a}")
    L(b)


def publish(*soffs):
    e = uid("PB_end")
    I("s_waitcnt vmcnt(0) lgkmcnt(0)")
    I("s_barrier")
    I("s_cmp_lg_u32 s69, 0")
    I(f"s_cbranch_scc1 {e}")
    get_nonce()
    I("v_mov_b32 v254, s68")
    I("s_mov_b64 s[72:73], exec")
    I("s_mov_b64 exec, 1")
    for soff in soffs:
        I(f"v_mov_b32 v253, s{soff}")
        I("global_store_dword v253, v254, s[70:71] sc1")
    I("s_mov_b64 exec, s[72:73]")
    L(e)


def wait_flags(specs, first_sleep=0):
    e = uid("W_end")
    I("s_cmp_lg_u32 s69, 0")
    I(f"s_cbranch_scc1 {e}")
    get_nonce()
    if first_sleep:
        I(f"s_sleep {first_sleep}")
    for (soff, n) in specs:
        a, b = uid("W_poll"), uid("W_ok")
        I("v_and_b32 v253, 63, v0")
        I(f"v_min_u32 v253, {n-1}, v253")
        I(f"v_lshl_add_u32 v253, v253, 2, s{soff}")
        L(a)
        I("global_load_dword v254, v253, s[70:71] sc1")
        I("s_waitcnt vmcnt(0)")
        I("v_cmp_ne_u32 vcc, s68, v254")
        I("s_cmp_eq_u64 vcc, 0")
        I(f"s_cbranch_scc1 {b}")
        I("s_sleep 6")
        I(f"s_branch {a}")
        L(b)
    L(e)
    I("s_barrier")


HEADER = open(f"cdna_kernels/{NAME}.s.ref").read().split("; Override launch")[0]
E(HEADER.rstrip("\n"))
E(f"; @launch grid=({GRID},1,1) block=(256,1,1) lds={LDS}")
E('.amdgcn_target "amdgcn-amd-amdhsa--gfx950"')
E(".text")
E(f".globl {NAME}_kernel")
E(".p2align 8")
E(f".type {NAME}_kernel,@function")
L(f"{NAME}_kernel")
I(f"s_cmp_ge_u32 s2, {GRID}")
I("s_cbranch_scc1 X_exit")
I("s_mov_b32 s28, s2")
if STAMP:
    I("s_memrealtime s[30:31]")
    I("s_memtime s[32:33]")
I("s_load_dwordx4 s[64:67], s[0:1], 88")
I("v_readfirstlane_b32 s69, v0")
I("s_lshr_b32 s69, s69, 6")
I("s_mov_b32 s68, 0")
I("s_waitcnt lgkmcnt(0)")
I("s_mov_b32 s72, s64")
I("s_mov_b32 s73, s65")
I("s_mov_b32 s64, s66")
I("s_mov_b32 s65, s67")
I("s_mov_b32 s66, s72")
I("s_mov_b32 s67, s73")
I(f"s_add_u32 s70, s64, {WS_FLG}")
I("s_addc_u32 s71, s65, 0")
I("s_or_b32 s72, s2, s69")
I("s_cmp_lg_u32 s72, 0")
I("s_cbranch_scc1 X_nononce")
I("s_memrealtime s[72:73]")
I("s_waitcnt lgkmcnt(0)")
I("s_or_b32 s68, s72, 1")
I("v_mov_b32 v253, 0")
I("v_mov_b32 v254, s68")
I("s_mov_b64 exec, 1")
I("global_store_dword v253, v254, s[66:67] sc1")
I("s_mov_b64 exec, -1")
L("X_nononce")
I("v_mov_b32 v253, 0")
I("global_load_dword v255, v253, s[66:67] sc1")
I(f"s_cmp_ge_u32 s2, {NA}")
I("s_cbranch_scc1 B_start")

I("s_setprio 3")
I("s_cmp_ge_u32 s2, 128")
I("s_cbranch_scc1 A_wtonly")
I("s_load_dwordx2 s[4:5], s[0:1], 0")
I("s_mov_b32 s14, s64")
I("s_mov_b32 s15, s65")
I("s_mov_b32 s3, s2")
I("v_lshrrev_b32 v1, 6, v0")
I("v_and_b32 v2, 63, v0")
I("s_lshl_b32 s6, s3, 4")
I("v_lshl_add_u32 v3, v1, 2, s6")
I("v_mul_u32_u24 v3, 896, v3")
I("v_lshl_add_u32 v3, v2, 4, v3")
I("s_mul_i32 s7, s3, 14336")
I("v_lshrrev_b32 v29, 2, v2")
I("v_lshlrev_b32 v29, 10, v29")
I("v_and_b32 v28, 3, v2")
I("v_lshl_add_u32 v29, v28, 8, v29")
I("v_lshl_add_u32 v29, v1, 6, v29")
I("s_mov_b32 s20, 0x3b124925")
I("s_mov_b32 s21, 0x43e00000")
I("s_mov_b32 s22, 0x3727c5ac")
for r in range(8, 24):
    I(f"v_mov_b32 v{r}, 0")
I("s_mov_b64 s[16:17], exec")
I("s_mov_b32 s18, -1")
I("s_mov_b32 s19, 0x00ffffff")
I("s_waitcnt lgkmcnt(0)")
I("s_mov_b64 exec, s[18:19]")
for k in range(4):
    I(f"global_load_dwordx4 v[{8+4*k}:{11+4*k}], v3, s[4:5] offset:{896*k}")
I("s_mov_b64 exec, s[16:17]")
I("s_waitcnt vmcnt(0)")
for k in range(4):
    for j in range(4):
        I(f"v_lshlrev_b32 v{32+8*k+2*j}, 16, v{8+4*k+j}")
        I(f"v_and_b32 v{33+8*k+2*j}, 0xffff0000, v{8+4*k+j}")


def rows(fmt, **kw):
    for k in range(4):
        b = 32 + 8 * k
        I(fmt.format(k=k, s=8 + k, t=12 + k, m=16 + k, u=20 + k, w=64 + k, x=68 + k, sg=24 + k,
                     b0=b, b1=b + 1, b2=b + 2, b3=b + 3, b4=b + 4, b5=b + 5, b6=b + 6, b7=b + 7, **kw))


def dpp4():
    for sh in (1, 2, 4, 8):
        rows("v_add_f32_dpp v{s}, v{s}, v{s} row_shr:%d row_mask:0xf bank_mask:0xf bound_ctrl:0" % sh)
    rows("v_add_f32_dpp v{s}, v{s}, v{s} row_bcast:15 row_mask:0xa bank_mask:0xf")
    rows("v_add_f32_dpp v{s}, v{s}, v{s} row_bcast:31 row_mask:0xc bank_mask:0xf")
    rows("v_readlane_b32 s{sg}, v{s}, 63")


rows("v_add_f32 v{s}, v{b0}, v{b1}")
rows("v_add_f32 v{t}, v{b2}, v{b3}")
rows("v_add_f32 v{m}, v{b4}, v{b5}")
rows("v_add_f32 v{u}, v{b6}, v{b7}")
rows("v_add_f32 v{s}, v{s}, v{t}")
rows("v_add_f32 v{m}, v{m}, v{u}")
rows("v_add_f32 v{s}, v{s}, v{m}")
dpp4()
rows("v_mov_b32 v{t}, s{sg}")
rows("v_mul_f32 v{m}, s20, v{t}")
rows("v_fma_f32 v{u}, -v{m}, s21, v{t}")
rows("v_fma_f32 v{m}, v{u}, s20, v{m}")
rows("v_mov_b32 v{s}, 0")
I("s_mov_b64 exec, s[18:19]")
for j in range(8):
    rows("v_sub_f32 v{t}, v{bj}, v{m}".replace("{bj}", "{b%d}" % j))
    rows("v_fmac_f32 v{s}, v{t}, v{t}")
I("s_mov_b64 exec, s[16:17]")
I("s_nop 1")
dpp4()
rows("v_mov_b32 v{t}, s{sg}")
rows("v_mul_f32 v{u}, s20, v{t}")
rows("v_fma_f32 v{w}, -v{u}, s21, v{t}")
rows("v_fma_f32 v{u}, v{w}, s20, v{u}")
rows("v_cvt_pk_bf16_f32 v{u}, v{u}, v{u}")
rows("v_cvt_pk_bf16_f32 v{m}, v{m}, v{m}")
rows("v_lshlrev_b32 v{u}, 16, v{u}")
rows("v_lshlrev_b32 v{m}, 16, v{m}")
rows("v_add_f32 v{u}, s22, v{u}")
rows("v_cvt_pk_bf16_f32 v{u}, v{u}, v{u}")
rows("v_lshlrev_b32 v{u}, 16, v{u}")
rows("v_sqrt_f32 v{w}, v{u}")
for j in range(8):
    rows("v_sub_f32 v{bj}, v{bj}, v{m}".replace("{bj}", "{b%d}" % j))
rows("v_rcp_f32 v{x}, v{w}")
rows("v_fma_f32 v{t}, -v{w}, v{w}, v{u}")
rows("v_mul_f32 v{x}, 0.5, v{x}")
rows("v_fma_f32 v{w}, v{t}, v{x}, v{w}")
rows("v_cvt_pk_bf16_f32 v{w}, v{w}, v{w}")
rows("v_lshlrev_b32 v{w}, 16, v{w}")
rows("v_rcp_f32 v{x}, v{w}")
for j in range(0, 8, 2):
    rows("v_cvt_pk_bf16_f32 v{t}, v{bj}, v{bk}".replace("{bj}", "{b%d}" % j).replace("{bk}", "{b%d}" % (j + 1)))
    rows("v_lshlrev_b32 v{bj}, 16, v{t}".replace("{bj}", "{b%d}" % j))
    rows("v_and_b32 v{bk}, 0xffff0000, v{t}".replace("{bk}", "{b%d}" % (j + 1)))
rows("v_fma_f32 v{t}, -v{w}, v{x}, 1.0")
rows("v_fma_f32 v{x}, v{t}, v{x}, v{x}")
for j in range(8):
    rows("v_mul_f32 v{t}, v{bj}, v{x}".replace("{bj}", "{b%d}" % j))
    rows("v_fma_f32 v{u}, -v{t}, v{w}, v{bj}".replace("{bj}", "{b%d}" % j))
    rows("v_fma_f32 v{bj}, v{u}, v{x}, v{t}".replace("{bj}", "{b%d}" % j))
for j in range(4):
    for k in range(4):
        b = 32 + 8 * k
        I(f"v_cvt_pk_bf16_f32 v{8+4*k+j}, v{b+2*j}, v{b+2*j+1}")
I("v_lshlrev_b32 v30, 2, v1")
I("v_mul_u32_u24 v30, 896, v30")
I("v_lshl_add_u32 v30, v2, 4, v30")
I("s_mov_b64 exec, s[18:19]")
for k in range(4):
    I(f"ds_write_b128 v29, v[{8+4*k}:{11+4*k}] offset:{16384 + 16*k}")
I("s_mov_b64 exec, s[16:17]")
I("s_waitcnt lgkmcnt(0)")
I("s_barrier")
I("v_lshlrev_b32 v4, 4, v0")
I("v_add_u32 v5, s7, v4")
for q in range(3):
    I(f"ds_read_b128 v[{8+4*q}:{11+4*q}], v4 offset:{16384 + 4096*q}")
I("v_cmp_gt_u32 vcc, 128, v0")
I("s_and_saveexec_b64 s[16:17], vcc")
I(f"ds_read_b128 v[20:23], v4 offset:{16384 + 12288}")
I("v_add_u32 v6, 0x3000, v5")
I("s_waitcnt lgkmcnt(0)")
I("global_store_dwordx4 v6, v[20:23], s[14:15] sc1")
I("s_mov_b64 exec, s[16:17]")
I("v_add_u32 v6, 0x1000, v5")
I("v_add_u32 v7, 0x2000, v5")
I("s_waitcnt lgkmcnt(0)")
I("global_store_dwordx4 v5, v[8:11], s[14:15] sc1")
I("global_store_dwordx4 v6, v[12:15], s[14:15] sc1")
I("global_store_dwordx4 v7, v[16:19], s[14:15] sc1")
I("s_lshl_b32 s74, s3, 2")
publish(74)
I("s_branch A_g1")
L("A_wtonly")
I("s_load_dwordx4 s[4:7], s[0:1], 64")
I("s_sub_u32 s3, s2, 128")
I("s_mov_b32 s75, 96")
I("s_cmp_lt_u32 s3, 4")
I("s_cselect_b32 s75, 192, s75")


def wt3(which):
    if which == 1:
        sst, dtile, magic, nk, sp, wsoff = 3584, 14336, 9363, 7, 4, WS_W1T
    else:
        sst, dtile, magic, nk, sp, wsoff = 896, 57344, 2341, 28, 6, WS_W2T
    I(f"s_add_u32 s14, s64, {wsoff}")
    I("s_addc_u32 s15, s65, 0")
    I("v_lshrrev_b32 v1, 3, v0")
    I("v_and_b32 v2, 7, v0")
    I(f"v_mul_u32_u24 v3, {sst}, v1")
    I("v_lshl_add_u32 v3, v2, 4, v3")
    I("v_lshlrev_b32 v5, 7, v1")
    I("v_lshl_add_u32 v5, v2, 4, v5")
    for j in range(3):
        sj = 80 + 4 * j
        if j == 0:
            I(f"s_mov_b32 s{sj}, s3")
        elif j == 1:
            I(f"s_add_u32 s{sj}, s3, 96")
        else:
            I(f"s_add_u32 s{sj}, s3, s75")
        I(f"s_mul_i32 s{sj+2}, s{sj}, {magic}")
        I(f"s_lshr_b32 s{sj+2}, s{sj+2}, 16")
        I(f"s_mul_i32 s{sj+1}, s{sj+2}, {nk}")
        I(f"s_sub_u32 s{sj+1}, s{sj}, s{sj+1}")
        if which == 1:
            I(f"s_and_b32 s{sj+3}, s{sj+2}, 1")
            I(f"s_mul_i32 s{sj+3}, s{sj+3}, 7")
            I(f"s_add_u32 s{sj+3}, s{sj+3}, s{sj+1}")
            I(f"s_lshl_b32 s{sj+3}, s{sj+3}, 2")
            I(f"s_lshr_b32 s12, s{sj+2}, 1")
            I("s_lshl_b32 s12, s12, 6")
            I(f"s_add_u32 s{sj+3}, s{sj+3}, s12")
            I(f"s_add_u32 s{sj+3}, s{sj+3}, {W1F}")
        else:
            I(f"s_lshl_b32 s{sj+3}, s{sj+2}, 7")
            I(f"s_lshl_b32 s12, s{sj+1}, 2")
            I(f"s_add_u32 s{sj+3}, s{sj+3}, s12")
            I(f"s_add_u32 s{sj+3}, s{sj+3}, {W2F}")
    I("s_waitcnt lgkmcnt(0)")
    for j in range(3):
        sj = 80 + 4 * j
        I(f"s_mul_i32 s12, s{sj+1}, {64*sst}")
        I(f"s_lshl_b32 s13, s{sj+2}, 7")
        I("s_add_u32 s12, s12, s13")
        I("v_add_u32 v4, s12, v3")
        I(f"v_add_u32 v6, {32*sst}, v4")
        I(f"global_load_dwordx4 v[{8+8*j}:{11+8*j}], v4, s[{sp}:{sp+1}]")
        I(f"global_load_dwordx4 v[{12+8*j}:{15+8*j}], v6, s[{sp}:{sp+1}]")
    for j in range(3):
        I(f"s_waitcnt vmcnt({4-2*j})")
        I(f"ds_write_b128 v5, v[{8+8*j}:{11+8*j}] offset:{8192*j}")
        I(f"ds_write_b128 v5, v[{12+8*j}:{15+8*j}] offset:{8192*j+4096}")
    I("s_waitcnt lgkmcnt(0)")
    I("s_barrier")
    I("v_and_b32 v1, 15, v0")
    I("v_bfe_u32 v2, v0, 4, 2")
    I("v_lshrrev_b32 v3, 6, v0")
    if which == 1:
        I("v_lshrrev_b32 v4, 2, v1")
        I("v_lshlrev_b32 v4, 4, v4")
        I("v_lshl_add_u32 v4, v3, 2, v4")
        I("v_and_b32 v6, 3, v1")
        I("v_add_u32 v4, v4, v6")
    else:
        I("v_lshl_add_u32 v4, v3, 4, v1")
    I("v_lshlrev_b32 v5, 10, v2")
    I("v_lshl_add_u32 v5, v4, 1, v5")
    I(f"v_mul_u32_u24 v3, {dtile}, v3")
    I("v_and_b32 v4, 63, v0")
    I("v_lshl_add_u32 v3, v4, 4, v3")
    for j in range(3):
        sj = 80 + 4 * j
        for c in range(2):
            for e in range(8):
                I(f"ds_read_u16 v{40 + 8*c + e}, v5 offset:{8192*j + 4096*c + 128*e}")
            if c == 0:
                I("s_waitcnt lgkmcnt(0)")
        I(f"s_mul_i32 s12, s{sj+2}, {4*dtile}")
        I(f"s_lshl_b32 s13, s{sj+1}, 11")
        I("s_add_u32 s12, s12, s13")
        I("v_add_u32 v6, s12, v3")
        I("s_waitcnt lgkmcnt(0)")
        for t in range(8):
            I(f"v_lshl_or_b32 v{8+8*j+t}, v{41+2*t}, 16, v{40+2*t}")
        I(f"global_store_dwordx4 v6, v[{8+8*j}:{11+8*j}], s[14:15] sc1")
        I(f"global_store_dwordx4 v6, v[{12+8*j}:{15+8*j}], s[14:15] offset:1024 sc1")
    publish(83, 87, 91)


wt3(1)
wt3(2)

L("A_g1")
MARK(0)
I(f"s_setprio {os.environ.get('PRIO_G', '0')}")
I("v_and_b32 v1, 15, v0")
I("v_bfe_u32 v2, v0, 4, 2")
I("v_lshrrev_b32 v3, 6, v0")
I("s_and_b32 s10, s2, 7")
I("s_lshr_b32 s3, s2, 3")
I("s_mul_i32 s8, s3, 9363")
I("s_lshr_b32 s8, s8, 16")
I("s_mul_i32 s9, s8, 7")
I("s_sub_u32 s9, s3, s9")
I("s_and_b32 s11, s10, 1")
I("s_mul_i32 s11, s11, 7")
I("s_add_u32 s9, s9, s11")
I("s_lshr_b32 s10, s10, 1")
I("s_lshl_b32 s10, s10, 2")
I("s_add_u32 s8, s8, s10")
I("s_lshl_b32 s76, s8, 5")
I("s_lshl_b32 s77, s9, 6")
I(f"s_add_u32 s77, s77, {W1F}")
I("s_lshl_b32 s74, s8, 6")
I("s_lshl_b32 s10, s9, 2")
I("s_add_u32 s74, s74, s10")
I(f"s_add_u32 s74, s74, {HF}")
wait_flags([(76, 8), (77, 14)])
MARK(1)
I(f"s_add_u32 s4, s64, {WS_W1T}")
I("s_addc_u32 s5, s65, 0")
I(f"s_add_u32 s6, s64, {WS_XN}")
I("s_addc_u32 s7, s65, 0")
I("s_lshl_b32 s9, s9, 7")
I("s_lshl_b32 s8, s8, 7")
I("v_and_b32 v4, 1, v3")
I("v_lshl_add_u32 v4, v4, 6, s9")
I("v_lshrrev_b32 v5, 1, v3")
I("v_lshl_add_u32 v5, v5, 6, s8")
I("v_and_b32 v7, 63, v0")
I("v_lshlrev_b32 v7, 4, v7")
I("s_mul_i32 s10, s9, 896")
I("s_mul_i32 s11, s8, 896")
I("v_mul_u32_u24 v6, 28672, v3")
I("v_add_u32 v6, v6, v7")
I("v_add_u32 v8, s10, v6")
I("v_add_u32 v9, 14336, v8")
I("v_add_u32 v10, s11, v6")
I("v_add_u32 v11, 14336, v10")
I("s_lshl_b32 s12, s69, 11")
I("v_and_b32 v12, 1, v3")
I("v_lshl_add_u32 v12, v12, 12, v7")
I("v_lshrrev_b32 v13, 1, v3")
I("v_lshl_add_u32 v13, v13, 12, v7")
I("v_add_u32 v13, 0x2000, v13")
G_ACC = 16
G_FR = 80


def g1_dma(st):
    slot = (st % 4) * 16384
    if st:
        I("s_add_u32 s4, s4, 1024")
        I("s_addc_u32 s5, s5, 0")
        I("s_add_u32 s6, s6, 1024")
        I("s_addc_u32 s7, s7, 0")
    for (va, sb, off) in ((8, 4, 0), (9, 4, 1024), (10, 6, 8192), (11, 6, 9216)):
        I(f"s_add_u32 m0, s12, {slot + off}")
        I("s_nop 0")
        I(f"global_load_lds_dwordx4 v{va}, s[{sb}:{sb+1}] sc1")


def g1_reads(st):
    slot = (st % 4) * 16384
    fb = G_FR + 32 * (st & 1)
    for j in range(4):
        I(f"ds_read_b128 v[{fb+4*j}:{fb+4*j+3}], v12 offset:{slot + 1024*j}")
    for j in range(4):
        I(f"ds_read_b128 v[{fb+16+4*j}:{fb+16+4*j+3}], v13 offset:{slot + 1024*j}")


NS1 = 14
for st in range(4):
    g1_dma(st)
I("s_waitcnt vmcnt(12)")
I("s_barrier")
g1_reads(0)
for st in range(NS1):
    if st + 1 < NS1:
        newer = min(NS1 - 1, st + 3) - (st + 1)
        I(f"s_waitcnt vmcnt({4*newer}) lgkmcnt(0)")
        I("s_barrier")
        if st + 4 < NS1:
            g1_dma(st + 4)
        g1_reads(st + 1)
    else:
        I("s_waitcnt lgkmcnt(0)")
    fb = G_FR + 32 * (st & 1)
    for a_ in range(4):
        for b_ in range(4):
            c = G_ACC + 16 * a_ + 4 * b_
            src = "0" if st == 0 else f"v[{c}:{c+3}]"
            I(f"v_mfma_f32_16x16x32_bf16 v[{c}:{c+3}], v[{fb+4*a_}:{fb+4*a_+3}], v[{fb+16+4*b_}:{fb+16+4*b_+3}], {src}")
I(f"s_add_u32 s4, s64, {WS_H}")
I("s_addc_u32 s5, s65, 0")
I("v_mul_u32_u24 v6, 3584, v5")
I("v_lshl_add_u32 v6, v4, 5, v6")
I("v_lshrrev_b32 v7, 1, v2")
I("v_lshl_add_u32 v6, v7, 10, v6")
I("v_and_b32 v7, 1, v2")
I("v_lshl_add_u32 v6, v7, 9, v6")
I("v_lshl_add_u32 v6, v1, 4, v6")
I("s_nop 4")
for b in range(4):
    for a in range(4):
        c = G_ACC + 16 * a + 4 * b
        for r in range(4):
            I(f"v_max_f32 v{c+r}, 0, v{c+r}")
        I(f"v_cvt_pk_bf16_f32 v{80+8*b+2*a}, v{c}, v{c+1}")
        I(f"v_cvt_pk_bf16_f32 v{81+8*b+2*a}, v{c+2}, v{c+3}")
    if b > 0:
        I(f"v_add_u32 v6, {57344}, v6")
    I(f"global_store_dwordx4 v6, v[{80+8*b}:{83+8*b}], s[4:5] sc1")
    I(f"global_store_dwordx4 v6, v[{84+8*b}:{87+8*b}], s[4:5] offset:256 sc1")
publish(74)
MARK(2)

I("s_load_dwordx2 s[16:17], s[0:1], 0")
I("s_load_dwordx2 s[18:19], s[0:1], 48")
I("s_load_dwordx2 s[20:21], s[0:1], 80")
I("s_mov_b32 s14, s64")
I("s_mov_b32 s15, s65")
I("v_and_b32 v4, 63, v0")
I("s_and_b32 s10, s2, 7")
I("s_lshr_b32 s3, s2, 3")
I("s_mul_i32 s8, s3, 9363")
I("s_lshr_b32 s8, s8, 16")
I("s_mul_i32 s9, s8, 7")
I("s_sub_u32 s9, s3, s9")
I("s_lshl_b32 s10, s10, 2")
I("s_add_u32 s8, s8, s10")
I("s_lshr_b32 s76, s8, 1")
I("s_lshl_b32 s76, s76, 6")
I(f"s_add_u32 s76, s76, {HF}")
I("s_lshl_b32 s77, s9, 7")
I(f"s_add_u32 s78, s77, {YF}")
I(f"s_add_u32 s77, s77, {W2F}")
I("s_lshl_b32 s9, s9, 6")
I("s_lshl_b32 s8, s8, 6")
wait_flags([(77, 28), (76, 14)])
MARK(3)
I("s_waitcnt lgkmcnt(0)")
I(f"s_add_u32 s4, s64, {WS_W2T}")
I("s_addc_u32 s5, s65, 0")
I(f"s_add_u32 s6, s64, {WS_H}")
I("s_addc_u32 s7, s65, 0")
I(f"s_add_u32 s10, s64, {WS_YT}")
I("s_addc_u32 s11, s65, 0")
EX, EXN, EY, EDK = 232, 240, 216, 208


def fin_late():
    I("v_lshrrev_b32 v249, 2, v4")
    I("v_lshl_add_u32 v249, v3, 4, v249")
    I("v_add_u32 v250, s8, v249")
    I("v_and_b32 v251, 3, v4")
    I("v_mul_u32_u24 v5, 896, v250")
    I("s_lshl_b32 s12, s9, 1")
    I("v_lshl_add_u32 v6, v251, 5, s12")
    I("v_add_u32 v5, v5, v6")
    I(f"global_load_dwordx4 v[{EX}:{EX+3}], v5, s[16:17]")
    I(f"global_load_dwordx4 v[{EX+4}:{EX+7}], v5, s[16:17] offset:16")
    I("v_lshrrev_b32 v248, 4, v250")
    I("v_mul_u32_u24 v248, 14336, v248")
    I("v_and_b32 v7, 15, v250")
    I("v_lshl_add_u32 v248, v7, 4, v248")
    I("v_lshrrev_b32 v7, 6, v6")
    I("v_lshl_add_u32 v248, v7, 10, v248")
    I("v_bfe_u32 v7, v6, 4, 2")
    I("v_lshl_add_u32 v248, v7, 8, v248")
    I(f"global_load_dwordx4 v[{EXN}:{EXN+3}], v248, s[14:15] sc1")
    I(f"global_load_dwordx4 v[{EXN+4}:{EXN+7}], v248, s[14:15] offset:256 sc1")
    I(f"global_load_dwordx4 v[{EDK}:{EDK+3}], v6, s[18:19]")
    I(f"global_load_dwordx4 v[{EDK+4}:{EDK+7}], v6, s[18:19] offset:16")
    I("v_lshlrev_b32 v7, 11, v6")
    I("v_lshl_add_u32 v252, v250, 1, v7")


def gemm_core(sa, sb, va, vb, acc0, buf0, ring, late, nlate):
    NS = 14
    PF = ring - 1

    def loads(s):
        bb = buf0 + 32 * (s % ring)
        off = (s & 3) * 1024
        if s and (s & 3) == 0:
            I(f"s_add_u32 s{sa}, s{sa}, 4096")
            I(f"s_addc_u32 s{sa+1}, s{sa+1}, 0")
            I(f"s_add_u32 s{sb}, s{sb}, 4096")
            I(f"s_addc_u32 s{sb+1}, s{sb+1}, 0")
        for j in range(4):
            I(f"global_load_dwordx4 v[{bb+4*j}:{bb+4*j+3}], v{va+j}, s[{sa}:{sa+1}] offset:{off} sc1")
        for j in range(4):
            I(f"global_load_dwordx4 v[{bb+16+4*j}:{bb+16+4*j+3}], v{vb+j}, s[{sb}:{sb+1}] offset:{off} sc1")

    for s in range(PF):
        loads(s)
    for s in range(NS):
        if s + PF < NS:
            loads(s + PF)
            if s + PF == NS - 1:
                late()
                I(f"s_waitcnt vmcnt({8*PF + nlate})")
            else:
                I(f"s_waitcnt vmcnt({8*PF})")
        else:
            I(f"s_waitcnt vmcnt({8*(NS-1-s) + nlate})")
        bb = buf0 + 32 * (s % ring)
        for a in range(4):
            for b in range(4):
                c = acc0 + 16 * a + 4 * b
                src = "0" if s == 0 else f"v[{c}:{c+3}]"
                I(f"v_mfma_f32_16x16x32_bf16 v[{c}:{c+3}], v[{bb+4*a}:{bb+4*a+3}], v[{bb+16+4*b}:{bb+16+4*b+3}], {src}")


I("v_mul_u32_u24 v7, 14336, v3")
I("v_lshl_add_u32 v7, v4, 4, v7")
I("s_mul_i32 s12, s9, 3584")
I("v_add_u32 v8, s12, v7")
for j in range(1, 4):
    I(f"v_add_u32 v{8+j}, {57344*j}, v8")
I("s_mul_i32 s12, s8, 3584")
I("v_add_u32 v12, s12, v7")
for j in range(1, 4):
    I(f"v_add_u32 v{12+j}, {57344*j}, v12")
F_ACC = 16
F_BUF = 80
gemm_core(4, 6, 8, 12, F_ACC, F_BUF, 4, fin_late, 6)
MARK(4)
I("v_lshl_add_u32 v6, v3, 6, v1")
I("v_mul_u32_u24 v6, 272, v6")
I("v_lshl_add_u32 v6, v2, 4, v6")
I("s_nop 4")
for a_ in range(4):
    for b_ in range(4):
        c = F_ACC + 16 * a_ + 4 * b_
        I(f"ds_write_b128 v6, v[{c}:{c+3}] offset:{16*b_*272 + 64*a_}")
I("s_waitcnt lgkmcnt(0)")
wait_flags([(78, 32)])
MARK(5)
for dd in range(16):
    if dd:
        I("v_add_u32 v252, 0x1000, v252")
    I(f"global_load_ushort v{EY+dd}, v252, s[10:11] sc1")
I("v_mul_u32_u24 v6, 272, v249")
I("v_lshl_add_u32 v6, v251, 6, v6")
for p in range(4):
    for j in range(4):
        I(f"ds_read_b128 v[{80+16*p+4*j}:{83+16*p+4*j}], v6 offset:{p*64*272 + 16*j}")
I("s_mov_b32 s22, 0xbfb8aa3b")
I("s_waitcnt vmcnt(16) lgkmcnt(0)")


def bfr(r):
    return [f"v_cvt_pk_bf16_f32 v{r}, v{r}, v{r}", f"v_lshlrev_b32 v{r}, 16, v{r}"]


def epi1(dd):
    o = 80 + dd
    t1, t2, t3 = 144 + dd, 160 + dd, 176 + dd
    h = dd & 1

    def unp(dst, reg):
        if h:
            return f"v_and_b32 v{dst}, 0xffff0000, v{reg + dd//2}"
        return f"v_lshlrev_b32 v{dst}, 16, v{reg + dd//2}"
    return [f"v_add_f32 v{o}, v{o}, v{o+16}",
            f"v_add_f32 v{o+32}, v{o+32}, v{o+48}",
            unp(t2, EXN), unp(t3, EDK),
            f"v_add_f32 v{o}, v{o}, v{o+32}",
            f"v_mul_f32 v{t2}, v{t2}, v{t3}"] + bfr(o) + bfr(t2) + [
            f"v_mul_f32 v{t1}, s22, v{o}",
            unp(t3, EX),
            f"v_exp_f32 v{t1}, v{t1}",
            "s_nop 0",
            f"v_add_f32 v{t1}, 1.0, v{t1}",
            f"v_rcp_f32 v{t1}, v{t1}",
            "s_nop 0",
            f"v_mul_f32 v{o}, v{o}, v{t1}"] + bfr(o)


def epi2(dd):
    o = 80 + dd
    t1, t2, t3 = 144 + dd, 160 + dd, 176 + dd
    return [f"v_lshlrev_b32 v{t1}, 16, v{EY+dd}",
            f"v_add_f32 v{t2}, v{t2}, v{t1}"] + bfr(t2) + [
            f"v_mul_f32 v{o}, v{o}, v{t2}"] + bfr(o) + [
            f"v_add_f32 v{o}, v{o}, v{t3}"]


for g in range(0, 16, 4):
    interleave([epi1(dd) for dd in range(g, g + 4)])
I("s_waitcnt vmcnt(0)")
for g in range(0, 16, 4):
    interleave([epi2(dd) for dd in range(g, g + 4)])
for j in range(8):
    I(f"v_cvt_pk_bf16_f32 v{16+j}, v{80+2*j}, v{81+2*j}")
I("global_store_dwordx4 v5, v[16:19], s[20:21]")
I("global_store_dwordx4 v5, v[20:23], s[20:21] offset:16")
I("s_endpgm")

L("B_start")
I(f"s_setprio {os.environ.get('PRIO_B', '0')}")
I(f"s_sub_u32 s2, s2, {NA}")
KSTG = 35072
UB = 2 * KR_STRIDE
I("s_load_dwordx4 s[4:7], s[0:1], 8")
I("s_load_dwordx4 s[8:11], s[0:1], 24")
I("s_load_dwordx2 s[12:13], s[0:1], 40")
I("s_lshl_b32 s3, s2, 10")
I("v_lshl_add_u32 v1, v0, 1, s3")
I("s_lshl_b32 s16, s2, 2")
I("v_mov_b32 v7, s16")
I("s_mov_b32 s20, 0x3fb8aa3b")
I("s_mov_b32 s21, 0x32a57060")
I("s_mov_b32 s22, 0x3f317218")
I("s_mov_b32 s23, 0x3e22f983")
I("s_mov_b32 s24, 0x31dc9c88")
I("s_waitcnt lgkmcnt(0)")
for ch in range(2):
    rb = 140 + 5 * ch
    I(f"global_load_ushort v{rb}, v1, s[4:5] offset:{512*ch}")
    I(f"global_load_ushort v{rb+1}, v1, s[6:7] offset:{512*ch}")
    I(f"global_load_ushort v{rb+2}, v1, s[8:9] offset:{512*ch}")
    I(f"global_load_ushort v{rb+3}, v1, s[10:11] offset:{512*ch}")
    I(f"global_load_ushort v{rb+4}, v7, s[12:13] offset:{2*ch}")
I("s_mov_b32 s74, 0")
I("v_mov_b32 v60, 0x80")
for g in range(2):
    es = [4 * g + k for k in range(4)]
    A_, B_, C_, D_, F_ = 10, 14, 48, 52, 56

    def col(fmt):
        for k, e in enumerate(es):
            I(fmt.format(a=A_ + k, b=B_ + k, c=C_ + k, d=D_ + k, f=F_ + k, e=e, o=160 + e))
    col("v_lshl_add_u32 v{a}, v0, 3, {e}")
    col("v_cvt_f32_u32 v{a}, v{a}")
    col("v_cvt_pk_bf16_f32 v{a}, v{a}, v{a}")
    col("v_bfe_u32 v{b}, v{a}, 7, 8")
    col("v_lshlrev_b32 v{a}, 16, v{a}")
    col("v_subrev_u32 v{b}, 134, v{b}")
    col("v_cvt_u32_f32 v{a}, v{a}")
    col("v_med3_i32 v{b}, v{b}, 0, 3")
    col("v_lshlrev_b32 v{c}, v{b}, v60")
    col("v_sub_u32 v{f}, 3, v{b}")
    col("v_and_b32 v{c}, 0xffffff00, v{c}")
    col("v_sub_u32 v{a}, v{a}, v{c}")
    col("v_and_b32 v{c}, 7, v{a}")
    col("v_lshrrev_b32 v{d}, 7, v{a}")
    col("v_lshrrev_b32 v{c}, v{b}, v{c}")
    col("v_lshlrev_b32 v{d}, v{f}, v{d}")
    col("v_bfe_u32 v{a}, v{a}, 3, 4")
    col("v_add_u32 v{c}, v{c}, v{d}")
    col("v_min_u32 v{d}, 1, v{b}")
    col("v_lshl_add_u32 v{c}, v{c}, 4, v{a}")
    col("v_add_u32 v{d}, v{d}, v{b}")
    col("v_lshl_add_u32 v{c}, v{d}, 7, v{c}")
    col("v_lshlrev_b32 v{o}, 2, v{c}")
I("s_waitcnt vmcnt(0)")
L("B_kloop")
KMARK(0)
for k, r in enumerate((2, 3, 4, 5, 6)):
    I(f"v_lshlrev_b32 v{r}, 16, v{140+k}")


def exp_acc(dst, x, t0, t1):
    I(f"v_mul_f32 v{t0}, s20, v{x}")
    I(f"v_fma_f32 v{t1}, v{x}, s20, -v{t0}")
    I(f"v_fma_f32 v{t1}, v{x}, s21, v{t1}")
    I(f"v_exp_f32 v{dst}, v{t0}")
    I(f"v_mul_f32 v{t1}, s22, v{t1}")
    I(f"v_fma_f32 v{dst}, v{dst}, v{t1}, v{dst}")


exp_acc(8, 6, 10, 11)
bf16r(8, 8)
exp_acc(9, 2, 10, 11)
bf16r(9, 9)
I("v_mul_f32 v9, v9, v8")
I("v_mul_f32 v12, s20, v9")
I("v_sub_f32 v12, 0, v12")
I("v_mul_f32 v3, v3, v8")
I("v_mul_f32 v13, s23, v3")
I("v_fma_f32 v14, v3, s23, -v13")
I("v_fma_f32 v14, v3, s24, v14")
I("v_rndne_f32 v10, v13")
I("v_sub_f32 v10, v13, v10")
I("v_and_b32 v13, 0xffffff00, v10")
I("v_sub_f32 v10, v10, v13")
I("v_add_f32 v14, v10, v14")
I("v_mul_f32 v15, v4, v8")
I("v_add_f32 v15, v15, v15")
I("v_mul_f32 v16, v5, v8")
I("v_add_f32 v16, v16, v16")
WREG = 8704
LOO = 4352
I("v_and_b32 v2, 15, v0")
I("v_bfe_u32 v3, v0, 4, 2")
I("v_lshrrev_b32 v6, 6, v0")
I(f"v_mul_u32_u24 v6, {WREG}, v6")
I(f"v_add_u32 v6, {KSTG}, v6")
I("v_and_b32 v4, 63, v0")
I("v_lshl_add_u32 v4, v4, 2, v6")
I("v_mul_u32_u24 v5, 272, v2")
I("v_lshl_add_u32 v5, v3, 4, v5")
I("v_add_u32 v5, v5, v6")


def cexp_ops(p, d, t):
    return [f"v_mul_f32 v{t}, {p}, v12",
            f"v_mul_f32 v{t+1}, {p}, v13",
            f"v_exp_f32 v{t}, v{t}",
            f"v_fract_f32 v{t+1}, v{t+1}",
            f"v_mov_b32 v{d}, {p}",
            f"v_fma_f32 v{t+1}, v{d}, v14, v{t+1}",
            f"v_cos_f32 v{d}, v{t+1}",
            f"v_sin_f32 v{d+1}, v{t+1}",
            "s_nop 0",
            f"v_mul_f32 v{d}, v{d}, v{t}",
            f"v_mul_f32 v{d+1}, v{d+1}, v{t}"]


def cmul_ops(d, a, b):
    return [f"v_mul_f32 v{d}, v{a}, v{b}",
            f"v_mul_f32 v{d+1}, v{a}, v{b+1}",
            f"v_fma_f32 v{d}, -v{a+1}, v{b+1}, v{d}",
            f"v_fma_f32 v{d+1}, v{a+1}, v{b}, v{d+1}"]


def split_ops(v, row, t, neg=False):
    n = "-" if neg else ""
    return [f"v_cvt_pk_bf16_f32 v{t}, v{v}, {n}v{v+1}",
            f"v_lshlrev_b32 v{t+1}, 16, v{t}",
            f"v_and_b32 v{t+2}, 0xffff0000, v{t}",
            f"v_sub_f32 v{t+1}, v{v}, v{t+1}",
            f"v_sub_f32 v{t+2}, {n}v{v+1}, v{t+2}",
            f"ds_write_b32 v4, v{t} offset:{row*272}",
            f"v_cvt_pk_bf16_f32 v{t+1}, v{t+1}, v{t+2}",
            f"ds_write_b32 v4, v{t+1} offset:{LOO + row*272}"]


ZQ = lambda q: 20 + 2 * q
EJ = lambda j: 40 + 2 * j
Z128 = 18
BH, BL = 72, 88
AF = 40
ACC = 124
GT = [104, 106, 108, 110]
ST = [112, 115, 118, 121]
KMARK(1)
interleave([cexp_ops("1.0", ZQ(1), 104), cexp_ops("0x41000000", EJ(1), 106), cexp_ops("0x43000000", Z128, 108)])
I("v_mov_b32 v40, 1.0")
I("v_mov_b32 v41, 0")
interleave([cmul_ops(EJ(2), EJ(1), EJ(1)), cmul_ops(ZQ(2), ZQ(1), ZQ(1)), split_ops(40, 0, ST[0], True), split_ops(EJ(1), 1, ST[1], True)])
interleave([cmul_ops(EJ(3), EJ(2), EJ(1)), cmul_ops(EJ(4), EJ(2), EJ(2)), cmul_ops(ZQ(3), ZQ(2), ZQ(1)), cmul_ops(ZQ(4), ZQ(2), ZQ(2)), split_ops(EJ(2), 2, ST[0], True)])
interleave([cmul_ops(EJ(5), EJ(4), EJ(1)), cmul_ops(EJ(6), EJ(3), EJ(3)), cmul_ops(EJ(7), EJ(4), EJ(3)), cmul_ops(EJ(8), EJ(4), EJ(4)),
            split_ops(EJ(3), 3, ST[0], True), split_ops(EJ(4), 4, ST[1], True)])
interleave([cmul_ops(ZQ(5), ZQ(4), ZQ(1)), cmul_ops(ZQ(6), ZQ(3), ZQ(3)), cmul_ops(ZQ(7), ZQ(4), ZQ(3)),
            cmul_ops(EJ(9), EJ(8), EJ(1)), cmul_ops(EJ(10), EJ(8), EJ(2)), cmul_ops(EJ(11), EJ(8), EJ(3)),
            split_ops(EJ(5), 5, ST[0], True), split_ops(EJ(6), 6, ST[1], True)])
interleave([cmul_ops(EJ(12), EJ(8), EJ(4)), cmul_ops(EJ(13), EJ(8), EJ(5)), cmul_ops(EJ(14), EJ(8), EJ(6)), cmul_ops(EJ(15), EJ(8), EJ(7)),
            split_ops(EJ(7), 7, ST[0], True), split_ops(EJ(8), 8, ST[1], True), split_ops(EJ(9), 9, ST[2], True), split_ops(EJ(10), 10, ST[3], True)])
interleave([split_ops(EJ(11 + k), 11 + k, ST[k], True) for k in range(4)])
interleave([split_ops(EJ(15), 15, ST[0], True), cmul_ops(38, 15, Z128)])
I("v_mov_b32 v36, v15")
I("v_mov_b32 v37, v16")
I("s_waitcnt lgkmcnt(0)")
for sidx in range(4):
    I(f"ds_read_b128 v[{BH+4*sidx}:{BH+4*sidx+3}], v5 offset:{64*sidx}")
    I(f"ds_read_b128 v[{BL+4*sidx}:{BL+4*sidx+3}], v5 offset:{LOO+64*sidx}")
KMARK(2)
CR_ = [36, 38, 6, 8, 10]
CK = lambda k: CR_[k % 5] if k < 8 else 170 + 2 * (k - 8)


def rowval(k, q, row, gi):
    if q == 0:
        return split_ops(CK(k), row, ST[gi])
    return cmul_ops(GT[gi], CK(k), ZQ(q)) + split_ops(GT[gi], row, ST[gi])


def tile_mfma(t):
    I("s_waitcnt lgkmcnt(0)")
    for sidx in range(4):
        I(f"ds_read_b128 v[{AF+4*sidx}:{AF+4*sidx+3}], v5 offset:{64*sidx}")
        I(f"ds_read_b128 v[{AF+16+4*sidx}:{AF+16+4*sidx+3}], v5 offset:{LOO+64*sidx}")
    acc = ACC + 4 * t
    out = []
    for sidx in range(4):
        ah, al = AF + 4 * sidx, AF + 16 + 4 * sidx
        bh, bl = BH + 4 * sidx, BL + 4 * sidx
        for (x, y) in ((ah, bh), (al, bh), (ah, bl)):
            src = "0" if (sidx == 0 and (x, y) == (ah, bh)) else f"v[{acc}:{acc+3}]"
            out.append(f"v_mfma_f32_16x16x32_bf16 v[{acc}:{acc+3}], v[{x}:{x+3}], v[{y}:{y+3}], {src}")
    return out


def run_rows(rows_, extra):
    for g in range(0, len(rows_), 4):
        ch = [rowval(k, q, row, gi) for gi, (k, q, row) in enumerate(rows_[g:g + 4])]
        if extra:
            ch.append(extra.pop(0))
        interleave(ch)
    for e in extra:
        interleave([e])


run_rows([(kap, q, q + 8 * kap) for kap in (0, 1) for q in range(8)],
         [cmul_ops(CK(k), CK(k - 1), Z128) for k in (2, 3, 4)])
mf = tile_mfma(0)
I("s_waitcnt lgkmcnt(0)")
KMARK(3)
r1 = [(2 + kp, q, q // 2 + 4 * kp) for kp in (0, 1) for q in (0, 2, 4, 6)]
r1b = [(4 + kp, q, 8 + q // 4 + 2 * kp) for kp in range(4) for q in (0, 4)]
interleave([mf[:6]] + [rowval(k, q, row, gi) for gi, (k, q, row) in enumerate(r1[:4])])
interleave([mf[6:]] + [rowval(k, q, row, gi) for gi, (k, q, row) in enumerate(r1[4:])] + [cmul_ops(CK(5), CK(4), Z128)])
interleave([rowval(k, q, row, gi) for gi, (k, q, row) in enumerate(r1b[:4])] + [cmul_ops(CK(6), CK(5), Z128) + cmul_ops(CK(7), CK(6), Z128)])
interleave([rowval(k, q, row, gi) for gi, (k, q, row) in enumerate(r1b[4:])] + [sum([cmul_ops(CK(k), CK(k - 1), Z128) for k in (8, 9, 10)], [])])
mf = tile_mfma(1)
I("s_waitcnt lgkmcnt(0)")
KMARK(4)
interleave([split_ops(CK(8 + r), r, ST[r]) for r in range(3)] + [sum([cmul_ops(CK(k), CK(k - 1), Z128) for k in (11, 12, 13)], []), mf[:6]])
interleave([split_ops(CK(11 + r), 3 + r, ST[r]) for r in range(3)] + [sum([cmul_ops(CK(k), CK(k - 1), Z128) for k in (14, 15, 16)], []), mf[6:]])
interleave([split_ops(CK(14 + r), 6 + r, ST[r]) for r in range(3)])
mf = tile_mfma(2)
I("s_waitcnt lgkmcnt(0)")
for m in mf:
    I(m)
I("s_nop 7")
I("s_nop 1")
I("v_lshrrev_b32 v19, 6, v0")
I(f"v_mul_u32_u24 v19, {WREG}, v19")
I("v_lshl_add_u32 v19, v3, 8, v19")
I("v_lshl_add_u32 v19, v2, 2, v19")
for t in range(3):
    for r in range(4):
        I(f"ds_write_b32 v19, v{ACC+4*t+r} offset:{KSTG + t*1024 + r*64}")
I("s_waitcnt lgkmcnt(0)")
I("s_barrier")
KMARK(5)
for e in range(8):
    for w in range(4):
        I(f"ds_read_b32 v{16 + 4*e + w}, v{160+e} offset:{KSTG + w*8704}")
    if e == 3:
        I("s_waitcnt lgkmcnt(0)")
I("s_waitcnt lgkmcnt(0)")
for e in range(8):
    b = 16 + 4 * e
    I(f"v_add_f32 v{b}, v{b}, v{b+1}")
    I(f"v_add_f32 v{b+2}, v{b+2}, v{b+3}")
    I(f"v_add_f32 v{b}, v{b}, v{b+2}")
for j in range(4):
    ka, kb = 16 + 4 * (7 - 2 * j), 16 + 4 * (6 - 2 * j)
    I(f"v_cvt_pk_bf16_f32 v{48+j}, v{ka}, v{kb}")
    I(f"v_lshlrev_b32 v10, 16, v{48+j}")
    I(f"v_and_b32 v11, 0xffff0000, v{48+j}")
    I(f"v_sub_f32 v10, v{ka}, v10")
    I(f"v_sub_f32 v11, v{kb}, v11")
    I(f"v_cvt_pk_bf16_f32 v{52+j}, v10, v11")
I("v_lshlrev_b32 v10, 4, v0")
I("v_sub_u32 v10, 4080, v10")
I("v_add_u32 v10, s74, v10")
I("ds_write_b128 v10, v[48:51]")
I("ds_write_b128 v10, v[52:55] offset:4608")
I("v_cmp_gt_u32 vcc, 64, v0")
I("s_and_saveexec_b64 s[18:19], vcc")
I("v_and_b32 v10, 31, v0")
I("v_lshlrev_b32 v10, 4, v10")
I("v_lshrrev_b32 v11, 5, v0")
I("v_mul_u32_u24 v11, 4608, v11")
I("v_add3_u32 v10, v10, v11, s74")
for r in range(12, 16):
    I(f"v_mov_b32 v{r}, 0")
I("ds_write_b128 v10, v[12:15] offset:4096")
I("s_mov_b64 exec, s[18:19]")
I("s_waitcnt lgkmcnt(0)")
I("s_barrier")
KMARK(6)
for k in range(5):
    I(f"v_mov_b32 v{140+k}, v{145+k}")
I(f"s_add_u32 s74, s74, {KR_STRIDE}")
I(f"s_cmp_eq_u32 s74, {2*KR_STRIDE}")
I("s_cbranch_scc1 B_kdone")
MARK(0)
I(f"s_mov_b32 s76, {LNF}")
I(f"s_mov_b32 s77, {LNF + 256}")
wait_flags([(76, 64), (77, 64)])
I("v_and_b32 v1, 15, v0")
I("v_bfe_u32 v2, v0, 4, 2")
I("v_lshrrev_b32 v3, 6, v0")
I("s_lshr_b32 s6, s2, 4")
I("s_lshl_b32 s6, s6, 10")
I("s_lshr_b32 s7, s2, 2")
I("s_and_b32 s7, s7, 3")
I("s_lshl_b32 s7, s7, 8")
I("s_add_u32 s6, s6, s7")
I("s_and_b32 s7, s2, 3")
I("s_lshl_b32 s7, s7, 2")
I("s_add_u32 s6, s6, s7")
I("s_add_u32 s6, s64, s6")
I("s_addc_u32 s7, s65, 0")
I("v_lshrrev_b32 v4, 4, v0")
I("v_mul_u32_u24 v4, 14336, v4")
I("v_lshl_add_u32 v4, v1, 4, v4")
for j in range(8):
    if j:
        I(f"v_add_u32 v4, {16*14336}, v4")
    I(f"global_load_dword v{190+j}, v4, s[6:7] sc1")
I("s_branch B_kloop")
L("B_kdone")
MARK(1)
I("v_and_b32 v1, 15, v0")
I("v_bfe_u32 v2, v0, 4, 2")
I("v_lshrrev_b32 v3, 6, v0")
I("v_lshlrev_b32 v5, 1, v0")
I("v_cmp_gt_u32 vcc, 16, v0")
I("s_and_saveexec_b64 s[18:19], vcc")
I("v_mov_b32 v8, 0")
for q in range(4):
    I(f"ds_write_b16 v5, v8 offset:{UB + q*XNT_STRIDE}")
I("s_mov_b64 exec, s[18:19]")
I("s_waitcnt lgkmcnt(0)")
I("s_barrier")
for j in range(8):
    I(f"s_waitcnt vmcnt({7-j})")
    o = UB + 512 * j
    I(f"ds_write_b16 v5, v{190+j} offset:{o + 32}")
    I(f"ds_write_b16 v5, v{190+j} offset:{o + XNT_STRIDE + 30}")
    I(f"ds_write_b16_d16_hi v5, v{190+j} offset:{o + 2*XNT_STRIDE + 32}")
    I(f"ds_write_b16_d16_hi v5, v{190+j} offset:{o + 3*XNT_STRIDE + 30}")
I("s_waitcnt lgkmcnt(0)")
I("s_barrier")
MARK(2)
I("v_lshrrev_b32 v4, 1, v3")
I("v_lshl_add_u32 v5, v2, 3, v1")
I("v_add_u32 v5, 1, v5")
I("v_and_b32 v7, 1, v5")
I("v_sub_u32 v5, v5, v7")
I("v_lshlrev_b32 v5, 1, v5")
I(f"v_mul_u32_u24 v7, {XNT_STRIDE}, v7")
I("v_add_u32 v5, v5, v7")
I(f"v_mul_u32_u24 v7, {2*XNT_STRIDE}, v4")
I("v_add_u32 v5, v5, v7")
I("v_and_b32 v7, 1, v3")
I("v_lshl_add_u32 v5, v7, 8, v5")
I(f"v_add_u32 v232, {UB}, v5")
for c in range(1, 8):
    I(f"v_add_u32 v{232+c}, {512*c}, v232")
I(f"v_mul_u32_u24 v6, {KR_STRIDE}, v4")
I("v_lshl_add_u32 v6, v2, 4, v6")
I("v_lshl_add_u32 v6, v7, 8, v6")
I("v_lshlrev_b32 v7, 5, v1")
I("v_sub_u32 v6, v6, v7")
I("v_add_u32 v6, 480, v6")
CA0 = 8
CBUF = 40


def creads(r):
    bb = CBUF + 96 * (r & 1)
    out = []
    for c in range(8):
        out.append(f"ds_read2_b32 v[{bb+4*c}:{bb+4*c+1}], v{232+c} offset0:{16*r} offset1:{16*r+1}")
        out.append(f"ds_read2_b32 v[{bb+4*c+2}:{bb+4*c+3}], v{232+c} offset0:{16*r+2} offset1:{16*r+3}")
    for n in range(8):
        o = 3584 - 512 * n + 64 * r
        out.append(f"ds_read_b128 v[{bb+32+8*n}:{bb+32+8*n+3}], v6 offset:{o}")
        out.append(f"ds_read_b128 v[{bb+36+8*n}:{bb+36+8*n+3}], v6 offset:{o+4608}")
    return out


for x in creads(0):
    I(x)
for r in range(4):
    I("s_waitcnt lgkmcnt(0)")
    nxt = creads(r + 1) if r < 3 else []
    bb = CBUF + 96 * (r & 1)
    mf = []
    for T in range(8):
        acc = CA0 + 4 * T
        for c in range(T + 1):
            n = T - c
            first = (r == 0 and c == 0)
            src = "0" if first else f"v[{acc}:{acc+3}]"
            mf.append(f"v_mfma_f32_16x16x32_bf16 v[{acc}:{acc+3}], v[{bb+4*c}:{bb+4*c+3}], v[{bb+32+8*n}:{bb+32+8*n+3}], {src}")
            mf.append(f"v_mfma_f32_16x16x32_bf16 v[{acc}:{acc+3}], v[{bb+4*c}:{bb+4*c+3}], v[{bb+36+8*n}:{bb+36+8*n+3}], v[{acc}:{acc+3}]")
    k = 0
    for idx, m in enumerate(mf):
        I(m)
        if k < len(nxt) and idx % 2 == 1:
            I(nxt[k]); k += 1
    while k < len(nxt):
        I(nxt[k]); k += 1
I("s_barrier")
I("v_and_b32 v5, 63, v0")
I("v_lshlrev_b32 v5, 4, v5")
I("v_lshl_add_u32 v6, v3, 12, v5")
I("v_xor_b32 v7, 1, v3")
I("v_lshl_add_u32 v5, v7, 12, v5")
I("s_lshl_b32 s10, s2, 13")
I(f"s_add_u32 s10, s10, {WS_YT}")
I("s_add_u32 s10, s64, s10")
I("s_addc_u32 s11, s65, 0")
I("v_lshlrev_b32 v7, 12, v4")
I("v_lshl_add_u32 v7, v1, 5, v7")
I("v_lshl_add_u32 v7, v2, 3, v7")
I("s_lshl_b32 s74, s2, 2")
I(f"s_add_u32 s74, s74, {YF}")
I("s_and_b32 s9, s69, 1")
I("s_cmp_eq_u32 s9, 1")
I("s_cbranch_scc1 B_cv1")
for h in range(2):
    if h:
        L("B_cv1")
    keep = [4 * h + j for j in range(4)]
    give = [4 * (1 - h) + j for j in range(4)]
    for j, T in enumerate(give):
        I(f"ds_write_b128 v6, v[{CA0+4*T}:{CA0+4*T+3}] offset:{1024*j}")
    I("s_waitcnt lgkmcnt(0)")
    I("s_barrier")
    for j in range(4):
        I(f"ds_read_b128 v[{40+4*j}:{43+4*j}], v5 offset:{1024*j}")
    I("s_waitcnt lgkmcnt(0)")
    for j, T in enumerate(keep):
        acc = CA0 + 4 * T
        for r_ in range(4):
            I(f"v_add_f32 v{acc+r_}, v{acc+r_}, v{40+4*j+r_}")
        I(f"v_cvt_pk_bf16_f32 v{56+2*j}, v{acc}, v{acc+1}")
        I(f"v_cvt_pk_bf16_f32 v{57+2*j}, v{acc+2}, v{acc+3}")
        I(f"global_store_dwordx2 v7, v[{56+2*j}:{57+2*j}], s[10:11] offset:{512*T} sc1")
    if h == 0:
        I("s_branch B_pub")
L("B_pub")
MARK(3)
publish(74)
I("s_endpgm")
L("X_exit")
lines.append("    s_endpgm")

E('.section .rodata,"a"')
E(".p2align 6")
E(f".amdhsa_kernel {NAME}_kernel")
E("  .amdhsa_next_free_vgpr 256")
E("  .amdhsa_next_free_sgpr 96")
E("  .amdhsa_accum_offset 256")
E("  .amdhsa_group_segment_fixed_size 0")
E("  .amdhsa_kernarg_size 104")
E("  .amdhsa_user_sgpr_count 2")
E("  .amdhsa_user_sgpr_kernarg_segment_ptr 1")
E("  .amdhsa_system_sgpr_workgroup_id_x 1")
E("  .amdhsa_float_denorm_mode_32 3")
E(".end_amdhsa_kernel")
open(OUT, "w").write("\n".join(lines) + "\n")
print("wrote", OUT, len(lines), "lines")
```

```python
import sys, os

NAME = "recurrent_scan__ssm_conv_s4d__dense_activation_relu__prompt"
OUT = sys.argv[1] if len(sys.argv) > 1 else f"cdna_kernels/{NAME}.s"
STAMP = int(os.environ.get("STAMP", "0"))

WS_XN = 0x0000000
WS_XNT = 0x0200000
XNT_STRIDE = 4160
WS_W1T = 0x0400000
WS_W2T = 0x0600000
KR_STRIDE = 9216
WS_H = 0x1000000
WS_YT = 0x1800000
WS_FLG = 0x1C00000
LNF, W1F, W2F, HF, YF, LNF2, DUMMYF = 0, 1024, 2048, 3072, 4096, 5120, 6144

NA, NB = 224, 224
GRID = NA + NB
LDS = 70144

lines = []


def E(s=""):
    lines.append(s)


def I(s):
    if STAMP and s == "s_endpgm":
        for x in ("s_mov_b64 exec, -1",
                  "s_memrealtime s[34:35]", "s_memtime s[36:37]",
                  "s_waitcnt vmcnt(0) lgkmcnt(0)",
                  f"s_add_u32 s38, s64, {0x2000000}", "s_addc_u32 s39, s65, 0",
                  "s_lshl_b32 s2, s28, 2", "s_add_u32 s2, s2, s69", "s_lshl_b32 s2, s2, 5", "v_mov_b32 v1, s2",
                  "v_mov_b32 v4, s30", "v_mov_b32 v5, s31", "v_mov_b32 v6, s34", "v_mov_b32 v7, s35",
                  "v_mov_b32 v8, s32", "v_mov_b32 v9, s33", "v_mov_b32 v10, s36", "v_mov_b32 v11, s37",
                  "global_store_dwordx4 v1, v[4:7], s[38:39]", "global_store_dwordx4 v1, v[8:11], s[38:39] offset:16",
                  "v_mov_b32 v4, s40", "v_mov_b32 v5, s42", "v_mov_b32 v6, s44", "v_mov_b32 v7, s46",
                  "v_mov_b32 v8, s48", "v_mov_b32 v9, s50", "v_mov_b32 v10, s52", "v_mov_b32 v11, s54",
                  "v_add_u32 v1, 0x100000, v1",
                  "global_store_dwordx4 v1, v[4:7], s[38:39]", "global_store_dwordx4 v1, v[8:11], s[38:39] offset:16"):
            lines.append("    " + x)
    lines.append("    " + s)


def KMARK(n):
    if STAMP and os.environ.get("KM"):
        lines.append(f"    s_memtime s[{40+2*n}:{41+2*n}]")


def MARK(n):
    if STAMP and not os.environ.get("KM"):
        lines.append(f"    s_memtime s[{40+2*n}:{41+2*n}]")


def L(lbl):
    lines.append(lbl + ":")


_uid = [0]


def uid(p):
    _uid[0] += 1
    return f"{p}_{_uid[0]}"


def interleave(chains):
    chains = [list(c) for c in chains]
    while any(chains):
        for c in chains:
            if c:
                I(c.pop(0))


def bf16r(dst, src):
    I(f"v_cvt_pk_bf16_f32 v{dst}, v{src}, v{src}")
    I(f"v_lshlrev_b32 v{dst}, 16, v{dst}")


def get_nonce():
    a, b = uid("N_poll"), uid("N_ok")
    I("s_cmp_lg_u32 s68, 0")
    I(f"s_cbranch_scc1 {b}")
    I("s_waitcnt vmcnt(0)")
    I("v_readfirstlane_b32 s68, v255")
    I("s_cmp_lg_u32 s68, 0")
    I(f"s_cbranch_scc1 {b}")
    I("v_mov_b32 v253, 0")
    L(a)
    I("global_load_dword v254, v253, s[66:67] sc1")
    I("s_waitcnt vmcnt(0)")
    I("v_readfirstlane_b32 s68, v254")
    I("s_cmp_lg_u32 s68, 0")
    I(f"s_cbranch_scc1 {b}")
    I("s_sleep 4")
    I(f"s_branch {a}")
    L(b)


def publish(*soffs):
    e = uid("PB_end")
    I("s_waitcnt vmcnt(0) lgkmcnt(0)")
    I("s_barrier")
    I("s_cmp_lg_u32 s69, 0")
    I(f"s_cbranch_scc1 {e}")
    get_nonce()
    I("v_mov_b32 v254, s68")
    I("s_mov_b64 s[72:73], exec")
    I("s_mov_b64 exec, 1")
    for soff in soffs:
        I(f"v_mov_b32 v253, s{soff}")
        I("global_store_dword v253, v254, s[70:71] sc1")
    I("s_mov_b64 exec, s[72:73]")
    L(e)


def wait_flags(specs, first_sleep=0):
    e = uid("W_end")
    I("s_cmp_lg_u32 s69, 0")
    I(f"s_cbranch_scc1 {e}")
    get_nonce()
    if first_sleep:
        I(f"s_sleep {first_sleep}")
    for (soff, n) in specs:
        a, b = uid("W_poll"), uid("W_ok")
        I("v_and_b32 v253, 63, v0")
        I(f"v_min_u32 v253, {n-1}, v253")
        I(f"v_lshl_add_u32 v253, v253, 2, s{soff}")
        L(a)
        I("global_load_dword v254, v253, s[70:71] sc1")
        I("s_waitcnt vmcnt(0)")
        I("v_cmp_ne_u32 vcc, s68, v254")
        I("s_cmp_eq_u64 vcc, 0")
        I(f"s_cbranch_scc1 {b}")
        I("s_sleep 3")
        I(f"s_branch {a}")
        L(b)
    L(e)
    I("s_barrier")


HEADER = open(f"cdna_kernels/{NAME}.s.ref").read().split("; Override launch")[0]
E(HEADER.rstrip("\n"))
E(f"; @launch grid=({GRID},1,1) block=(256,1,1) lds={LDS}")
E('.amdgcn_target "amdgcn-amd-amdhsa--gfx950"')
E(".text")
E(f".globl {NAME}_kernel")
E(".p2align 8")
E(f".type {NAME}_kernel,@function")
L(f"{NAME}_kernel")
I(f"s_cmp_ge_u32 s2, {GRID}")
I("s_cbranch_scc1 X_exit")
I("s_mov_b32 s28, s2")
if STAMP:
    I("s_memrealtime s[30:31]")
    I("s_memtime s[32:33]")
I("s_load_dwordx4 s[64:67], s[0:1], 88")
I("v_readfirstlane_b32 s69, v0")
I("s_lshr_b32 s69, s69, 6")
I("s_mov_b32 s68, 0")
I("s_waitcnt lgkmcnt(0)")
I("s_mov_b32 s72, s64")
I("s_mov_b32 s73, s65")
I("s_mov_b32 s64, s66")
I("s_mov_b32 s65, s67")
I("s_mov_b32 s66, s72")
I("s_mov_b32 s67, s73")
I(f"s_add_u32 s70, s64, {WS_FLG}")
I("s_addc_u32 s71, s65, 0")
I("s_or_b32 s72, s2, s69")
I("s_cmp_lg_u32 s72, 0")
I("s_cbranch_scc1 X_nononce")
I("s_memrealtime s[72:73]")
I("s_waitcnt lgkmcnt(0)")
I("s_or_b32 s68, s72, 1")
I("v_mov_b32 v253, 0")
I("v_mov_b32 v254, s68")
I("s_mov_b64 exec, 1")
I("global_store_dword v253, v254, s[66:67] sc1")
I("s_mov_b64 exec, -1")
L("X_nononce")
I("v_mov_b32 v253, 0")
I("global_load_dword v255, v253, s[66:67] sc1")
I(f"s_cmp_ge_u32 s2, {NA}")
I("s_cbranch_scc1 B_start")

I(f"s_setprio {os.environ.get('PRIO_A', '3')}")
I("s_cmp_ge_u32 s2, 128")
I("s_cbranch_scc1 A_wtonly")
I("s_load_dwordx2 s[4:5], s[0:1], 0")
I("s_mov_b32 s14, s64")
I("s_mov_b32 s15, s65")
I("s_mov_b32 s3, s2")
I("v_lshrrev_b32 v1, 6, v0")
I("v_and_b32 v2, 63, v0")
I("s_lshl_b32 s6, s3, 4")
I("v_lshl_add_u32 v3, v1, 2, s6")
I("v_mul_u32_u24 v3, 896, v3")
I("v_lshl_add_u32 v3, v2, 4, v3")
I("s_mul_i32 s7, s3, 14336")
I("v_lshrrev_b32 v29, 2, v2")
I("v_lshlrev_b32 v29, 10, v29")
I("v_and_b32 v28, 3, v2")
I("v_lshl_add_u32 v29, v28, 8, v29")
I("v_lshl_add_u32 v29, v1, 6, v29")
I("s_mov_b32 s20, 0x3b124925")
I("s_mov_b32 s21, 0x43e00000")
I("s_mov_b32 s22, 0x3727c5ac")
for r in range(8, 24):
    I(f"v_mov_b32 v{r}, 0")
I("s_mov_b64 s[16:17], exec")
I("s_mov_b32 s18, -1")
I("s_mov_b32 s19, 0x00ffffff")
I("s_waitcnt lgkmcnt(0)")
I("s_mov_b64 exec, s[18:19]")
for k in range(4):
    I(f"global_load_dwordx4 v[{8+4*k}:{11+4*k}], v3, s[4:5] offset:{896*k}")
I("s_mov_b64 exec, s[16:17]")
I("s_waitcnt vmcnt(0)")
for k in range(4):
    for j in range(4):
        I(f"v_lshlrev_b32 v{32+8*k+2*j}, 16, v{8+4*k+j}")
        I(f"v_and_b32 v{33+8*k+2*j}, 0xffff0000, v{8+4*k+j}")


def rows(fmt, **kw):
    for k in range(4):
        b = 32 + 8 * k
        I(fmt.format(k=k, s=8 + k, t=12 + k, m=16 + k, u=20 + k, w=64 + k, x=68 + k, sg=24 + k,
                     b0=b, b1=b + 1, b2=b + 2, b3=b + 3, b4=b + 4, b5=b + 5, b6=b + 6, b7=b + 7, **kw))


def dpp4():
    for sh in (1, 2, 4, 8):
        rows("v_add_f32_dpp v{s}, v{s}, v{s} row_shr:%d row_mask:0xf bank_mask:0xf bound_ctrl:0" % sh)
    rows("v_add_f32_dpp v{s}, v{s}, v{s} row_bcast:15 row_mask:0xa bank_mask:0xf")
    rows("v_add_f32_dpp v{s}, v{s}, v{s} row_bcast:31 row_mask:0xc bank_mask:0xf")
    rows("v_readlane_b32 s{sg}, v{s}, 63")


rows("v_add_f32 v{s}, v{b0}, v{b1}")
rows("v_add_f32 v{t}, v{b2}, v{b3}")
rows("v_add_f32 v{m}, v{b4}, v{b5}")
rows("v_add_f32 v{u}, v{b6}, v{b7}")
rows("v_add_f32 v{s}, v{s}, v{t}")
rows("v_add_f32 v{m}, v{m}, v{u}")
rows("v_add_f32 v{s}, v{s}, v{m}")
dpp4()
rows("v_mov_b32 v{t}, s{sg}")
rows("v_mul_f32 v{m}, s20, v{t}")
rows("v_fma_f32 v{u}, -v{m}, s21, v{t}")
rows("v_fma_f32 v{m}, v{u}, s20, v{m}")
rows("v_mov_b32 v{s}, 0")
I("s_mov_b64 exec, s[18:19]")
for j in range(8):
    rows("v_sub_f32 v{t}, v{bj}, v{m}".replace("{bj}", "{b%d}" % j))
    rows("v_fmac_f32 v{s}, v{t}, v{t}")
I("s_mov_b64 exec, s[16:17]")
I("s_nop 1")
dpp4()
rows("v_mov_b32 v{t}, s{sg}")
rows("v_mul_f32 v{u}, s20, v{t}")
rows("v_fma_f32 v{w}, -v{u}, s21, v{t}")
rows("v_fma_f32 v{u}, v{w}, s20, v{u}")
rows("v_cvt_pk_bf16_f32 v{u}, v{u}, v{u}")
rows("v_cvt_pk_bf16_f32 v{m}, v{m}, v{m}")
rows("v_lshlrev_b32 v{u}, 16, v{u}")
rows("v_lshlrev_b32 v{m}, 16, v{m}")
rows("v_add_f32 v{u}, s22, v{u}")
rows("v_cvt_pk_bf16_f32 v{u}, v{u}, v{u}")
rows("v_lshlrev_b32 v{u}, 16, v{u}")
rows("v_sqrt_f32 v{w}, v{u}")
for j in range(8):
    rows("v_sub_f32 v{bj}, v{bj}, v{m}".replace("{bj}", "{b%d}" % j))
rows("v_rcp_f32 v{x}, v{w}")
rows("v_fma_f32 v{t}, -v{w}, v{w}, v{u}")
rows("v_mul_f32 v{x}, 0.5, v{x}")
rows("v_fma_f32 v{w}, v{t}, v{x}, v{w}")
rows("v_cvt_pk_bf16_f32 v{w}, v{w}, v{w}")
rows("v_lshlrev_b32 v{w}, 16, v{w}")
rows("v_rcp_f32 v{x}, v{w}")
for j in range(0, 8, 2):
    rows("v_cvt_pk_bf16_f32 v{t}, v{bj}, v{bk}".replace("{bj}", "{b%d}" % j).replace("{bk}", "{b%d}" % (j + 1)))
    rows("v_lshlrev_b32 v{bj}, 16, v{t}".replace("{bj}", "{b%d}" % j))
    rows("v_and_b32 v{bk}, 0xffff0000, v{t}".replace("{bk}", "{b%d}" % (j + 1)))
rows("v_fma_f32 v{t}, -v{w}, v{x}, 1.0")
rows("v_fma_f32 v{x}, v{t}, v{x}, v{x}")
for j in range(8):
    rows("v_mul_f32 v{t}, v{bj}, v{x}".replace("{bj}", "{b%d}" % j))
    rows("v_fma_f32 v{u}, -v{t}, v{w}, v{bj}".replace("{bj}", "{b%d}" % j))
    rows("v_fma_f32 v{bj}, v{u}, v{x}, v{t}".replace("{bj}", "{b%d}" % j))
for j in range(4):
    for k in range(4):
        b = 32 + 8 * k
        I(f"v_cvt_pk_bf16_f32 v{8+4*k+j}, v{b+2*j}, v{b+2*j+1}")
I("v_lshlrev_b32 v30, 2, v1")
I("v_mul_u32_u24 v30, 896, v30")
I("v_lshl_add_u32 v30, v2, 4, v30")
I("s_mov_b64 exec, s[18:19]")
for k in range(4):
    I(f"ds_write_b128 v29, v[{8+4*k}:{11+4*k}] offset:{16384 + 16*k}")
I("s_mov_b64 exec, s[16:17]")
I("s_waitcnt lgkmcnt(0)")
I("s_barrier")
I("v_lshlrev_b32 v4, 4, v0")
I("v_add_u32 v5, s7, v4")
for q in range(3):
    I(f"ds_read_b128 v[{8+4*q}:{11+4*q}], v4 offset:{16384 + 4096*q}")
I("v_cmp_gt_u32 vcc, 128, v0")
I("s_and_saveexec_b64 s[16:17], vcc")
I(f"ds_read_b128 v[20:23], v4 offset:{16384 + 12288}")
I("v_add_u32 v6, 0x3000, v5")
I("s_waitcnt lgkmcnt(0)")
I("global_store_dwordx4 v6, v[20:23], s[14:15] sc1")
I("s_mov_b64 exec, s[16:17]")
I("v_add_u32 v6, 0x1000, v5")
I("v_add_u32 v7, 0x2000, v5")
I("s_waitcnt lgkmcnt(0)")
I("global_store_dwordx4 v5, v[8:11], s[14:15] sc1")
I("global_store_dwordx4 v6, v[12:15], s[14:15] sc1")
I("global_store_dwordx4 v7, v[16:19], s[14:15] sc1")
I("s_lshl_b32 s74, s3, 2")
publish(74)
I("s_branch A_g1")
L("A_wtonly")
I("s_load_dwordx4 s[4:7], s[0:1], 64")
I("s_sub_u32 s3, s2, 128")
I("s_mov_b32 s75, 96")
I("s_cmp_lt_u32 s3, 4")
I("s_cselect_b32 s75, 192, s75")


def wt3(which):
    if which == 1:
        sst, dtile, magic, nk, sp, wsoff = 3584, 14336, 9363, 7, 4, WS_W1T
    else:
        sst, dtile, magic, nk, sp, wsoff = 896, 57344, 2341, 28, 6, WS_W2T
    I(f"s_add_u32 s14, s64, {wsoff}")
    I("s_addc_u32 s15, s65, 0")
    I("v_lshrrev_b32 v1, 3, v0")
    I("v_and_b32 v2, 7, v0")
    I(f"v_mul_u32_u24 v3, {sst}, v1")
    I("v_lshl_add_u32 v3, v2, 4, v3")
    I("v_lshlrev_b32 v5, 7, v1")
    I("v_lshl_add_u32 v5, v2, 4, v5")
    for j in range(3):
        sj = 80 + 4 * j
        if j == 0:
            I(f"s_mov_b32 s{sj}, s3")
        elif j == 1:
            I(f"s_add_u32 s{sj}, s3, 96")
        else:
            I(f"s_add_u32 s{sj}, s3, s75")
        I(f"s_mul_i32 s{sj+2}, s{sj}, {magic}")
        I(f"s_lshr_b32 s{sj+2}, s{sj+2}, 16")
        I(f"s_mul_i32 s{sj+1}, s{sj+2}, {nk}")
        I(f"s_sub_u32 s{sj+1}, s{sj}, s{sj+1}")
        if which == 1:
            I(f"s_and_b32 s{sj+3}, s{sj+2}, 1")
            I(f"s_mul_i32 s{sj+3}, s{sj+3}, 7")
            I(f"s_add_u32 s{sj+3}, s{sj+3}, s{sj+1}")
            I(f"s_lshl_b32 s{sj+3}, s{sj+3}, 2")
            I(f"s_lshr_b32 s12, s{sj+2}, 1")
            I("s_lshl_b32 s12, s12, 6")
            I(f"s_add_u32 s{sj+3}, s{sj+3}, s12")
            I(f"s_add_u32 s{sj+3}, s{sj+3}, {W1F}")
        else:
            I(f"s_lshl_b32 s{sj+3}, s{sj+2}, 7")
            I(f"s_lshl_b32 s12, s{sj+1}, 2")
            I(f"s_add_u32 s{sj+3}, s{sj+3}, s12")
            I(f"s_add_u32 s{sj+3}, s{sj+3}, {W2F}")
    I("s_waitcnt lgkmcnt(0)")
    for j in range(3):
        sj = 80 + 4 * j
        I(f"s_mul_i32 s12, s{sj+1}, {64*sst}")
        I(f"s_lshl_b32 s13, s{sj+2}, 7")
        I("s_add_u32 s12, s12, s13")
        I("v_add_u32 v4, s12, v3")
        I(f"v_add_u32 v6, {32*sst}, v4")
        I(f"global_load_dwordx4 v[{8+8*j}:{11+8*j}], v4, s[{sp}:{sp+1}]")
        I(f"global_load_dwordx4 v[{12+8*j}:{15+8*j}], v6, s[{sp}:{sp+1}]")
    for j in range(3):
        I(f"s_waitcnt vmcnt({4-2*j})")
        I(f"ds_write_b128 v5, v[{8+8*j}:{11+8*j}] offset:{8192*j}")
        I(f"ds_write_b128 v5, v[{12+8*j}:{15+8*j}] offset:{8192*j+4096}")
    I("s_waitcnt lgkmcnt(0)")
    I("s_barrier")
    I("v_and_b32 v1, 15, v0")
    I("v_bfe_u32 v2, v0, 4, 2")
    I("v_lshrrev_b32 v3, 6, v0")
    if which == 1:
        I("v_lshrrev_b32 v4, 2, v1")
        I("v_lshlrev_b32 v4, 4, v4")
        I("v_lshl_add_u32 v4, v3, 2, v4")
        I("v_and_b32 v6, 3, v1")
        I("v_add_u32 v4, v4, v6")
    else:
        I("v_lshl_add_u32 v4, v3, 4, v1")
    I("v_lshlrev_b32 v5, 10, v2")
    I("v_lshl_add_u32 v5, v4, 1, v5")
    I(f"v_mul_u32_u24 v3, {dtile}, v3")
    I("v_and_b32 v4, 63, v0")
    I("v_lshl_add_u32 v3, v4, 4, v3")
    for j in range(3):
        sj = 80 + 4 * j
        for c in range(2):
            for e in range(8):
                I(f"ds_read_u16 v{40 + 8*c + e}, v5 offset:{8192*j + 4096*c + 128*e}")
            if c == 0:
                I("s_waitcnt lgkmcnt(0)")
        I(f"s_mul_i32 s12, s{sj+2}, {4*dtile}")
        I(f"s_lshl_b32 s13, s{sj+1}, 11")
        I("s_add_u32 s12, s12, s13")
        I("v_add_u32 v6, s12, v3")
        I("s_waitcnt lgkmcnt(0)")
        for t in range(8):
            I(f"v_lshl_or_b32 v{8+8*j+t}, v{41+2*t}, 16, v{40+2*t}")
        I(f"global_store_dwordx4 v6, v[{8+8*j}:{11+8*j}], s[14:15] sc1")
        I(f"global_store_dwordx4 v6, v[{12+8*j}:{15+8*j}], s[14:15] offset:1024 sc1")
    publish(83, 87, 91)


wt3(1)
wt3(2)

L("A_g1")
MARK(0)
I(f"s_setprio {os.environ.get('PRIO_G', '0')}")
I("v_and_b32 v1, 15, v0")
I("v_bfe_u32 v2, v0, 4, 2")
I("v_lshrrev_b32 v3, 6, v0")
I("s_and_b32 s10, s2, 7")
I("s_lshr_b32 s3, s2, 3")
I("s_mul_i32 s8, s3, 9363")
I("s_lshr_b32 s8, s8, 16")
I("s_mul_i32 s9, s8, 7")
I("s_sub_u32 s9, s3, s9")
I("s_and_b32 s11, s10, 1")
I("s_mul_i32 s11, s11, 7")
I("s_add_u32 s9, s9, s11")
I("s_lshr_b32 s10, s10, 1")
I("s_lshl_b32 s10, s10, 2")
I("s_add_u32 s8, s8, s10")
I("s_lshl_b32 s76, s8, 5")
I("s_lshl_b32 s77, s9, 6")
I(f"s_add_u32 s77, s77, {W1F}")
I("s_lshl_b32 s74, s8, 6")
I("s_lshl_b32 s10, s9, 2")
I("s_add_u32 s74, s74, s10")
I(f"s_add_u32 s74, s74, {HF}")
wait_flags([(77, 14)])
I(f"s_add_u32 s4, s64, {WS_W1T}")
I("s_addc_u32 s5, s65, 0")
I(f"s_add_u32 s6, s64, {WS_XN}")
I("s_addc_u32 s7, s65, 0")
I("s_lshl_b32 s9, s9, 7")
I("s_lshl_b32 s8, s8, 7")
I("v_and_b32 v4, 1, v3")
I("v_lshl_add_u32 v4, v4, 6, s9")
I("v_lshrrev_b32 v5, 1, v3")
I("v_lshl_add_u32 v5, v5, 6, s8")
I("v_and_b32 v7, 63, v0")
I("v_lshlrev_b32 v7, 4, v7")
I("s_mul_i32 s10, s9, 896")
I("s_mul_i32 s11, s8, 896")
I("v_mul_u32_u24 v6, 28672, v3")
I("v_add_u32 v6, v6, v7")
I("v_add_u32 v8, s10, v6")
I("v_add_u32 v9, 14336, v8")
I("v_add_u32 v10, s11, v6")
I("v_add_u32 v11, 14336, v10")
I("s_lshl_b32 s12, s69, 11")
I("v_and_b32 v12, 1, v3")
I("v_lshl_add_u32 v12, v12, 12, v7")
I("v_lshrrev_b32 v13, 1, v3")
I("v_lshl_add_u32 v13, v13, 12, v7")
I("v_add_u32 v13, 0x2000, v13")
G_ACC = 16
G_FR = 80
issued = []


def g1_dma(st, part):
    slot = (st % 4) * 16384
    for (nm, va, sb, off) in (("A", 8, 4, 0), ("A", 9, 4, 1024), ("B", 10, 6, 8192), ("B", 11, 6, 9216)):
        if nm not in part:
            continue
        if st and off in (0, 8192):
            I(f"s_add_u32 s{sb}, s{sb}, 1024")
            I(f"s_addc_u32 s{sb+1}, s{sb+1}, 0")
        I(f"s_add_u32 m0, s12, {slot + off}")
        I("s_nop 0")
        I(f"global_load_lds_dwordx4 v{va}, s[{sb}:{sb+1}] sc1")
        issued.append(st)


def g1_wait(st):
    last = max(i for i, x in enumerate(issued) if x == st)
    return len(issued) - 1 - last


def g1_reads(st):
    slot = (st % 4) * 16384
    fb = G_FR + 32 * (st & 1)
    for j in range(4):
        I(f"ds_read_b128 v[{fb+4*j}:{fb+4*j+3}], v12 offset:{slot + 1024*j}")
    for j in range(4):
        I(f"ds_read_b128 v[{fb+16+4*j}:{fb+16+4*j+3}], v13 offset:{slot + 1024*j}")


NS1 = 14
for st in range(4):
    g1_dma(st, "A")
wait_flags([(76, 8)])
MARK(1)
for st in range(4):
    g1_dma(st, "B")
I(f"s_waitcnt vmcnt({g1_wait(0)})")
I("s_barrier")
g1_reads(0)
for st in range(NS1):
    if st + 1 < NS1:
        I(f"s_waitcnt vmcnt({g1_wait(st + 1)}) lgkmcnt(0)")
        I("s_barrier")
        if st + 4 < NS1:
            g1_dma(st + 4, "AB")
        g1_reads(st + 1)
    else:
        I("s_waitcnt lgkmcnt(0)")
    fb = G_FR + 32 * (st & 1)
    for a_ in range(4):
        for b_ in range(4):
            c = G_ACC + 16 * a_ + 4 * b_
            src = "0" if st == 0 else f"v[{c}:{c+3}]"
            I(f"v_mfma_f32_16x16x32_bf16 v[{c}:{c+3}], v[{fb+4*a_}:{fb+4*a_+3}], v[{fb+16+4*b_}:{fb+16+4*b_+3}], {src}")
I(f"s_add_u32 s4, s64, {WS_H}")
I("s_addc_u32 s5, s65, 0")
I("v_mul_u32_u24 v6, 3584, v5")
I("v_lshl_add_u32 v6, v4, 5, v6")
I("v_lshrrev_b32 v7, 1, v2")
I("v_lshl_add_u32 v6, v7, 10, v6")
I("v_and_b32 v7, 1, v2")
I("v_lshl_add_u32 v6, v7, 9, v6")
I("v_lshl_add_u32 v6, v1, 4, v6")
I("s_nop 4")
for b in range(4):
    for a in range(4):
        c = G_ACC + 16 * a + 4 * b
        for r in range(4):
            I(f"v_max_f32 v{c+r}, 0, v{c+r}")
        I(f"v_cvt_pk_bf16_f32 v{80+8*b+2*a}, v{c}, v{c+1}")
        I(f"v_cvt_pk_bf16_f32 v{81+8*b+2*a}, v{c+2}, v{c+3}")
    if b > 0:
        I(f"v_add_u32 v6, {57344}, v6")
    I(f"global_store_dwordx4 v6, v[{80+8*b}:{83+8*b}], s[4:5] sc1")
    I(f"global_store_dwordx4 v6, v[{84+8*b}:{87+8*b}], s[4:5] offset:256 sc1")
publish(74)
MARK(2)

I(f"s_setprio {os.environ.get('PRIO_G2', '0')}")
I("s_load_dwordx2 s[16:17], s[0:1], 0")
I("s_load_dwordx2 s[18:19], s[0:1], 48")
I("s_load_dwordx2 s[20:21], s[0:1], 80")
I("s_mov_b32 s14, s64")
I("s_mov_b32 s15, s65")
I("v_and_b32 v4, 63, v0")
I("s_and_b32 s10, s2, 7")
I("s_lshr_b32 s3, s2, 3")
I("s_mul_i32 s8, s3, 9363")
I("s_lshr_b32 s8, s8, 16")
I("s_mul_i32 s9, s8, 7")
I("s_sub_u32 s9, s3, s9")
I("s_lshl_b32 s10, s10, 2")
I("s_add_u32 s8, s8, s10")
I("s_lshr_b32 s76, s8, 1")
I("s_lshl_b32 s76, s76, 6")
I(f"s_add_u32 s76, s76, {HF}")
I("s_lshl_b32 s77, s9, 7")
I(f"s_add_u32 s78, s77, {YF}")
I(f"s_add_u32 s77, s77, {W2F}")
I("s_lshl_b32 s9, s9, 6")
I("s_lshl_b32 s8, s8, 6")
wait_flags([(77, 28), (76, 14)])
MARK(3)
I("s_waitcnt lgkmcnt(0)")
I(f"s_add_u32 s4, s64, {WS_W2T}")
I("s_addc_u32 s5, s65, 0")
I(f"s_add_u32 s6, s64, {WS_H}")
I("s_addc_u32 s7, s65, 0")
I(f"s_add_u32 s10, s64, {WS_YT}")
I("s_addc_u32 s11, s65, 0")
EX, EXN, EY, EDK = 232, 240, 216, 208


def fin_late():
    I("v_lshrrev_b32 v249, 2, v4")
    I("v_lshl_add_u32 v249, v3, 4, v249")
    I("v_add_u32 v250, s8, v249")
    I("v_and_b32 v251, 3, v4")
    I("v_mul_u32_u24 v5, 896, v250")
    I("s_lshl_b32 s12, s9, 1")
    I("v_lshl_add_u32 v6, v251, 5, s12")
    I("v_add_u32 v5, v5, v6")
    I(f"global_load_dwordx4 v[{EX}:{EX+3}], v5, s[16:17]")
    I(f"global_load_dwordx4 v[{EX+4}:{EX+7}], v5, s[16:17] offset:16")
    I("v_lshrrev_b32 v248, 4, v250")
    I("v_mul_u32_u24 v248, 14336, v248")
    I("v_and_b32 v7, 15, v250")
    I("v_lshl_add_u32 v248, v7, 4, v248")
    I("v_lshrrev_b32 v7, 6, v6")
    I("v_lshl_add_u32 v248, v7, 10, v248")
    I("v_bfe_u32 v7, v6, 4, 2")
    I("v_lshl_add_u32 v248, v7, 8, v248")
    I(f"global_load_dwordx4 v[{EXN}:{EXN+3}], v248, s[14:15] sc1")
    I(f"global_load_dwordx4 v[{EXN+4}:{EXN+7}], v248, s[14:15] offset:256 sc1")
    I(f"global_load_dwordx4 v[{EDK}:{EDK+3}], v6, s[18:19]")
    I(f"global_load_dwordx4 v[{EDK+4}:{EDK+7}], v6, s[18:19] offset:16")
    I("v_lshlrev_b32 v7, 11, v6")
    I("v_lshl_add_u32 v252, v250, 1, v7")


def gemm_core(sa, sb, va, vb, acc0, buf0, ring, late, nlate):
    NS = 14
    PF = ring - 1

    def loads(s):
        bb = buf0 + 32 * (s % ring)
        off = (s & 3) * 1024
        if s and (s & 3) == 0:
            I(f"s_add_u32 s{sa}, s{sa}, 4096")
            I(f"s_addc_u32 s{sa+1}, s{sa+1}, 0")
            I(f"s_add_u32 s{sb}, s{sb}, 4096")
            I(f"s_addc_u32 s{sb+1}, s{sb+1}, 0")
        for j in range(4):
            I(f"global_load_dwordx4 v[{bb+4*j}:{bb+4*j+3}], v{va+j}, s[{sa}:{sa+1}] offset:{off} sc1")
        for j in range(4):
            I(f"global_load_dwordx4 v[{bb+16+4*j}:{bb+16+4*j+3}], v{vb+j}, s[{sb}:{sb+1}] offset:{off} sc1")

    for s in range(PF):
        loads(s)
    for s in range(NS):
        if s + PF < NS:
            loads(s + PF)
            if s + PF == NS - 1:
                late()
                I(f"s_waitcnt vmcnt({8*PF + nlate})")
            else:
                I(f"s_waitcnt vmcnt({8*PF})")
        else:
            I(f"s_waitcnt vmcnt({8*(NS-1-s) + nlate})")
        bb = buf0 + 32 * (s % ring)
        for a in range(4):
            for b in range(4):
                c = acc0 + 16 * a + 4 * b
                src = "0" if s == 0 else f"v[{c}:{c+3}]"
                I(f"v_mfma_f32_16x16x32_bf16 v[{c}:{c+3}], v[{bb+4*a}:{bb+4*a+3}], v[{bb+16+4*b}:{bb+16+4*b+3}], {src}")


I("v_mul_u32_u24 v7, 14336, v3")
I("v_lshl_add_u32 v7, v4, 4, v7")
I("s_mul_i32 s12, s9, 3584")
I("v_add_u32 v8, s12, v7")
for j in range(1, 4):
    I(f"v_add_u32 v{8+j}, {57344*j}, v8")
I("s_mul_i32 s12, s8, 3584")
I("v_add_u32 v12, s12, v7")
for j in range(1, 4):
    I(f"v_add_u32 v{12+j}, {57344*j}, v12")
F_ACC = 16
F_BUF = 80
gemm_core(4, 6, 8, 12, F_ACC, F_BUF, 4, fin_late, 6)
MARK(4)
I("v_lshl_add_u32 v6, v3, 6, v1")
I("v_mul_u32_u24 v6, 272, v6")
I("v_lshl_add_u32 v6, v2, 4, v6")
I("s_nop 4")
for a_ in range(4):
    for b_ in range(4):
        c = F_ACC + 16 * a_ + 4 * b_
        I(f"ds_write_b128 v6, v[{c}:{c+3}] offset:{16*b_*272 + 64*a_}")
I("s_waitcnt lgkmcnt(0)")
wait_flags([(78, 32)])
MARK(5)
for dd in range(16):
    if dd:
        I("v_add_u32 v252, 0x1000, v252")
    I(f"global_load_ushort v{EY+dd}, v252, s[10:11] sc1")
I("v_mul_u32_u24 v6, 272, v249")
I("v_lshl_add_u32 v6, v251, 6, v6")
for p in range(4):
    for j in range(4):
        I(f"ds_read_b128 v[{80+16*p+4*j}:{83+16*p+4*j}], v6 offset:{p*64*272 + 16*j}")
I("s_mov_b32 s22, 0xbfb8aa3b")
I("s_waitcnt vmcnt(16) lgkmcnt(0)")


def bfr(r):
    return [f"v_cvt_pk_bf16_f32 v{r}, v{r}, v{r}", f"v_lshlrev_b32 v{r}, 16, v{r}"]


def epi1(dd):
    o = 80 + dd
    t1, t2, t3 = 144 + dd, 160 + dd, 176 + dd
    h = dd & 1

    def unp(dst, reg):
        if h:
            return f"v_and_b32 v{dst}, 0xffff0000, v{reg + dd//2}"
        return f"v_lshlrev_b32 v{dst}, 16, v{reg + dd//2}"
    return [f"v_add_f32 v{o}, v{o}, v{o+16}",
            f"v_add_f32 v{o+32}, v{o+32}, v{o+48}",
            unp(t2, EXN), unp(t3, EDK),
            f"v_add_f32 v{o}, v{o}, v{o+32}",
            f"v_mul_f32 v{t2}, v{t2}, v{t3}"] + bfr(o) + bfr(t2) + [
            f"v_mul_f32 v{t1}, s22, v{o}",
            unp(t3, EX),
            f"v_exp_f32 v{t1}, v{t1}",
            "s_nop 0",
            f"v_add_f32 v{t1}, 1.0, v{t1}",
            f"v_rcp_f32 v{t1}, v{t1}",
            "s_nop 0",
            f"v_mul_f32 v{o}, v{o}, v{t1}"] + bfr(o)


def epi2(dd):
    o = 80 + dd
    t1, t2, t3 = 144 + dd, 160 + dd, 176 + dd
    return [f"v_lshlrev_b32 v{t1}, 16, v{EY+dd}",
            f"v_add_f32 v{t2}, v{t2}, v{t1}"] + bfr(t2) + [
            f"v_mul_f32 v{o}, v{o}, v{t2}"] + bfr(o) + [
            f"v_add_f32 v{o}, v{o}, v{t3}"]


for g in range(0, 16, 4):
    interleave([epi1(dd) for dd in range(g, g + 4)])
I("s_waitcnt vmcnt(0)")
for g in range(0, 16, 4):
    interleave([epi2(dd) for dd in range(g, g + 4)])
for j in range(8):
    I(f"v_cvt_pk_bf16_f32 v{16+j}, v{80+2*j}, v{81+2*j}")
I("global_store_dwordx4 v5, v[16:19], s[20:21]")
I("global_store_dwordx4 v5, v[20:23], s[20:21] offset:16")
I("s_endpgm")

L("B_start")
I(f"s_setprio {os.environ.get('PRIO_B', '0')}")
I(f"s_sub_u32 s2, s2, {NA}")
KSTG = 35072
UB = 2 * KR_STRIDE
I("s_load_dwordx4 s[4:7], s[0:1], 8")
I("s_load_dwordx4 s[8:11], s[0:1], 24")
I("s_load_dwordx2 s[12:13], s[0:1], 40")
I("s_lshl_b32 s3, s2, 10")
I("v_lshl_add_u32 v1, v0, 1, s3")
I("s_lshl_b32 s16, s2, 2")
I("v_mov_b32 v7, s16")
I("s_mov_b32 s20, 0x3fb8aa3b")
I("s_mov_b32 s21, 0x32a57060")
I("s_mov_b32 s22, 0x3f317218")
I("s_mov_b32 s23, 0x3e22f983")
I("s_mov_b32 s24, 0x31dc9c88")
I("s_waitcnt lgkmcnt(0)")
for ch in range(2):
    rb = 140 + 5 * ch
    I(f"global_load_ushort v{rb}, v1, s[4:5] offset:{512*ch}")
    I(f"global_load_ushort v{rb+1}, v1, s[6:7] offset:{512*ch}")
    I(f"global_load_ushort v{rb+2}, v1, s[8:9] offset:{512*ch}")
    I(f"global_load_ushort v{rb+3}, v1, s[10:11] offset:{512*ch}")
    I(f"global_load_ushort v{rb+4}, v7, s[12:13] offset:{2*ch}")
I("s_mov_b32 s74, 0")
I("v_mov_b32 v60, 0x80")
for g in range(2):
    es = [4 * g + k for k in range(4)]
    A_, B_, C_, D_, F_ = 10, 14, 48, 52, 56

    def col(fmt):
        for k, e in enumerate(es):
            I(fmt.format(a=A_ + k, b=B_ + k, c=C_ + k, d=D_ + k, f=F_ + k, e=e, o=160 + e))
    col("v_lshl_add_u32 v{a}, v0, 3, {e}")
    col("v_cvt_f32_u32 v{a}, v{a}")
    col("v_cvt_pk_bf16_f32 v{a}, v{a}, v{a}")
    col("v_bfe_u32 v{b}, v{a}, 7, 8")
    col("v_lshlrev_b32 v{a}, 16, v{a}")
    col("v_subrev_u32 v{b}, 134, v{b}")
    col("v_cvt_u32_f32 v{a}, v{a}")
    col("v_med3_i32 v{b}, v{b}, 0, 3")
    col("v_lshlrev_b32 v{c}, v{b}, v60")
    col("v_sub_u32 v{f}, 3, v{b}")
    col("v_and_b32 v{c}, 0xffffff00, v{c}")
    col("v_sub_u32 v{a}, v{a}, v{c}")
    col("v_and_b32 v{c}, 7, v{a}")
    col("v_lshrrev_b32 v{d}, 7, v{a}")
    col("v_lshrrev_b32 v{c}, v{b}, v{c}")
    col("v_lshlrev_b32 v{d}, v{f}, v{d}")
    col("v_bfe_u32 v{a}, v{a}, 3, 4")
    col("v_add_u32 v{c}, v{c}, v{d}")
    col("v_min_u32 v{d}, 1, v{b}")
    col("v_lshl_add_u32 v{c}, v{c}, 4, v{a}")
    col("v_add_u32 v{d}, v{d}, v{b}")
    col("v_lshl_add_u32 v{c}, v{d}, 7, v{c}")
    col("v_lshlrev_b32 v{o}, 2, v{c}")
I("s_waitcnt vmcnt(0)")
L("B_kloop")
KMARK(0)
for k, r in enumerate((2, 3, 4, 5, 6)):
    I(f"v_lshlrev_b32 v{r}, 16, v{140+k}")


def exp_acc(dst, x, t0, t1):
    I(f"v_mul_f32 v{t0}, s20, v{x}")
    I(f"v_fma_f32 v{t1}, v{x}, s20, -v{t0}")
    I(f"v_fma_f32 v{t1}, v{x}, s21, v{t1}")
    I(f"v_exp_f32 v{dst}, v{t0}")
    I(f"v_mul_f32 v{t1}, s22, v{t1}")
    I(f"v_fma_f32 v{dst}, v{dst}, v{t1}, v{dst}")


exp_acc(8, 6, 10, 11)
bf16r(8, 8)
exp_acc(9, 2, 10, 11)
bf16r(9, 9)
I("v_mul_f32 v9, v9, v8")
I("v_mul_f32 v12, s20, v9")
I("v_sub_f32 v12, 0, v12")
I("v_mul_f32 v3, v3, v8")
I("v_mul_f32 v13, s23, v3")
I("v_fma_f32 v14, v3, s23, -v13")
I("v_fma_f32 v14, v3, s24, v14")
I("v_rndne_f32 v10, v13")
I("v_sub_f32 v10, v13, v10")
I("v_and_b32 v13, 0xffffff00, v10")
I("v_sub_f32 v10, v10, v13")
I("v_add_f32 v14, v10, v14")
I("v_mul_f32 v15, v4, v8")
I("v_add_f32 v15, v15, v15")
I("v_mul_f32 v16, v5, v8")
I("v_add_f32 v16, v16, v16")
WREG = 8704
LOO = 4352
I("v_and_b32 v2, 15, v0")
I("v_bfe_u32 v3, v0, 4, 2")
I("v_lshrrev_b32 v6, 6, v0")
I(f"v_mul_u32_u24 v6, {WREG}, v6")
I(f"v_add_u32 v6, {KSTG}, v6")
I("v_and_b32 v4, 63, v0")
I("v_lshl_add_u32 v4, v4, 2, v6")
I("v_mul_u32_u24 v5, 272, v2")
I("v_lshl_add_u32 v5, v3, 4, v5")
I("v_add_u32 v5, v5, v6")


def cexp_ops(p, d, t):
    return [f"v_mul_f32 v{t}, {p}, v12",
            f"v_mul_f32 v{t+1}, {p}, v13",
            f"v_exp_f32 v{t}, v{t}",
            f"v_fract_f32 v{t+1}, v{t+1}",
            f"v_mov_b32 v{d}, {p}",
            f"v_fma_f32 v{t+1}, v{d}, v14, v{t+1}",
            f"v_cos_f32 v{d}, v{t+1}",
            f"v_sin_f32 v{d+1}, v{t+1}",
            "s_nop 0",
            f"v_mul_f32 v{d}, v{d}, v{t}",
            f"v_mul_f32 v{d+1}, v{d+1}, v{t}"]


def cmul_ops(d, a, b):
    return [f"v_mul_f32 v{d}, v{a}, v{b}",
            f"v_mul_f32 v{d+1}, v{a}, v{b+1}",
            f"v_fma_f32 v{d}, -v{a+1}, v{b+1}, v{d}",
            f"v_fma_f32 v{d+1}, v{a+1}, v{b}, v{d+1}"]


def split_ops(v, row, t, neg=False):
    n = "-" if neg else ""
    return [f"v_cvt_pk_bf16_f32 v{t}, v{v}, {n}v{v+1}",
            f"v_lshlrev_b32 v{t+1}, 16, v{t}",
            f"v_and_b32 v{t+2}, 0xffff0000, v{t}",
            f"v_sub_f32 v{t+1}, v{v}, v{t+1}",
            f"v_sub_f32 v{t+2}, {n}v{v+1}, v{t+2}",
            f"ds_write_b32 v4, v{t} offset:{row*272}",
            f"v_cvt_pk_bf16_f32 v{t+1}, v{t+1}, v{t+2}",
            f"ds_write_b32 v4, v{t+1} offset:{LOO + row*272}"]


ZQ = lambda q: 20 + 2 * q
EJ = lambda j: 40 + 2 * j
Z128 = 18
BH, BL = 72, 88
AF = 40
ACC = 124
GT = [104, 106, 108, 110]
ST = [112, 115, 118, 121]
KMARK(1)
interleave([cexp_ops("1.0", ZQ(1), 104), cexp_ops("0x41000000", EJ(1), 106), cexp_ops("0x43000000", Z128, 108)])
I("v_mov_b32 v40, 1.0")
I("v_mov_b32 v41, 0")
interleave([cmul_ops(EJ(2), EJ(1), EJ(1)), cmul_ops(ZQ(2), ZQ(1), ZQ(1)), split_ops(40, 0, ST[0], True), split_ops(EJ(1), 1, ST[1], True)])
interleave([cmul_ops(EJ(3), EJ(2), EJ(1)), cmul_ops(EJ(4), EJ(2), EJ(2)), cmul_ops(ZQ(3), ZQ(2), ZQ(1)), cmul_ops(ZQ(4), ZQ(2), ZQ(2)), split_ops(EJ(2), 2, ST[0], True)])
interleave([cmul_ops(EJ(5), EJ(4), EJ(1)), cmul_ops(EJ(6), EJ(3), EJ(3)), cmul_ops(EJ(7), EJ(4), EJ(3)), cmul_ops(EJ(8), EJ(4), EJ(4)),
            split_ops(EJ(3), 3, ST[0], True), split_ops(EJ(4), 4, ST[1], True)])
interleave([cmul_ops(ZQ(5), ZQ(4), ZQ(1)), cmul_ops(ZQ(6), ZQ(3), ZQ(3)), cmul_ops(ZQ(7), ZQ(4), ZQ(3)),
            cmul_ops(EJ(9), EJ(8), EJ(1)), cmul_ops(EJ(10), EJ(8), EJ(2)), cmul_ops(EJ(11), EJ(8), EJ(3)),
            split_ops(EJ(5), 5, ST[0], True), split_ops(EJ(6), 6, ST[1], True)])
interleave([cmul_ops(EJ(12), EJ(8), EJ(4)), cmul_ops(EJ(13), EJ(8), EJ(5)), cmul_ops(EJ(14), EJ(8), EJ(6)), cmul_ops(EJ(15), EJ(8), EJ(7)),
            split_ops(EJ(7), 7, ST[0], True), split_ops(EJ(8), 8, ST[1], True), split_ops(EJ(9), 9, ST[2], True), split_ops(EJ(10), 10, ST[3], True)])
interleave([split_ops(EJ(11 + k), 11 + k, ST[k], True) for k in range(4)])
interleave([split_ops(EJ(15), 15, ST[0], True), cmul_ops(38, 15, Z128)])
I("v_mov_b32 v36, v15")
I("v_mov_b32 v37, v16")
I("s_waitcnt lgkmcnt(0)")
for sidx in range(4):
    I(f"ds_read_b128 v[{BH+4*sidx}:{BH+4*sidx+3}], v5 offset:{64*sidx}")
    I(f"ds_read_b128 v[{BL+4*sidx}:{BL+4*sidx+3}], v5 offset:{LOO+64*sidx}")
KMARK(2)
CR_ = [36, 38, 6, 8, 10]
CK = lambda k: CR_[k % 5] if k < 8 else 170 + 2 * (k - 8)


def rowval(k, q, row, gi):
    if q == 0:
        return split_ops(CK(k), row, ST[gi])
    return cmul_ops(GT[gi], CK(k), ZQ(q)) + split_ops(GT[gi], row, ST[gi])


def tile_mfma(t):
    I("s_waitcnt lgkmcnt(0)")
    for sidx in range(4):
        I(f"ds_read_b128 v[{AF+4*sidx}:{AF+4*sidx+3}], v5 offset:{64*sidx}")
        I(f"ds_read_b128 v[{AF+16+4*sidx}:{AF+16+4*sidx+3}], v5 offset:{LOO+64*sidx}")
    acc = ACC + 4 * t
    out = []
    for sidx in range(4):
        ah, al = AF + 4 * sidx, AF + 16 + 4 * sidx
        bh, bl = BH + 4 * sidx, BL + 4 * sidx
        for (x, y) in ((ah, bh), (al, bh), (ah, bl)):
            src = "0" if (sidx == 0 and (x, y) == (ah, bh)) else f"v[{acc}:{acc+3}]"
            out.append(f"v_mfma_f32_16x16x32_bf16 v[{acc}:{acc+3}], v[{x}:{x+3}], v[{y}:{y+3}], {src}")
    return out


def run_rows(rows_, extra):
    for g in range(0, len(rows_), 4):
        ch = [rowval(k, q, row, gi) for gi, (k, q, row) in enumerate(rows_[g:g + 4])]
        if extra:
            ch.append(extra.pop(0))
        interleave(ch)
    for e in extra:
        interleave([e])


run_rows([(kap, q, q + 8 * kap) for kap in (0, 1) for q in range(8)],
         [cmul_ops(CK(k), CK(k - 1), Z128) for k in (2, 3, 4)])
mf = tile_mfma(0)
I("s_waitcnt lgkmcnt(0)")
KMARK(3)
r1 = [(2 + kp, q, q // 2 + 4 * kp) for kp in (0, 1) for q in (0, 2, 4, 6)]
r1b = [(4 + kp, q, 8 + q // 4 + 2 * kp) for kp in range(4) for q in (0, 4)]
interleave([mf[:6]] + [rowval(k, q, row, gi) for gi, (k, q, row) in enumerate(r1[:4])])
interleave([mf[6:]] + [rowval(k, q, row, gi) for gi, (k, q, row) in enumerate(r1[4:])] + [cmul_ops(CK(5), CK(4), Z128)])
interleave([rowval(k, q, row, gi) for gi, (k, q, row) in enumerate(r1b[:4])] + [cmul_ops(CK(6), CK(5), Z128) + cmul_ops(CK(7), CK(6), Z128)])
interleave([rowval(k, q, row, gi) for gi, (k, q, row) in enumerate(r1b[4:])] + [sum([cmul_ops(CK(k), CK(k - 1), Z128) for k in (8, 9, 10)], [])])
mf = tile_mfma(1)
I("s_waitcnt lgkmcnt(0)")
KMARK(4)
interleave([split_ops(CK(8 + r), r, ST[r]) for r in range(3)] + [sum([cmul_ops(CK(k), CK(k - 1), Z128) for k in (11, 12, 13)], []), mf[:6]])
interleave([split_ops(CK(11 + r), 3 + r, ST[r]) for r in range(3)] + [sum([cmul_ops(CK(k), CK(k - 1), Z128) for k in (14, 15, 16)], []), mf[6:]])
interleave([split_ops(CK(14 + r), 6 + r, ST[r]) for r in range(3)])
mf = tile_mfma(2)
I("s_waitcnt lgkmcnt(0)")
for m in mf:
    I(m)
I("s_nop 7")
I("s_nop 1")
I("v_lshrrev_b32 v19, 6, v0")
I(f"v_mul_u32_u24 v19, {WREG}, v19")
I("v_lshl_add_u32 v19, v3, 8, v19")
I("v_lshl_add_u32 v19, v2, 2, v19")
for t in range(3):
    for r in range(4):
        I(f"ds_write_b32 v19, v{ACC+4*t+r} offset:{KSTG + t*1024 + r*64}")
I("s_waitcnt lgkmcnt(0)")
I("s_barrier")
KMARK(5)
for e in range(8):
    for w in range(4):
        I(f"ds_read_b32 v{16 + 4*e + w}, v{160+e} offset:{KSTG + w*8704}")
    if e == 3:
        I("s_waitcnt lgkmcnt(0)")
I("s_waitcnt lgkmcnt(0)")
for e in range(8):
    b = 16 + 4 * e
    I(f"v_add_f32 v{b}, v{b}, v{b+1}")
    I(f"v_add_f32 v{b+2}, v{b+2}, v{b+3}")
    I(f"v_add_f32 v{b}, v{b}, v{b+2}")
for j in range(4):
    ka, kb = 16 + 4 * (7 - 2 * j), 16 + 4 * (6 - 2 * j)
    I(f"v_cvt_pk_bf16_f32 v{48+j}, v{ka}, v{kb}")
    I(f"v_lshlrev_b32 v10, 16, v{48+j}")
    I(f"v_and_b32 v11, 0xffff0000, v{48+j}")
    I(f"v_sub_f32 v10, v{ka}, v10")
    I(f"v_sub_f32 v11, v{kb}, v11")
    I(f"v_cvt_pk_bf16_f32 v{52+j}, v10, v11")
I("v_lshlrev_b32 v10, 4, v0")
I("v_sub_u32 v10, 4080, v10")
I("v_add_u32 v10, s74, v10")
I("ds_write_b128 v10, v[48:51]")
I("ds_write_b128 v10, v[52:55] offset:4608")
I("v_cmp_gt_u32 vcc, 64, v0")
I("s_and_saveexec_b64 s[18:19], vcc")
I("v_and_b32 v10, 31, v0")
I("v_lshlrev_b32 v10, 4, v10")
I("v_lshrrev_b32 v11, 5, v0")
I("v_mul_u32_u24 v11, 4608, v11")
I("v_add3_u32 v10, v10, v11, s74")
for r in range(12, 16):
    I(f"v_mov_b32 v{r}, 0")
I("ds_write_b128 v10, v[12:15] offset:4096")
I("s_mov_b64 exec, s[18:19]")
I("s_waitcnt lgkmcnt(0)")
I("s_barrier")
KMARK(6)
for k in range(5):
    I(f"v_mov_b32 v{140+k}, v{145+k}")
I(f"s_add_u32 s74, s74, {KR_STRIDE}")
I(f"s_cmp_eq_u32 s74, {2*KR_STRIDE}")
I("s_cbranch_scc1 B_kdone")
MARK(0)
I(f"s_mov_b32 s76, {LNF}")
I(f"s_mov_b32 s77, {LNF + 256}")
wait_flags([(76, 64), (77, 64)])
I("v_and_b32 v1, 15, v0")
I("v_bfe_u32 v2, v0, 4, 2")
I("v_lshrrev_b32 v3, 6, v0")
I("s_lshr_b32 s6, s2, 4")
I("s_lshl_b32 s6, s6, 10")
I("s_lshr_b32 s7, s2, 2")
I("s_and_b32 s7, s7, 3")
I("s_lshl_b32 s7, s7, 8")
I("s_add_u32 s6, s6, s7")
I("s_and_b32 s7, s2, 3")
I("s_lshl_b32 s7, s7, 2")
I("s_add_u32 s6, s6, s7")
I("s_add_u32 s6, s64, s6")
I("s_addc_u32 s7, s65, 0")
I("v_lshrrev_b32 v4, 4, v0")
I("v_mul_u32_u24 v4, 14336, v4")
I("v_lshl_add_u32 v4, v1, 4, v4")
for j in range(8):
    if j:
        I(f"v_add_u32 v4, {16*14336}, v4")
    I(f"global_load_dword v{190+j}, v4, s[6:7] sc1")
I("s_branch B_kloop")
L("B_kdone")
I(f"s_setprio {os.environ.get('PRIO_C', '3')}")
MARK(1)
I("v_and_b32 v1, 15, v0")
I("v_bfe_u32 v2, v0, 4, 2")
I("v_lshrrev_b32 v3, 6, v0")
I("v_lshlrev_b32 v5, 1, v0")
I("v_cmp_gt_u32 vcc, 16, v0")
I("s_and_saveexec_b64 s[18:19], vcc")
I("v_mov_b32 v8, 0")
for q in range(4):
    I(f"ds_write_b16 v5, v8 offset:{UB + q*XNT_STRIDE}")
I("s_mov_b64 exec, s[18:19]")
I("s_waitcnt lgkmcnt(0)")
I("s_barrier")
for j in range(8):
    I(f"s_waitcnt vmcnt({7-j})")
    o = UB + 512 * j
    I(f"ds_write_b16 v5, v{190+j} offset:{o + 32}")
    I(f"ds_write_b16 v5, v{190+j} offset:{o + XNT_STRIDE + 30}")
    I(f"ds_write_b16_d16_hi v5, v{190+j} offset:{o + 2*XNT_STRIDE + 32}")
    I(f"ds_write_b16_d16_hi v5, v{190+j} offset:{o + 3*XNT_STRIDE + 30}")
I("s_waitcnt lgkmcnt(0)")
I("s_barrier")
MARK(2)
I("v_lshrrev_b32 v4, 1, v3")
I("v_lshl_add_u32 v5, v2, 3, v1")
I("v_add_u32 v5, 1, v5")
I("v_and_b32 v7, 1, v5")
I("v_sub_u32 v5, v5, v7")
I("v_lshlrev_b32 v5, 1, v5")
I(f"v_mul_u32_u24 v7, {XNT_STRIDE}, v7")
I("v_add_u32 v5, v5, v7")
I(f"v_mul_u32_u24 v7, {2*XNT_STRIDE}, v4")
I("v_add_u32 v5, v5, v7")
I("v_and_b32 v7, 1, v3")
I("v_lshl_add_u32 v5, v7, 8, v5")
I(f"v_add_u32 v232, {UB}, v5")
for c in range(1, 8):
    I(f"v_add_u32 v{232+c}, {512*c}, v232")
I(f"v_mul_u32_u24 v6, {KR_STRIDE}, v4")
I("v_lshl_add_u32 v6, v2, 4, v6")
I("v_lshl_add_u32 v6, v7, 8, v6")
I("v_lshlrev_b32 v7, 5, v1")
I("v_sub_u32 v6, v6, v7")
I("v_add_u32 v6, 480, v6")
CA0 = 8
CBUF = 40


def creads(r):
    bb = CBUF + 96 * (r & 1)
    out = []
    for c in range(8):
        out.append(f"ds_read2_b32 v[{bb+4*c}:{bb+4*c+1}], v{232+c} offset0:{16*r} offset1:{16*r+1}")
        out.append(f"ds_read2_b32 v[{bb+4*c+2}:{bb+4*c+3}], v{232+c} offset0:{16*r+2} offset1:{16*r+3}")
    for n in range(8):
        o = 3584 - 512 * n + 64 * r
        out.append(f"ds_read_b128 v[{bb+32+8*n}:{bb+32+8*n+3}], v6 offset:{o}")
        out.append(f"ds_read_b128 v[{bb+36+8*n}:{bb+36+8*n+3}], v6 offset:{o+4608}")
    return out


for x in creads(0):
    I(x)
for r in range(4):
    I("s_waitcnt lgkmcnt(0)")
    nxt = creads(r + 1) if r < 3 else []
    bb = CBUF + 96 * (r & 1)
    mf = []
    for T in range(8):
        acc = CA0 + 4 * T
        for c in range(T + 1):
            n = T - c
            first = (r == 0 and c == 0)
            src = "0" if first else f"v[{acc}:{acc+3}]"
            mf.append(f"v_mfma_f32_16x16x32_bf16 v[{acc}:{acc+3}], v[{bb+4*c}:{bb+4*c+3}], v[{bb+32+8*n}:{bb+32+8*n+3}], {src}")
            mf.append(f"v_mfma_f32_16x16x32_bf16 v[{acc}:{acc+3}], v[{bb+4*c}:{bb+4*c+3}], v[{bb+36+8*n}:{bb+36+8*n+3}], v[{acc}:{acc+3}]")
    k = 0
    for idx, m in enumerate(mf):
        I(m)
        if k < len(nxt) and idx % 2 == 1:
            I(nxt[k]); k += 1
    while k < len(nxt):
        I(nxt[k]); k += 1
I("s_barrier")
I("v_and_b32 v5, 63, v0")
I("v_lshlrev_b32 v5, 4, v5")
I("v_lshl_add_u32 v6, v3, 12, v5")
I("v_xor_b32 v7, 1, v3")
I("v_lshl_add_u32 v5, v7, 12, v5")
I("s_lshl_b32 s10, s2, 13")
I(f"s_add_u32 s10, s10, {WS_YT}")
I("s_add_u32 s10, s64, s10")
I("s_addc_u32 s11, s65, 0")
I("v_lshlrev_b32 v7, 12, v4")
I("v_lshl_add_u32 v7, v1, 5, v7")
I("v_lshl_add_u32 v7, v2, 3, v7")
I("s_lshl_b32 s74, s2, 2")
I(f"s_add_u32 s74, s74, {YF}")
I("s_and_b32 s9, s69, 1")
I("s_cmp_eq_u32 s9, 1")
I("s_cbranch_scc1 B_cv1")
for h in range(2):
    if h:
        L("B_cv1")
    keep = [4 * h + j for j in range(4)]
    give = [4 * (1 - h) + j for j in range(4)]
    for j, T in enumerate(give):
        I(f"ds_write_b128 v6, v[{CA0+4*T}:{CA0+4*T+3}] offset:{1024*j}")
    I("s_waitcnt lgkmcnt(0)")
    I("s_barrier")
    for j in range(4):
        I(f"ds_read_b128 v[{40+4*j}:{43+4*j}], v5 offset:{1024*j}")
    I("s_waitcnt lgkmcnt(0)")
    for j, T in enumerate(keep):
        acc = CA0 + 4 * T
        for r_ in range(4):
            I(f"v_add_f32 v{acc+r_}, v{acc+r_}, v{40+4*j+r_}")
        I(f"v_cvt_pk_bf16_f32 v{56+2*j}, v{acc}, v{acc+1}")
        I(f"v_cvt_pk_bf16_f32 v{57+2*j}, v{acc+2}, v{acc+3}")
        I(f"global_store_dwordx2 v7, v[{56+2*j}:{57+2*j}], s[10:11] offset:{512*T} sc1")
    if h == 0:
        I("s_branch B_pub")
L("B_pub")
MARK(3)
publish(74)
I("s_endpgm")
L("X_exit")
lines.append("    s_endpgm")

E('.section .rodata,"a"')
E(".p2align 6")
E(f".amdhsa_kernel {NAME}_kernel")
E("  .amdhsa_next_free_vgpr 256")
E("  .amdhsa_next_free_sgpr 96")
E("  .amdhsa_accum_offset 256")
E("  .amdhsa_group_segment_fixed_size 0")
E("  .amdhsa_kernarg_size 104")
E("  .amdhsa_user_sgpr_count 2")
E("  .amdhsa_user_sgpr_kernarg_segment_ptr 1")
E("  .amdhsa_system_sgpr_workgroup_id_x 1")
E("  .amdhsa_float_denorm_mode_32 3")
E(".end_amdhsa_kernel")
open(OUT, "w").write("\n".join(lines) + "\n")
print("wrote", OUT, len(lines), "lines")
```

```python
import sys, os

NAME = "recurrent_scan__ssm_conv_s4d__dense_activation_relu__prompt"
OUT = sys.argv[1] if len(sys.argv) > 1 else f"cdna_kernels/{NAME}.s"
STAMP = int(os.environ.get("STAMP", "0"))

WS_XN = 0x0000000
WS_XNT = 0x0200000
XNT_STRIDE = 4160
KR_STRIDE = 9216
if os.environ.get("COMPACT"):
    WS_FLG = 0x01C0000
    WS_W1T = 0x01C4000
    WS_W2T = WS_W1T + 0x188000
    WS_YT = WS_W2T + 0x188000
    WS_H = WS_YT + 0x1C0000
else:
    WS_W1T = 0x0400000
    WS_W2T = 0x0600000
    WS_H = 0x1000000
    WS_YT = 0x1800000
    WS_FLG = 0x1C00000
LNF, W1F, W2F, HF, YF, LNF2, DUMMYF = 0, 1024, 2048, 3072, 4096, 5120, 6144

NA, NB = 224, 224
GRID = NA + NB
LDS = 70144

lines = []


def E(s=""):
    lines.append(s)


def I(s):
    if STAMP and s == "s_endpgm":
        for x in ("s_mov_b64 exec, -1",
                  "s_memrealtime s[34:35]", "s_memtime s[36:37]",
                  "s_waitcnt vmcnt(0) lgkmcnt(0)",
                  f"s_add_u32 s38, s64, {0x2000000}", "s_addc_u32 s39, s65, 0",
                  "s_lshl_b32 s2, s28, 2", "s_add_u32 s2, s2, s69", "s_lshl_b32 s2, s2, 5", "v_mov_b32 v1, s2",
                  "v_mov_b32 v4, s30", "v_mov_b32 v5, s31", "v_mov_b32 v6, s34", "v_mov_b32 v7, s35",
                  "v_mov_b32 v8, s32", "v_mov_b32 v9, s33", "v_mov_b32 v10, s36", "v_mov_b32 v11, s37",
                  "global_store_dwordx4 v1, v[4:7], s[38:39]", "global_store_dwordx4 v1, v[8:11], s[38:39] offset:16",
                  "v_mov_b32 v4, s40", "v_mov_b32 v5, s42", "v_mov_b32 v6, s44", "v_mov_b32 v7, s46",
                  "v_mov_b32 v8, s48", "v_mov_b32 v9, s50", "v_mov_b32 v10, s52", "v_mov_b32 v11, s54",
                  "v_add_u32 v1, 0x100000, v1",
                  "global_store_dwordx4 v1, v[4:7], s[38:39]", "global_store_dwordx4 v1, v[8:11], s[38:39] offset:16"):
            lines.append("    " + x)
    lines.append("    " + s)


def KMARK(n):
    if STAMP and os.environ.get("KM"):
        lines.append(f"    s_memtime s[{40+2*n}:{41+2*n}]")


def MARK(n):
    if STAMP and not os.environ.get("KM"):
        lines.append(f"    s_memtime s[{40+2*n}:{41+2*n}]")


def L(lbl):
    lines.append(lbl + ":")


_uid = [0]


def uid(p):
    _uid[0] += 1
    return f"{p}_{_uid[0]}"


def interleave(chains):
    chains = [list(c) for c in chains]
    while any(chains):
        for c in chains:
            if c:
                I(c.pop(0))


def bf16r(dst, src):
    I(f"v_cvt_pk_bf16_f32 v{dst}, v{src}, v{src}")
    I(f"v_lshlrev_b32 v{dst}, 16, v{dst}")


def get_nonce():
    a, b = uid("N_poll"), uid("N_ok")
    I("s_cmp_lg_u32 s68, 0")
    I(f"s_cbranch_scc1 {b}")
    I("s_waitcnt vmcnt(0)")
    I("v_readfirstlane_b32 s68, v255")
    I("s_cmp_lg_u32 s68, 0")
    I(f"s_cbranch_scc1 {b}")
    I("v_mov_b32 v253, 0")
    L(a)
    I("global_load_dword v254, v253, s[66:67] sc1")
    I("s_waitcnt vmcnt(0)")
    I("v_readfirstlane_b32 s68, v254")
    I("s_cmp_lg_u32 s68, 0")
    I(f"s_cbranch_scc1 {b}")
    I("s_sleep 4")
    I(f"s_branch {a}")
    L(b)


def publish(*soffs):
    e = uid("PB_end")
    I("s_waitcnt vmcnt(0) lgkmcnt(0)")
    I("s_barrier")
    I("s_cmp_lg_u32 s69, 0")
    I(f"s_cbranch_scc1 {e}")
    get_nonce()
    I("v_mov_b32 v254, s68")
    I("s_mov_b64 s[72:73], exec")
    I("s_mov_b64 exec, 1")
    for soff in soffs:
        I(f"v_mov_b32 v253, s{soff}")
        I("global_store_dword v253, v254, s[70:71] sc1")
    I("s_mov_b64 exec, s[72:73]")
    L(e)


def wait_flags(specs, first_sleep=0):
    e = uid("W_end")
    I("s_cmp_lg_u32 s69, 0")
    I(f"s_cbranch_scc1 {e}")
    get_nonce()
    if first_sleep:
        I(f"s_sleep {first_sleep}")
    for (soff, n) in specs:
        a, b = uid("W_poll"), uid("W_ok")
        I("v_and_b32 v253, 63, v0")
        I(f"v_min_u32 v253, {n-1}, v253")
        I(f"v_lshl_add_u32 v253, v253, 2, s{soff}")
        L(a)
        I("global_load_dword v254, v253, s[70:71] sc1")
        I("s_waitcnt vmcnt(0)")
        I("v_cmp_ne_u32 vcc, s68, v254")
        I("s_cmp_eq_u64 vcc, 0")
        I(f"s_cbranch_scc1 {b}")
        I("s_sleep 3")
        I(f"s_branch {a}")
        L(b)
    L(e)
    I("s_barrier")


HEADER = open(f"cdna_kernels/{NAME}.s.ref").read().split("; Override launch")[0]
E(HEADER.rstrip("\n"))
E(f"; @launch grid=({GRID},1,1) block=(256,1,1) lds={LDS}")
E('.amdgcn_target "amdgcn-amd-amdhsa--gfx950"')
E(".text")
E(f".globl {NAME}_kernel")
E(".p2align 8")
E(f".type {NAME}_kernel,@function")
L(f"{NAME}_kernel")
I(f"s_cmp_ge_u32 s2, {GRID}")
I("s_cbranch_scc1 X_exit")
I("s_mov_b32 s28, s2")
if STAMP:
    I("s_memrealtime s[30:31]")
    I("s_memtime s[32:33]")
I("s_load_dwordx4 s[64:67], s[0:1], 88")
I("v_readfirstlane_b32 s69, v0")
I("s_lshr_b32 s69, s69, 6")
I("s_mov_b32 s68, 0")
I("s_waitcnt lgkmcnt(0)")
I("s_mov_b32 s72, s64")
I("s_mov_b32 s73, s65")
I("s_mov_b32 s64, s66")
I("s_mov_b32 s65, s67")
I("s_mov_b32 s66, s72")
I("s_mov_b32 s67, s73")
I(f"s_add_u32 s70, s64, {WS_FLG}")
I("s_addc_u32 s71, s65, 0")
I("s_or_b32 s72, s2, s69")
I("s_cmp_lg_u32 s72, 0")
I("s_cbranch_scc1 X_nononce")
I("s_memrealtime s[72:73]")
I("s_waitcnt lgkmcnt(0)")
I("s_or_b32 s68, s72, 1")
I("v_mov_b32 v253, 0")
I("v_mov_b32 v254, s68")
I("s_mov_b64 exec, 1")
I("global_store_dword v253, v254, s[66:67] sc1")
I("s_mov_b64 exec, -1")
L("X_nononce")
I("v_mov_b32 v253, 0")
I("global_load_dword v255, v253, s[66:67] sc1")
I(f"s_cmp_ge_u32 s2, {NA}")
I("s_cbranch_scc1 B_start")

I(f"s_setprio {os.environ.get('PRIO_A', '3')}")
I("s_cmp_ge_u32 s2, 128")
I("s_cbranch_scc1 A_wtonly")
I("s_load_dwordx2 s[4:5], s[0:1], 0")
I("s_mov_b32 s14, s64")
I("s_mov_b32 s15, s65")
I("s_mov_b32 s3, s2")
I("v_lshrrev_b32 v1, 6, v0")
I("v_and_b32 v2, 63, v0")
I("s_lshl_b32 s6, s3, 4")
I("v_lshl_add_u32 v3, v1, 2, s6")
I("v_mul_u32_u24 v3, 896, v3")
I("v_lshl_add_u32 v3, v2, 4, v3")
I("s_mul_i32 s7, s3, 14336")
I("v_lshrrev_b32 v29, 2, v2")
I("v_lshlrev_b32 v29, 10, v29")
I("v_and_b32 v28, 3, v2")
I("v_lshl_add_u32 v29, v28, 8, v29")
I("v_lshl_add_u32 v29, v1, 6, v29")
I("s_mov_b32 s20, 0x3b124925")
I("s_mov_b32 s21, 0x43e00000")
I("s_mov_b32 s22, 0x3727c5ac")
for r in range(8, 24):
    I(f"v_mov_b32 v{r}, 0")
I("s_mov_b64 s[16:17], exec")
I("s_mov_b32 s18, -1")
I("s_mov_b32 s19, 0x00ffffff")
I("s_waitcnt lgkmcnt(0)")
I("s_mov_b64 exec, s[18:19]")
for k in range(4):
    I(f"global_load_dwordx4 v[{8+4*k}:{11+4*k}], v3, s[4:5] offset:{896*k}")
I("s_mov_b64 exec, s[16:17]")
I("s_waitcnt vmcnt(0)")
for k in range(4):
    for j in range(4):
        I(f"v_lshlrev_b32 v{32+8*k+2*j}, 16, v{8+4*k+j}")
        I(f"v_and_b32 v{33+8*k+2*j}, 0xffff0000, v{8+4*k+j}")


def rows(fmt, **kw):
    for k in range(4):
        b = 32 + 8 * k
        I(fmt.format(k=k, s=8 + k, t=12 + k, m=16 + k, u=20 + k, w=64 + k, x=68 + k, sg=24 + k,
                     b0=b, b1=b + 1, b2=b + 2, b3=b + 3, b4=b + 4, b5=b + 5, b6=b + 6, b7=b + 7, **kw))


def dpp4():
    for sh in (1, 2, 4, 8):
        rows("v_add_f32_dpp v{s}, v{s}, v{s} row_shr:%d row_mask:0xf bank_mask:0xf bound_ctrl:0" % sh)
    rows("v_add_f32_dpp v{s}, v{s}, v{s} row_bcast:15 row_mask:0xa bank_mask:0xf")
    rows("v_add_f32_dpp v{s}, v{s}, v{s} row_bcast:31 row_mask:0xc bank_mask:0xf")
    rows("v_readlane_b32 s{sg}, v{s}, 63")


rows("v_add_f32 v{s}, v{b0}, v{b1}")
rows("v_add_f32 v{t}, v{b2}, v{b3}")
rows("v_add_f32 v{m}, v{b4}, v{b5}")
rows("v_add_f32 v{u}, v{b6}, v{b7}")
rows("v_add_f32 v{s}, v{s}, v{t}")
rows("v_add_f32 v{m}, v{m}, v{u}")
rows("v_add_f32 v{s}, v{s}, v{m}")
dpp4()
rows("v_mov_b32 v{t}, s{sg}")
rows("v_mul_f32 v{m}, s20, v{t}")
rows("v_fma_f32 v{u}, -v{m}, s21, v{t}")
rows("v_fma_f32 v{m}, v{u}, s20, v{m}")
rows("v_mov_b32 v{s}, 0")
I("s_mov_b64 exec, s[18:19]")
for j in range(8):
    rows("v_sub_f32 v{t}, v{bj}, v{m}".replace("{bj}", "{b%d}" % j))
    rows("v_fmac_f32 v{s}, v{t}, v{t}")
I("s_mov_b64 exec, s[16:17]")
I("s_nop 1")
dpp4()
rows("v_mov_b32 v{t}, s{sg}")
rows("v_mul_f32 v{u}, s20, v{t}")
rows("v_fma_f32 v{w}, -v{u}, s21, v{t}")
rows("v_fma_f32 v{u}, v{w}, s20, v{u}")
rows("v_cvt_pk_bf16_f32 v{u}, v{u}, v{u}")
rows("v_cvt_pk_bf16_f32 v{m}, v{m}, v{m}")
rows("v_lshlrev_b32 v{u}, 16, v{u}")
rows("v_lshlrev_b32 v{m}, 16, v{m}")
rows("v_add_f32 v{u}, s22, v{u}")
rows("v_cvt_pk_bf16_f32 v{u}, v{u}, v{u}")
rows("v_lshlrev_b32 v{u}, 16, v{u}")
rows("v_sqrt_f32 v{w}, v{u}")
for j in range(8):
    rows("v_sub_f32 v{bj}, v{bj}, v{m}".replace("{bj}", "{b%d}" % j))
rows("v_rcp_f32 v{x}, v{w}")
rows("v_fma_f32 v{t}, -v{w}, v{w}, v{u}")
rows("v_mul_f32 v{x}, 0.5, v{x}")
rows("v_fma_f32 v{w}, v{t}, v{x}, v{w}")
rows("v_cvt_pk_bf16_f32 v{w}, v{w}, v{w}")
rows("v_lshlrev_b32 v{w}, 16, v{w}")
rows("v_rcp_f32 v{x}, v{w}")
for j in range(0, 8, 2):
    rows("v_cvt_pk_bf16_f32 v{t}, v{bj}, v{bk}".replace("{bj}", "{b%d}" % j).replace("{bk}", "{b%d}" % (j + 1)))
    rows("v_lshlrev_b32 v{bj}, 16, v{t}".replace("{bj}", "{b%d}" % j))
    rows("v_and_b32 v{bk}, 0xffff0000, v{t}".replace("{bk}", "{b%d}" % (j + 1)))
rows("v_fma_f32 v{t}, -v{w}, v{x}, 1.0")
rows("v_fma_f32 v{x}, v{t}, v{x}, v{x}")
for j in range(8):
    rows("v_mul_f32 v{t}, v{bj}, v{x}".replace("{bj}", "{b%d}" % j))
    rows("v_fma_f32 v{u}, -v{t}, v{w}, v{bj}".replace("{bj}", "{b%d}" % j))
    rows("v_fma_f32 v{bj}, v{u}, v{x}, v{t}".replace("{bj}", "{b%d}" % j))
for j in range(4):
    for k in range(4):
        b = 32 + 8 * k
        I(f"v_cvt_pk_bf16_f32 v{8+4*k+j}, v{b+2*j}, v{b+2*j+1}")
I("v_lshlrev_b32 v30, 2, v1")
I("v_mul_u32_u24 v30, 896, v30")
I("v_lshl_add_u32 v30, v2, 4, v30")
I("s_mov_b64 exec, s[18:19]")
for k in range(4):
    I(f"ds_write_b128 v29, v[{8+4*k}:{11+4*k}] offset:{16384 + 16*k}")
I("s_mov_b64 exec, s[16:17]")
I("s_waitcnt lgkmcnt(0)")
I("s_barrier")
I("v_lshlrev_b32 v4, 4, v0")
I("v_add_u32 v5, s7, v4")
for q in range(3):
    I(f"ds_read_b128 v[{8+4*q}:{11+4*q}], v4 offset:{16384 + 4096*q}")
I("v_cmp_gt_u32 vcc, 128, v0")
I("s_and_saveexec_b64 s[16:17], vcc")
I(f"ds_read_b128 v[20:23], v4 offset:{16384 + 12288}")
I("v_add_u32 v6, 0x3000, v5")
I("s_waitcnt lgkmcnt(0)")
I("global_store_dwordx4 v6, v[20:23], s[14:15] sc1")
I("s_mov_b64 exec, s[16:17]")
I("v_add_u32 v6, 0x1000, v5")
I("v_add_u32 v7, 0x2000, v5")
I("s_waitcnt lgkmcnt(0)")
I("global_store_dwordx4 v5, v[8:11], s[14:15] sc1")
I("global_store_dwordx4 v6, v[12:15], s[14:15] sc1")
I("global_store_dwordx4 v7, v[16:19], s[14:15] sc1")
I("s_lshl_b32 s74, s3, 2")
publish(74)
I("s_branch A_g1")
L("A_wtonly")
I("s_load_dwordx4 s[4:7], s[0:1], 64")
I("s_sub_u32 s3, s2, 128")
I("s_mov_b32 s75, 96")
I("s_cmp_lt_u32 s3, 4")
I("s_cselect_b32 s75, 192, s75")


def wt3(which):
    if which == 1:
        sst, dtile, magic, nk, sp, wsoff = 3584, 14336, 9363, 7, 4, WS_W1T
    else:
        sst, dtile, magic, nk, sp, wsoff = 896, 57344, 2341, 28, 6, WS_W2T
    I(f"s_add_u32 s14, s64, {wsoff}")
    I("s_addc_u32 s15, s65, 0")
    I("v_lshrrev_b32 v1, 3, v0")
    I("v_and_b32 v2, 7, v0")
    I(f"v_mul_u32_u24 v3, {sst}, v1")
    I("v_lshl_add_u32 v3, v2, 4, v3")
    I("v_lshlrev_b32 v5, 7, v1")
    I("v_lshl_add_u32 v5, v2, 4, v5")
    for j in range(3):
        sj = 80 + 4 * j
        if j == 0:
            I(f"s_mov_b32 s{sj}, s3")
        elif j == 1:
            I(f"s_add_u32 s{sj}, s3, 96")
        else:
            I(f"s_add_u32 s{sj}, s3, s75")
        I(f"s_mul_i32 s{sj+2}, s{sj}, {magic}")
        I(f"s_lshr_b32 s{sj+2}, s{sj+2}, 16")
        I(f"s_mul_i32 s{sj+1}, s{sj+2}, {nk}")
        I(f"s_sub_u32 s{sj+1}, s{sj}, s{sj+1}")
        if which == 1:
            I(f"s_and_b32 s{sj+3}, s{sj+2}, 1")
            I(f"s_mul_i32 s{sj+3}, s{sj+3}, 7")
            I(f"s_add_u32 s{sj+3}, s{sj+3}, s{sj+1}")
            I(f"s_lshl_b32 s{sj+3}, s{sj+3}, 2")
            I(f"s_lshr_b32 s12, s{sj+2}, 1")
            I("s_lshl_b32 s12, s12, 6")
            I(f"s_add_u32 s{sj+3}, s{sj+3}, s12")
            I(f"s_add_u32 s{sj+3}, s{sj+3}, {W1F}")
        else:
            I(f"s_lshl_b32 s{sj+3}, s{sj+2}, 7")
            I(f"s_lshl_b32 s12, s{sj+1}, 2")
            I(f"s_add_u32 s{sj+3}, s{sj+3}, s12")
            I(f"s_add_u32 s{sj+3}, s{sj+3}, {W2F}")
    I("s_waitcnt lgkmcnt(0)")
    for j in range(3):
        sj = 80 + 4 * j
        I(f"s_mul_i32 s12, s{sj+1}, {64*sst}")
        I(f"s_lshl_b32 s13, s{sj+2}, 7")
        I("s_add_u32 s12, s12, s13")
        I("v_add_u32 v4, s12, v3")
        I(f"v_add_u32 v6, {32*sst}, v4")
        I(f"global_load_dwordx4 v[{8+8*j}:{11+8*j}], v4, s[{sp}:{sp+1}]")
        I(f"global_load_dwordx4 v[{12+8*j}:{15+8*j}], v6, s[{sp}:{sp+1}]")
    for j in range(3):
        I(f"s_waitcnt vmcnt({4-2*j})")
        I(f"ds_write_b128 v5, v[{8+8*j}:{11+8*j}] offset:{8192*j}")
        I(f"ds_write_b128 v5, v[{12+8*j}:{15+8*j}] offset:{8192*j+4096}")
    I("s_waitcnt lgkmcnt(0)")
    I("s_barrier")
    I("v_and_b32 v1, 15, v0")
    I("v_bfe_u32 v2, v0, 4, 2")
    I("v_lshrrev_b32 v3, 6, v0")
    if which == 1:
        I("v_lshrrev_b32 v4, 2, v1")
        I("v_lshlrev_b32 v4, 4, v4")
        I("v_lshl_add_u32 v4, v3, 2, v4")
        I("v_and_b32 v6, 3, v1")
        I("v_add_u32 v4, v4, v6")
    else:
        I("v_lshl_add_u32 v4, v3, 4, v1")
    I("v_lshlrev_b32 v5, 10, v2")
    I("v_lshl_add_u32 v5, v4, 1, v5")
    I(f"v_mul_u32_u24 v3, {dtile}, v3")
    I("v_and_b32 v4, 63, v0")
    I("v_lshl_add_u32 v3, v4, 4, v3")
    for j in range(3):
        sj = 80 + 4 * j
        for c in range(2):
            for e in range(8):
                I(f"ds_read_u16 v{40 + 8*c + e}, v5 offset:{8192*j + 4096*c + 128*e}")
            if c == 0:
                I("s_waitcnt lgkmcnt(0)")
        I(f"s_mul_i32 s12, s{sj+2}, {4*dtile}")
        I(f"s_lshl_b32 s13, s{sj+1}, 11")
        I("s_add_u32 s12, s12, s13")
        I("v_add_u32 v6, s12, v3")
        I("s_waitcnt lgkmcnt(0)")
        for t in range(8):
            I(f"v_lshl_or_b32 v{8+8*j+t}, v{41+2*t}, 16, v{40+2*t}")
        I(f"global_store_dwordx4 v6, v[{8+8*j}:{11+8*j}], s[14:15] sc1")
        I(f"global_store_dwordx4 v6, v[{12+8*j}:{15+8*j}], s[14:15] offset:1024 sc1")
    publish(83, 87, 91)


wt3(1)
wt3(2)

L("A_g1")
MARK(0)
I(f"s_setprio {os.environ.get('PRIO_G', '2')}")
I("v_and_b32 v1, 15, v0")
I("v_bfe_u32 v2, v0, 4, 2")
I("v_lshrrev_b32 v3, 6, v0")
I("s_and_b32 s10, s2, 7")
I("s_lshr_b32 s3, s2, 3")
I("s_mul_i32 s8, s3, 9363")
I("s_lshr_b32 s8, s8, 16")
I("s_mul_i32 s9, s8, 7")
I("s_sub_u32 s9, s3, s9")
I("s_and_b32 s11, s10, 1")
I("s_mul_i32 s11, s11, 7")
I("s_add_u32 s9, s9, s11")
I("s_lshr_b32 s10, s10, 1")
I("s_lshl_b32 s10, s10, 2")
I("s_add_u32 s8, s8, s10")
I("s_lshl_b32 s76, s8, 5")
I("s_lshl_b32 s77, s9, 6")
I(f"s_add_u32 s77, s77, {W1F}")
I("s_lshl_b32 s74, s8, 6")
I("s_lshl_b32 s10, s9, 2")
I("s_add_u32 s74, s74, s10")
I(f"s_add_u32 s74, s74, {HF}")
wait_flags([(77, 14)])
I(f"s_add_u32 s4, s64, {WS_W1T}")
I("s_addc_u32 s5, s65, 0")
I(f"s_add_u32 s6, s64, {WS_XN}")
I("s_addc_u32 s7, s65, 0")
I("s_lshl_b32 s9, s9, 7")
I("s_lshl_b32 s8, s8, 7")
I("v_and_b32 v4, 1, v3")
I("v_lshl_add_u32 v4, v4, 6, s9")
I("v_lshrrev_b32 v5, 1, v3")
I("v_lshl_add_u32 v5, v5, 6, s8")
I("v_and_b32 v7, 63, v0")
I("v_lshlrev_b32 v7, 4, v7")
I("s_mul_i32 s10, s9, 896")
I("s_mul_i32 s11, s8, 896")
I("v_mul_u32_u24 v6, 28672, v3")
I("v_add_u32 v6, v6, v7")
I("v_add_u32 v8, s10, v6")
I("v_add_u32 v9, 14336, v8")
I("v_add_u32 v10, s11, v6")
I("v_add_u32 v11, 14336, v10")
I("s_lshl_b32 s12, s69, 11")
I("v_and_b32 v12, 1, v3")
I("v_lshl_add_u32 v12, v12, 12, v7")
I("v_lshrrev_b32 v13, 1, v3")
I("v_lshl_add_u32 v13, v13, 12, v7")
I("v_add_u32 v13, 0x2000, v13")
G_ACC = 16
G_FR = 80
issued = []


def g1_dma(st, part):
    slot = (st % 4) * 16384
    for (nm, va, sb, off) in (("A", 8, 4, 0), ("A", 9, 4, 1024), ("B", 10, 6, 8192), ("B", 11, 6, 9216)):
        if nm not in part:
            continue
        if st and off in (0, 8192):
            I(f"s_add_u32 s{sb}, s{sb}, 1024")
            I(f"s_addc_u32 s{sb+1}, s{sb+1}, 0")
        I(f"s_add_u32 m0, s12, {slot + off}")
        I("s_nop 0")
        I(f"global_load_lds_dwordx4 v{va}, s[{sb}:{sb+1}] sc1")
        issued.append(st)


def g1_wait(st):
    last = max(i for i, x in enumerate(issued) if x == st)
    return len(issued) - 1 - last


def g1_reads(st):
    slot = (st % 4) * 16384
    fb = G_FR + 32 * (st & 1)
    for j in range(4):
        I(f"ds_read_b128 v[{fb+4*j}:{fb+4*j+3}], v12 offset:{slot + 1024*j}")
    for j in range(4):
        I(f"ds_read_b128 v[{fb+16+4*j}:{fb+16+4*j+3}], v13 offset:{slot + 1024*j}")


NS1 = 14
for st in range(4):
    g1_dma(st, "A")
wait_flags([(76, 8)])
MARK(1)
for st in range(4):
    g1_dma(st, "B")
I(f"s_waitcnt vmcnt({g1_wait(0)})")
I("s_barrier")
g1_reads(0)
for st in range(NS1):
    if st + 1 < NS1:
        I(f"s_waitcnt vmcnt({g1_wait(st + 1)}) lgkmcnt(0)")
        I("s_barrier")
        if st + 4 < NS1:
            g1_dma(st + 4, "AB")
        g1_reads(st + 1)
    else:
        I("s_waitcnt lgkmcnt(0)")
    fb = G_FR + 32 * (st & 1)
    for a_ in range(4):
        for b_ in range(4):
            c = G_ACC + 16 * a_ + 4 * b_
            src = "0" if st == 0 else f"v[{c}:{c+3}]"
            I(f"v_mfma_f32_16x16x32_bf16 v[{c}:{c+3}], v[{fb+4*a_}:{fb+4*a_+3}], v[{fb+16+4*b_}:{fb+16+4*b_+3}], {src}")
I(f"s_add_u32 s4, s64, {WS_H}")
I("s_addc_u32 s5, s65, 0")
I("v_mul_u32_u24 v6, 3584, v5")
I("v_lshl_add_u32 v6, v4, 5, v6")
I("v_lshrrev_b32 v7, 1, v2")
I("v_lshl_add_u32 v6, v7, 10, v6")
I("v_and_b32 v7, 1, v2")
I("v_lshl_add_u32 v6, v7, 9, v6")
I("v_lshl_add_u32 v6, v1, 4, v6")
I("s_nop 4")
for b in range(4):
    for a in range(4):
        c = G_ACC + 16 * a + 4 * b
        for r in range(4):
            I(f"v_max_f32 v{c+r}, 0, v{c+r}")
        I(f"v_cvt_pk_bf16_f32 v{80+8*b+2*a}, v{c}, v{c+1}")
        I(f"v_cvt_pk_bf16_f32 v{81+8*b+2*a}, v{c+2}, v{c+3}")
    if b > 0:
        I(f"v_add_u32 v6, {57344}, v6")
    I(f"global_store_dwordx4 v6, v[{80+8*b}:{83+8*b}], s[4:5] sc1")
    I(f"global_store_dwordx4 v6, v[{84+8*b}:{87+8*b}], s[4:5] offset:256 sc1")
publish(74)
MARK(2)

I(f"s_setprio {os.environ.get('PRIO_G2', '0')}")
I("s_load_dwordx2 s[16:17], s[0:1], 0")
I("s_load_dwordx2 s[18:19], s[0:1], 48")
I("s_load_dwordx2 s[20:21], s[0:1], 80")
I("s_mov_b32 s14, s64")
I("s_mov_b32 s15, s65")
I("v_and_b32 v4, 63, v0")
I("s_and_b32 s10, s2, 7")
I("s_lshr_b32 s3, s2, 3")
I("s_mul_i32 s8, s3, 9363")
I("s_lshr_b32 s8, s8, 16")
I("s_mul_i32 s9, s8, 7")
I("s_sub_u32 s9, s3, s9")
I("s_lshl_b32 s10, s10, 2")
I("s_add_u32 s8, s8, s10")
I("s_lshr_b32 s76, s8, 1")
I("s_lshl_b32 s76, s76, 6")
I(f"s_add_u32 s76, s76, {HF}")
I("s_lshl_b32 s77, s9, 7")
I(f"s_add_u32 s78, s77, {YF}")
I(f"s_add_u32 s77, s77, {W2F}")
I("s_lshl_b32 s9, s9, 6")
I("s_lshl_b32 s8, s8, 6")
wait_flags([(77, 28), (76, 14)])
MARK(3)
I("s_waitcnt lgkmcnt(0)")
I(f"s_add_u32 s4, s64, {WS_W2T}")
I("s_addc_u32 s5, s65, 0")
I(f"s_add_u32 s6, s64, {WS_H}")
I("s_addc_u32 s7, s65, 0")
I(f"s_add_u32 s10, s64, {WS_YT}")
I("s_addc_u32 s11, s65, 0")
EX, EXN, EY, EDK = 232, 240, 216, 208


def fin_late():
    I("v_lshrrev_b32 v249, 2, v4")
    I("v_lshl_add_u32 v249, v3, 4, v249")
    I("v_add_u32 v250, s8, v249")
    I("v_and_b32 v251, 3, v4")
    I("v_mul_u32_u24 v5, 896, v250")
    I("s_lshl_b32 s12, s9, 1")
    I("v_lshl_add_u32 v6, v251, 5, s12")
    I("v_add_u32 v5, v5, v6")
    I(f"global_load_dwordx4 v[{EX}:{EX+3}], v5, s[16:17]")
    I(f"global_load_dwordx4 v[{EX+4}:{EX+7}], v5, s[16:17] offset:16")
    I("v_lshrrev_b32 v248, 4, v250")
    I("v_mul_u32_u24 v248, 14336, v248")
    I("v_and_b32 v7, 15, v250")
    I("v_lshl_add_u32 v248, v7, 4, v248")
    I("v_lshrrev_b32 v7, 6, v6")
    I("v_lshl_add_u32 v248, v7, 10, v248")
    I("v_bfe_u32 v7, v6, 4, 2")
    I("v_lshl_add_u32 v248, v7, 8, v248")
    I(f"global_load_dwordx4 v[{EXN}:{EXN+3}], v248, s[14:15] sc1")
    I(f"global_load_dwordx4 v[{EXN+4}:{EXN+7}], v248, s[14:15] offset:256 sc1")
    I(f"global_load_dwordx4 v[{EDK}:{EDK+3}], v6, s[18:19]")
    I(f"global_load_dwordx4 v[{EDK+4}:{EDK+7}], v6, s[18:19] offset:16")
    I("v_lshlrev_b32 v7, 11, v6")
    I("v_lshl_add_u32 v252, v250, 1, v7")


def gemm_core(sa, sb, va, vb, acc0, buf0, ring, late, nlate):
    NS = 14
    PF = ring - 1

    def loads(s):
        bb = buf0 + 32 * (s % ring)
        off = (s & 3) * 1024
        if s and (s & 3) == 0:
            I(f"s_add_u32 s{sa}, s{sa}, 4096")
            I(f"s_addc_u32 s{sa+1}, s{sa+1}, 0")
            I(f"s_add_u32 s{sb}, s{sb}, 4096")
            I(f"s_addc_u32 s{sb+1}, s{sb+1}, 0")
        for j in range(4):
            I(f"global_load_dwordx4 v[{bb+4*j}:{bb+4*j+3}], v{va+j}, s[{sa}:{sa+1}] offset:{off} sc1")
        for j in range(4):
            I(f"global_load_dwordx4 v[{bb+16+4*j}:{bb+16+4*j+3}], v{vb+j}, s[{sb}:{sb+1}] offset:{off} sc1")

    for s in range(PF):
        loads(s)
    for s in range(NS):
        if s + PF < NS:
            loads(s + PF)
            if s + PF == NS - 1:
                late()
                I(f"s_waitcnt vmcnt({8*PF + nlate})")
            else:
                I(f"s_waitcnt vmcnt({8*PF})")
        else:
            I(f"s_waitcnt vmcnt({8*(NS-1-s) + nlate})")
        bb = buf0 + 32 * (s % ring)
        for a in range(4):
            for b in range(4):
                c = acc0 + 16 * a + 4 * b
                src = "0" if s == 0 else f"v[{c}:{c+3}]"
                I(f"v_mfma_f32_16x16x32_bf16 v[{c}:{c+3}], v[{bb+4*a}:{bb+4*a+3}], v[{bb+16+4*b}:{bb+16+4*b+3}], {src}")


I("v_mul_u32_u24 v7, 14336, v3")
I("v_lshl_add_u32 v7, v4, 4, v7")
I("s_mul_i32 s12, s9, 3584")
I("v_add_u32 v8, s12, v7")
for j in range(1, 4):
    I(f"v_add_u32 v{8+j}, {57344*j}, v8")
I("s_mul_i32 s12, s8, 3584")
I("v_add_u32 v12, s12, v7")
for j in range(1, 4):
    I(f"v_add_u32 v{12+j}, {57344*j}, v12")
F_ACC = 16
F_BUF = 80
gemm_core(4, 6, 8, 12, F_ACC, F_BUF, 4, fin_late, 6)
MARK(4)
I("v_lshl_add_u32 v6, v3, 6, v1")
I("v_mul_u32_u24 v6, 272, v6")
I("v_lshl_add_u32 v6, v2, 4, v6")
I("s_nop 4")
for a_ in range(4):
    for b_ in range(4):
        c = F_ACC + 16 * a_ + 4 * b_
        I(f"ds_write_b128 v6, v[{c}:{c+3}] offset:{16*b_*272 + 64*a_}")
I("s_waitcnt lgkmcnt(0)")
wait_flags([(78, 32)])
MARK(5)
for dd in range(16):
    if dd:
        I("v_add_u32 v252, 0x1000, v252")
    I(f"global_load_ushort v{EY+dd}, v252, s[10:11] sc1")
I("v_mul_u32_u24 v6, 272, v249")
I("v_lshl_add_u32 v6, v251, 6, v6")
for p in range(4):
    for j in range(4):
        I(f"ds_read_b128 v[{80+16*p+4*j}:{83+16*p+4*j}], v6 offset:{p*64*272 + 16*j}")
I("s_mov_b32 s22, 0xbfb8aa3b")
I("s_waitcnt vmcnt(16) lgkmcnt(0)")


def bfr(r):
    return [f"v_cvt_pk_bf16_f32 v{r}, v{r}, v{r}", f"v_lshlrev_b32 v{r}, 16, v{r}"]


def epi1(dd):
    o = 80 + dd
    t1, t2, t3 = 144 + dd, 160 + dd, 176 + dd
    h = dd & 1

    def unp(dst, reg):
        if h:
            return f"v_and_b32 v{dst}, 0xffff0000, v{reg + dd//2}"
        return f"v_lshlrev_b32 v{dst}, 16, v{reg + dd//2}"
    return [f"v_add_f32 v{o}, v{o}, v{o+16}",
            f"v_add_f32 v{o+32}, v{o+32}, v{o+48}",
            unp(t2, EXN), unp(t3, EDK),
            f"v_add_f32 v{o}, v{o}, v{o+32}",
            f"v_mul_f32 v{t2}, v{t2}, v{t3}"] + bfr(o) + bfr(t2) + [
            f"v_mul_f32 v{t1}, s22, v{o}",
            unp(t3, EX),
            f"v_exp_f32 v{t1}, v{t1}",
            "s_nop 0",
            f"v_add_f32 v{t1}, 1.0, v{t1}",
            f"v_rcp_f32 v{t1}, v{t1}",
            "s_nop 0",
            f"v_mul_f32 v{o}, v{o}, v{t1}"] + bfr(o)


def epi2(dd):
    o = 80 + dd
    t1, t2, t3 = 144 + dd, 160 + dd, 176 + dd
    return [f"v_lshlrev_b32 v{t1}, 16, v{EY+dd}",
            f"v_add_f32 v{t2}, v{t2}, v{t1}"] + bfr(t2) + [
            f"v_mul_f32 v{o}, v{o}, v{t2}"] + bfr(o) + [
            f"v_add_f32 v{o}, v{o}, v{t3}"]


for g in range(0, 16, 4):
    interleave([epi1(dd) for dd in range(g, g + 4)])
I("s_waitcnt vmcnt(0)")
for g in range(0, 16, 4):
    interleave([epi2(dd) for dd in range(g, g + 4)])
for j in range(8):
    I(f"v_cvt_pk_bf16_f32 v{16+j}, v{80+2*j}, v{81+2*j}")
I("global_store_dwordx4 v5, v[16:19], s[20:21]")
I("global_store_dwordx4 v5, v[20:23], s[20:21] offset:16")
I("s_endpgm")

L("B_start")
I(f"s_setprio {os.environ.get('PRIO_B', '1')}")
I(f"s_sub_u32 s2, s2, {NA}")
KSTG = 35072
UB = 2 * KR_STRIDE
I("s_load_dwordx4 s[4:7], s[0:1], 8")
I("s_load_dwordx4 s[8:11], s[0:1], 24")
I("s_load_dwordx2 s[12:13], s[0:1], 40")
I("s_lshl_b32 s3, s2, 10")
I("v_lshl_add_u32 v1, v0, 1, s3")
I("s_lshl_b32 s16, s2, 2")
I("v_mov_b32 v7, s16")
I("s_mov_b32 s20, 0x3fb8aa3b")
I("s_mov_b32 s21, 0x32a57060")
I("s_mov_b32 s22, 0x3f317218")
I("s_mov_b32 s23, 0x3e22f983")
I("s_mov_b32 s24, 0x31dc9c88")
I("s_waitcnt lgkmcnt(0)")
for ch in range(2):
    rb = 140 + 5 * ch
    I(f"global_load_ushort v{rb}, v1, s[4:5] offset:{512*ch}")
    I(f"global_load_ushort v{rb+1}, v1, s[6:7] offset:{512*ch}")
    I(f"global_load_ushort v{rb+2}, v1, s[8:9] offset:{512*ch}")
    I(f"global_load_ushort v{rb+3}, v1, s[10:11] offset:{512*ch}")
    I(f"global_load_ushort v{rb+4}, v7, s[12:13] offset:{2*ch}")
I("s_mov_b32 s74, 0")
I("v_mov_b32 v60, 0x80")
for g in range(2):
    es = [4 * g + k for k in range(4)]
    A_, B_, C_, D_, F_ = 10, 14, 48, 52, 56

    def col(fmt):
        for k, e in enumerate(es):
            I(fmt.format(a=A_ + k, b=B_ + k, c=C_ + k, d=D_ + k, f=F_ + k, e=e, o=160 + e))
    col("v_lshl_add_u32 v{a}, v0, 3, {e}")
    col("v_cvt_f32_u32 v{a}, v{a}")
    col("v_cvt_pk_bf16_f32 v{a}, v{a}, v{a}")
    col("v_bfe_u32 v{b}, v{a}, 7, 8")
    col("v_lshlrev_b32 v{a}, 16, v{a}")
    col("v_subrev_u32 v{b}, 134, v{b}")
    col("v_cvt_u32_f32 v{a}, v{a}")
    col("v_med3_i32 v{b}, v{b}, 0, 3")
    col("v_lshlrev_b32 v{c}, v{b}, v60")
    col("v_sub_u32 v{f}, 3, v{b}")
    col("v_and_b32 v{c}, 0xffffff00, v{c}")
    col("v_sub_u32 v{a}, v{a}, v{c}")
    col("v_and_b32 v{c}, 7, v{a}")
    col("v_lshrrev_b32 v{d}, 7, v{a}")
    col("v_lshrrev_b32 v{c}, v{b}, v{c}")
    col("v_lshlrev_b32 v{d}, v{f}, v{d}")
    col("v_bfe_u32 v{a}, v{a}, 3, 4")
    col("v_add_u32 v{c}, v{c}, v{d}")
    col("v_min_u32 v{d}, 1, v{b}")
    col("v_lshl_add_u32 v{c}, v{c}, 4, v{a}")
    col("v_add_u32 v{d}, v{d}, v{b}")
    col("v_lshl_add_u32 v{c}, v{d}, 7, v{c}")
    col("v_lshlrev_b32 v{o}, 2, v{c}")
I("s_waitcnt vmcnt(0)")
L("B_kloop")
KMARK(0)
for k, r in enumerate((2, 3, 4, 5, 6)):
    I(f"v_lshlrev_b32 v{r}, 16, v{140+k}")


def exp_acc(dst, x, t0, t1):
    I(f"v_mul_f32 v{t0}, s20, v{x}")
    I(f"v_fma_f32 v{t1}, v{x}, s20, -v{t0}")
    I(f"v_fma_f32 v{t1}, v{x}, s21, v{t1}")
    I(f"v_exp_f32 v{dst}, v{t0}")
    I(f"v_mul_f32 v{t1}, s22, v{t1}")
    I(f"v_fma_f32 v{dst}, v{dst}, v{t1}, v{dst}")


exp_acc(8, 6, 10, 11)
bf16r(8, 8)
exp_acc(9, 2, 10, 11)
bf16r(9, 9)
I("v_mul_f32 v9, v9, v8")
I("v_mul_f32 v12, s20, v9")
I("v_sub_f32 v12, 0, v12")
I("v_mul_f32 v3, v3, v8")
I("v_mul_f32 v13, s23, v3")
I("v_fma_f32 v14, v3, s23, -v13")
I("v_fma_f32 v14, v3, s24, v14")
I("v_rndne_f32 v10, v13")
I("v_sub_f32 v10, v13, v10")
I("v_and_b32 v13, 0xffffff00, v10")
I("v_sub_f32 v10, v10, v13")
I("v_add_f32 v14, v10, v14")
I("v_mul_f32 v15, v4, v8")
I("v_add_f32 v15, v15, v15")
I("v_mul_f32 v16, v5, v8")
I("v_add_f32 v16, v16, v16")
WREG = 8704
LOO = 4352
I("v_and_b32 v2, 15, v0")
I("v_bfe_u32 v3, v0, 4, 2")
I("v_lshrrev_b32 v6, 6, v0")
I(f"v_mul_u32_u24 v6, {WREG}, v6")
I(f"v_add_u32 v6, {KSTG}, v6")
I("v_and_b32 v4, 63, v0")
I("v_lshl_add_u32 v4, v4, 2, v6")
I("v_mul_u32_u24 v5, 272, v2")
I("v_lshl_add_u32 v5, v3, 4, v5")
I("v_add_u32 v5, v5, v6")


def cexp_ops(p, d, t):
    return [f"v_mul_f32 v{t}, {p}, v12",
            f"v_mul_f32 v{t+1}, {p}, v13",
            f"v_exp_f32 v{t}, v{t}",
            f"v_fract_f32 v{t+1}, v{t+1}",
            f"v_mov_b32 v{d}, {p}",
            f"v_fma_f32 v{t+1}, v{d}, v14, v{t+1}",
            f"v_cos_f32 v{d}, v{t+1}",
            f"v_sin_f32 v{d+1}, v{t+1}",
            "s_nop 0",
            f"v_mul_f32 v{d}, v{d}, v{t}",
            f"v_mul_f32 v{d+1}, v{d+1}, v{t}"]


def cmul_ops(d, a, b):
    return [f"v_mul_f32 v{d}, v{a}, v{b}",
            f"v_mul_f32 v{d+1}, v{a}, v{b+1}",
            f"v_fma_f32 v{d}, -v{a+1}, v{b+1}, v{d}",
            f"v_fma_f32 v{d+1}, v{a+1}, v{b}, v{d+1}"]


def split_ops(v, row, t, neg=False):
    n = "-" if neg else ""
    return [f"v_cvt_pk_bf16_f32 v{t}, v{v}, {n}v{v+1}",
            f"v_lshlrev_b32 v{t+1}, 16, v{t}",
            f"v_and_b32 v{t+2}, 0xffff0000, v{t}",
            f"v_sub_f32 v{t+1}, v{v}, v{t+1}",
            f"v_sub_f32 v{t+2}, {n}v{v+1}, v{t+2}",
            f"ds_write_b32 v4, v{t} offset:{row*272}",
            f"v_cvt_pk_bf16_f32 v{t+1}, v{t+1}, v{t+2}",
            f"ds_write_b32 v4, v{t+1} offset:{LOO + row*272}"]


ZQ = lambda q: 20 + 2 * q
EJ = lambda j: 40 + 2 * j
Z128 = 18
BH, BL = 72, 88
AF = 40
ACC = 124
GT = [104, 106, 108, 110]
ST = [112, 115, 118, 121]
KMARK(1)
interleave([cexp_ops("1.0", ZQ(1), 104), cexp_ops("0x41000000", EJ(1), 106), cexp_ops("0x43000000", Z128, 108)])
I("v_mov_b32 v40, 1.0")
I("v_mov_b32 v41, 0")
interleave([cmul_ops(EJ(2), EJ(1), EJ(1)), cmul_ops(ZQ(2), ZQ(1), ZQ(1)), split_ops(40, 0, ST[0], True), split_ops(EJ(1), 1, ST[1], True)])
interleave([cmul_ops(EJ(3), EJ(2), EJ(1)), cmul_ops(EJ(4), EJ(2), EJ(2)), cmul_ops(ZQ(3), ZQ(2), ZQ(1)), cmul_ops(ZQ(4), ZQ(2), ZQ(2)), split_ops(EJ(2), 2, ST[0], True)])
interleave([cmul_ops(EJ(5), EJ(4), EJ(1)), cmul_ops(EJ(6), EJ(3), EJ(3)), cmul_ops(EJ(7), EJ(4), EJ(3)), cmul_ops(EJ(8), EJ(4), EJ(4)),
            split_ops(EJ(3), 3, ST[0], True), split_ops(EJ(4), 4, ST[1], True)])
interleave([cmul_ops(ZQ(5), ZQ(4), ZQ(1)), cmul_ops(ZQ(6), ZQ(3), ZQ(3)), cmul_ops(ZQ(7), ZQ(4), ZQ(3)),
            cmul_ops(EJ(9), EJ(8), EJ(1)), cmul_ops(EJ(10), EJ(8), EJ(2)), cmul_ops(EJ(11), EJ(8), EJ(3)),
            split_ops(EJ(5), 5, ST[0], True), split_ops(EJ(6), 6, ST[1], True)])
interleave([cmul_ops(EJ(12), EJ(8), EJ(4)), cmul_ops(EJ(13), EJ(8), EJ(5)), cmul_ops(EJ(14), EJ(8), EJ(6)), cmul_ops(EJ(15), EJ(8), EJ(7)),
            split_ops(EJ(7), 7, ST[0], True), split_ops(EJ(8), 8, ST[1], True), split_ops(EJ(9), 9, ST[2], True), split_ops(EJ(10), 10, ST[3], True)])
interleave([split_ops(EJ(11 + k), 11 + k, ST[k], True) for k in range(4)])
interleave([split_ops(EJ(15), 15, ST[0], True), cmul_ops(38, 15, Z128)])
I("v_mov_b32 v36, v15")
I("v_mov_b32 v37, v16")
I("s_waitcnt lgkmcnt(0)")
for sidx in range(4):
    I(f"ds_read_b128 v[{BH+4*sidx}:{BH+4*sidx+3}], v5 offset:{64*sidx}")
    I(f"ds_read_b128 v[{BL+4*sidx}:{BL+4*sidx+3}], v5 offset:{LOO+64*sidx}")
KMARK(2)
CR_ = [36, 38, 6, 8, 10]
CK = lambda k: CR_[k % 5] if k < 8 else 170 + 2 * (k - 8)


def rowval(k, q, row, gi):
    if q == 0:
        return split_ops(CK(k), row, ST[gi])
    return cmul_ops(GT[gi], CK(k), ZQ(q)) + split_ops(GT[gi], row, ST[gi])


def tile_mfma(t):
    I("s_waitcnt lgkmcnt(0)")
    for sidx in range(4):
        I(f"ds_read_b128 v[{AF+4*sidx}:{AF+4*sidx+3}], v5 offset:{64*sidx}")
        I(f"ds_read_b128 v[{AF+16+4*sidx}:{AF+16+4*sidx+3}], v5 offset:{LOO+64*sidx}")
    acc = ACC + 4 * t
    out = []
    for sidx in range(4):
        ah, al = AF + 4 * sidx, AF + 16 + 4 * sidx
        bh, bl = BH + 4 * sidx, BL + 4 * sidx
        for (x, y) in ((ah, bh), (al, bh), (ah, bl)):
            src = "0" if (sidx == 0 and (x, y) == (ah, bh)) else f"v[{acc}:{acc+3}]"
            out.append(f"v_mfma_f32_16x16x32_bf16 v[{acc}:{acc+3}], v[{x}:{x+3}], v[{y}:{y+3}], {src}")
    return out


def run_rows(rows_, extra):
    for g in range(0, len(rows_), 4):
        ch = [rowval(k, q, row, gi) for gi, (k, q, row) in enumerate(rows_[g:g + 4])]
        if extra:
            ch.append(extra.pop(0))
        interleave(ch)
    for e in extra:
        interleave([e])


run_rows([(kap, q, q + 8 * kap) for kap in (0, 1) for q in range(8)],
         [cmul_ops(CK(k), CK(k - 1), Z128) for k in (2, 3, 4)])
mf = tile_mfma(0)
I("s_waitcnt lgkmcnt(0)")
KMARK(3)
r1 = [(2 + kp, q, q // 2 + 4 * kp) for kp in (0, 1) for q in (0, 2, 4, 6)]
r1b = [(4 + kp, q, 8 + q // 4 + 2 * kp) for kp in range(4) for q in (0, 4)]
interleave([mf[:6]] + [rowval(k, q, row, gi) for gi, (k, q, row) in enumerate(r1[:4])])
interleave([mf[6:]] + [rowval(k, q, row, gi) for gi, (k, q, row) in enumerate(r1[4:])] + [cmul_ops(CK(5), CK(4), Z128)])
interleave([rowval(k, q, row, gi) for gi, (k, q, row) in enumerate(r1b[:4])] + [cmul_ops(CK(6), CK(5), Z128) + cmul_ops(CK(7), CK(6), Z128)])
interleave([rowval(k, q, row, gi) for gi, (k, q, row) in enumerate(r1b[4:])] + [sum([cmul_ops(CK(k), CK(k - 1), Z128) for k in (8, 9, 10)], [])])
mf = tile_mfma(1)
I("s_waitcnt lgkmcnt(0)")
KMARK(4)
interleave([split_ops(CK(8 + r), r, ST[r]) for r in range(3)] + [sum([cmul_ops(CK(k), CK(k - 1), Z128) for k in (11, 12, 13)], []), mf[:6]])
interleave([split_ops(CK(11 + r), 3 + r, ST[r]) for r in range(3)] + [sum([cmul_ops(CK(k), CK(k - 1), Z128) for k in (14, 15, 16)], []), mf[6:]])
interleave([split_ops(CK(14 + r), 6 + r, ST[r]) for r in range(3)])
mf = tile_mfma(2)
I("s_waitcnt lgkmcnt(0)")
for m in mf:
    I(m)
I("s_nop 7")
I("s_nop 1")
I("v_lshrrev_b32 v19, 6, v0")
I(f"v_mul_u32_u24 v19, {WREG}, v19")
I("v_lshl_add_u32 v19, v3, 8, v19")
I("v_lshl_add_u32 v19, v2, 2, v19")
for t in range(3):
    for r in range(4):
        I(f"ds_write_b32 v19, v{ACC+4*t+r} offset:{KSTG + t*1024 + r*64}")
I("s_waitcnt lgkmcnt(0)")
I("s_barrier")
KMARK(5)
for e in range(8):
    for w in range(4):
        I(f"ds_read_b32 v{16 + 4*e + w}, v{160+e} offset:{KSTG + w*8704}")
    if e == 3:
        I("s_waitcnt lgkmcnt(0)")
I("s_waitcnt lgkmcnt(0)")
for e in range(8):
    b = 16 + 4 * e
    I(f"v_add_f32 v{b}, v{b}, v{b+1}")
    I(f"v_add_f32 v{b+2}, v{b+2}, v{b+3}")
    I(f"v_add_f32 v{b}, v{b}, v{b+2}")
for j in range(4):
    ka, kb = 16 + 4 * (7 - 2 * j), 16 + 4 * (6 - 2 * j)
    I(f"v_cvt_pk_bf16_f32 v{48+j}, v{ka}, v{kb}")
    I(f"v_lshlrev_b32 v10, 16, v{48+j}")
    I(f"v_and_b32 v11, 0xffff0000, v{48+j}")
    I(f"v_sub_f32 v10, v{ka}, v10")
    I(f"v_sub_f32 v11, v{kb}, v11")
    I(f"v_cvt_pk_bf16_f32 v{52+j}, v10, v11")
I("v_lshlrev_b32 v10, 4, v0")
I("v_sub_u32 v10, 4080, v10")
I("v_add_u32 v10, s74, v10")
I("ds_write_b128 v10, v[48:51]")
I("ds_write_b128 v10, v[52:55] offset:4608")
I("v_cmp_gt_u32 vcc, 64, v0")
I("s_and_saveexec_b64 s[18:19], vcc")
I("v_and_b32 v10, 31, v0")
I("v_lshlrev_b32 v10, 4, v10")
I("v_lshrrev_b32 v11, 5, v0")
I("v_mul_u32_u24 v11, 4608, v11")
I("v_add3_u32 v10, v10, v11, s74")
for r in range(12, 16):
    I(f"v_mov_b32 v{r}, 0")
I("ds_write_b128 v10, v[12:15] offset:4096")
I("s_mov_b64 exec, s[18:19]")
I("s_waitcnt lgkmcnt(0)")
I("s_barrier")
KMARK(6)
for k in range(5):
    I(f"v_mov_b32 v{140+k}, v{145+k}")
I(f"s_add_u32 s74, s74, {KR_STRIDE}")
I(f"s_cmp_eq_u32 s74, {2*KR_STRIDE}")
I("s_cbranch_scc1 B_kdone")
MARK(0)
I(f"s_mov_b32 s76, {LNF}")
I(f"s_mov_b32 s77, {LNF + 256}")
wait_flags([(76, 64), (77, 64)])
I("v_and_b32 v1, 15, v0")
I("v_bfe_u32 v2, v0, 4, 2")
I("v_lshrrev_b32 v3, 6, v0")
I("s_lshr_b32 s6, s2, 4")
I("s_lshl_b32 s6, s6, 10")
I("s_lshr_b32 s7, s2, 2")
I("s_and_b32 s7, s7, 3")
I("s_lshl_b32 s7, s7, 8")
I("s_add_u32 s6, s6, s7")
I("s_and_b32 s7, s2, 3")
I("s_lshl_b32 s7, s7, 2")
I("s_add_u32 s6, s6, s7")
I("s_add_u32 s6, s64, s6")
I("s_addc_u32 s7, s65, 0")
I("v_lshrrev_b32 v4, 4, v0")
I("v_mul_u32_u24 v4, 14336, v4")
I("v_lshl_add_u32 v4, v1, 4, v4")
for j in range(8):
    if j:
        I(f"v_add_u32 v4, {16*14336}, v4")
    I(f"global_load_dword v{190+j}, v4, s[6:7] sc1")
I("s_branch B_kloop")
L("B_kdone")
I(f"s_setprio {os.environ.get('PRIO_C', '3')}")
MARK(1)
I("v_and_b32 v1, 15, v0")
I("v_bfe_u32 v2, v0, 4, 2")
I("v_lshrrev_b32 v3, 6, v0")
I("v_lshlrev_b32 v5, 1, v0")
I("v_cmp_gt_u32 vcc, 16, v0")
I("s_and_saveexec_b64 s[18:19], vcc")
I("v_mov_b32 v8, 0")
for q in range(4):
    I(f"ds_write_b16 v5, v8 offset:{UB + q*XNT_STRIDE}")
I("s_mov_b64 exec, s[18:19]")
I("s_waitcnt lgkmcnt(0)")
I("s_barrier")
for j in range(8):
    I(f"s_waitcnt vmcnt({7-j})")
    o = UB + 512 * j
    I(f"ds_write_b16 v5, v{190+j} offset:{o + 32}")
    I(f"ds_write_b16 v5, v{190+j} offset:{o + XNT_STRIDE + 30}")
    I(f"ds_write_b16_d16_hi v5, v{190+j} offset:{o + 2*XNT_STRIDE + 32}")
    I(f"ds_write_b16_d16_hi v5, v{190+j} offset:{o + 3*XNT_STRIDE + 30}")
I("s_waitcnt lgkmcnt(0)")
I("s_barrier")
MARK(2)
I("v_lshrrev_b32 v4, 1, v3")
I("v_lshl_add_u32 v5, v2, 3, v1")
I("v_add_u32 v5, 1, v5")
I("v_and_b32 v7, 1, v5")
I("v_sub_u32 v5, v5, v7")
I("v_lshlrev_b32 v5, 1, v5")
I(f"v_mul_u32_u24 v7, {XNT_STRIDE}, v7")
I("v_add_u32 v5, v5, v7")
I(f"v_mul_u32_u24 v7, {2*XNT_STRIDE}, v4")
I("v_add_u32 v5, v5, v7")
I("v_and_b32 v7, 1, v3")
I("v_lshl_add_u32 v5, v7, 8, v5")
I(f"v_add_u32 v232, {UB}, v5")
for c in range(1, 8):
    I(f"v_add_u32 v{232+c}, {512*c}, v232")
I(f"v_mul_u32_u24 v6, {KR_STRIDE}, v4")
I("v_lshl_add_u32 v6, v2, 4, v6")
I("v_lshl_add_u32 v6, v7, 8, v6")
I("v_lshlrev_b32 v7, 5, v1")
I("v_sub_u32 v6, v6, v7")
I("v_add_u32 v6, 480, v6")
CA0 = 8
CBUF = 40


def creads(r):
    bb = CBUF + 96 * (r & 1)
    out = []
    for c in range(8):
        out.append(f"ds_read2_b32 v[{bb+4*c}:{bb+4*c+1}], v{232+c} offset0:{16*r} offset1:{16*r+1}")
        out.append(f"ds_read2_b32 v[{bb+4*c+2}:{bb+4*c+3}], v{232+c} offset0:{16*r+2} offset1:{16*r+3}")
    for n in range(8):
        o = 3584 - 512 * n + 64 * r
        out.append(f"ds_read_b128 v[{bb+32+8*n}:{bb+32+8*n+3}], v6 offset:{o}")
        out.append(f"ds_read_b128 v[{bb+36+8*n}:{bb+36+8*n+3}], v6 offset:{o+4608}")
    return out


for x in creads(0):
    I(x)
for r in range(4):
    I("s_waitcnt lgkmcnt(0)")
    nxt = creads(r + 1) if r < 3 else []
    bb = CBUF + 96 * (r & 1)
    mf = []
    for T in range(8):
        acc = CA0 + 4 * T
        for c in range(T + 1):
            n = T - c
            first = (r == 0 and c == 0)
            src = "0" if first else f"v[{acc}:{acc+3}]"
            mf.append(f"v_mfma_f32_16x16x32_bf16 v[{acc}:{acc+3}], v[{bb+4*c}:{bb+4*c+3}], v[{bb+32+8*n}:{bb+32+8*n+3}], {src}")
            mf.append(f"v_mfma_f32_16x16x32_bf16 v[{acc}:{acc+3}], v[{bb+4*c}:{bb+4*c+3}], v[{bb+36+8*n}:{bb+36+8*n+3}], v[{acc}:{acc+3}]")
    k = 0
    for idx, m in enumerate(mf):
        I(m)
        if k < len(nxt) and idx % 2 == 1:
            I(nxt[k]); k += 1
    while k < len(nxt):
        I(nxt[k]); k += 1
I("s_barrier")
I("v_and_b32 v5, 63, v0")
I("v_lshlrev_b32 v5, 4, v5")
I("v_lshl_add_u32 v6, v3, 12, v5")
I("v_xor_b32 v7, 1, v3")
I("v_lshl_add_u32 v5, v7, 12, v5")
I("s_lshl_b32 s10, s2, 13")
I(f"s_add_u32 s10, s10, {WS_YT}")
I("s_add_u32 s10, s64, s10")
I("s_addc_u32 s11, s65, 0")
I("v_lshlrev_b32 v7, 12, v4")
I("v_lshl_add_u32 v7, v1, 5, v7")
I("v_lshl_add_u32 v7, v2, 3, v7")
I("s_lshl_b32 s74, s2, 2")
I(f"s_add_u32 s74, s74, {YF}")
I("s_and_b32 s9, s69, 1")
I("s_cmp_eq_u32 s9, 1")
I("s_cbranch_scc1 B_cv1")
for h in range(2):
    if h:
        L("B_cv1")
    keep = [4 * h + j for j in range(4)]
    give = [4 * (1 - h) + j for j in range(4)]
    for j, T in enumerate(give):
        I(f"ds_write_b128 v6, v[{CA0+4*T}:{CA0+4*T+3}] offset:{1024*j}")
    I("s_waitcnt lgkmcnt(0)")
    I("s_barrier")
    for j in range(4):
        I(f"ds_read_b128 v[{40+4*j}:{43+4*j}], v5 offset:{1024*j}")
    I("s_waitcnt lgkmcnt(0)")
    for j, T in enumerate(keep):
        acc = CA0 + 4 * T
        for r_ in range(4):
            I(f"v_add_f32 v{acc+r_}, v{acc+r_}, v{40+4*j+r_}")
        I(f"v_cvt_pk_bf16_f32 v{56+2*j}, v{acc}, v{acc+1}")
        I(f"v_cvt_pk_bf16_f32 v{57+2*j}, v{acc+2}, v{acc+3}")
        I(f"global_store_dwordx2 v7, v[{56+2*j}:{57+2*j}], s[10:11] offset:{512*T} sc1")
    if h == 0:
        I("s_branch B_pub")
L("B_pub")
MARK(3)
publish(74)
I("s_endpgm")
L("X_exit")
lines.append("    s_endpgm")

E('.section .rodata,"a"')
E(".p2align 6")
E(f".amdhsa_kernel {NAME}_kernel")
E("  .amdhsa_next_free_vgpr 256")
E("  .amdhsa_next_free_sgpr 96")
E("  .amdhsa_accum_offset 256")
E("  .amdhsa_group_segment_fixed_size 0")
E("  .amdhsa_kernarg_size 104")
E("  .amdhsa_user_sgpr_count 2")
E("  .amdhsa_user_sgpr_kernarg_segment_ptr 1")
E("  .amdhsa_system_sgpr_workgroup_id_x 1")
E("  .amdhsa_float_denorm_mode_32 3")
E(".end_amdhsa_kernel")
open(OUT, "w").write("\n".join(lines) + "\n")
print("wrote", OUT, len(lines), "lines")
```

```python
import sys, os

NAME = "recurrent_scan__ssm_conv_s4d__dense_activation_relu__prompt"
OUT = sys.argv[1] if len(sys.argv) > 1 else f"cdna_kernels/{NAME}.s"
STAMP = int(os.environ.get("STAMP", "0"))

WS_XN = 0x0000000
WS_XNT = 0x0200000
XNT_STRIDE = 4160
KR_STRIDE = 9216
if os.environ.get("COMPACT"):
    WS_FLG = 0x01C0000
    WS_W1T = 0x01C4000
    WS_W2T = WS_W1T + 0x188000
    WS_YT = WS_W2T + 0x188000
    WS_H = WS_YT + 0x1C0000
else:
    WS_W1T = 0x0400000
    WS_W2T = 0x0600000
    WS_H = 0x1000000
    WS_YT = 0x1800000
    WS_FLG = 0x1C00000
LNF, W1F, W2F, HF, YF, LNF2, DUMMYF = 0, 1024, 2048, 3072, 4096, 5120, 6144

NA, NB = 224, 224
GRID = NA + NB
LDS = 70144

lines = []


def E(s=""):
    lines.append(s)


DSTAMP = int(os.environ.get("DSTAMP", "0"))


def I(s):
    if DSTAMP and s == "s_endpgm":
        for x in ("s_mov_b64 exec, 1", "s_memrealtime s[34:35]", "s_waitcnt vmcnt(0) lgkmcnt(0)",
                  "v_mov_b32 v1, 8", "v_mov_b32 v2, s34", "global_atomic_umax v1, v2, s[66:67]",
                  "v_mov_b32 v1, 12", "v_mov_b32 v2, s30", "global_atomic_umax v1, v2, s[66:67]",
                  "v_mov_b32 v1, 16", "v_not_b32 v2, v2", "global_atomic_umax v1, v2, s[66:67]"):
            lines.append("    " + x)
    if STAMP and s == "s_endpgm":
        for x in ("s_mov_b64 exec, -1",
                  "s_memrealtime s[34:35]", "s_memtime s[36:37]",
                  "s_waitcnt vmcnt(0) lgkmcnt(0)",
                  f"s_add_u32 s38, s64, {0x2000000}", "s_addc_u32 s39, s65, 0",
                  "s_lshl_b32 s2, s28, 2", "s_add_u32 s2, s2, s69", "s_lshl_b32 s2, s2, 5", "v_mov_b32 v1, s2",
                  "v_mov_b32 v4, s30", "v_mov_b32 v5, s31", "v_mov_b32 v6, s34", "v_mov_b32 v7, s35",
                  "v_mov_b32 v8, s32", "v_mov_b32 v9, s33", "v_mov_b32 v10, s36", "v_mov_b32 v11, s37",
                  "global_store_dwordx4 v1, v[4:7], s[38:39]", "global_store_dwordx4 v1, v[8:11], s[38:39] offset:16",
                  "v_mov_b32 v4, s40", "v_mov_b32 v5, s42", "v_mov_b32 v6, s44", "v_mov_b32 v7, s46",
                  "v_mov_b32 v8, s48", "v_mov_b32 v9, s50", "v_mov_b32 v10, s52", "v_mov_b32 v11, s54",
                  "v_add_u32 v1, 0x100000, v1",
                  "global_store_dwordx4 v1, v[4:7], s[38:39]", "global_store_dwordx4 v1, v[8:11], s[38:39] offset:16"):
            lines.append("    " + x)
    lines.append("    " + s)


def KMARK(n):
    if STAMP and os.environ.get("KM"):
        lines.append(f"    s_memtime s[{40+2*n}:{41+2*n}]")


def MARK(n):
    if STAMP and not os.environ.get("KM"):
        lines.append(f"    s_memtime s[{40+2*n}:{41+2*n}]")


def L(lbl):
    lines.append(lbl + ":")


_uid = [0]


def uid(p):
    _uid[0] += 1
    return f"{p}_{_uid[0]}"


def interleave(chains):
    chains = [list(c) for c in chains]
    while any(chains):
        for c in chains:
            if c:
                I(c.pop(0))


def bf16r(dst, src):
    I(f"v_cvt_pk_bf16_f32 v{dst}, v{src}, v{src}")
    I(f"v_lshlrev_b32 v{dst}, 16, v{dst}")


def get_nonce():
    a, b = uid("N_poll"), uid("N_ok")
    I("s_cmp_lg_u32 s68, 0")
    I(f"s_cbranch_scc1 {b}")
    I("s_waitcnt vmcnt(0)")
    I("v_readfirstlane_b32 s68, v255")
    I("s_cmp_lg_u32 s68, 0")
    I(f"s_cbranch_scc1 {b}")
    I("v_mov_b32 v253, 0")
    L(a)
    I("global_load_dword v254, v253, s[66:67] sc1")
    I("s_waitcnt vmcnt(0)")
    I("v_readfirstlane_b32 s68, v254")
    I("s_cmp_lg_u32 s68, 0")
    I(f"s_cbranch_scc1 {b}")
    I("s_sleep 4")
    I(f"s_branch {a}")
    L(b)


def publish(*soffs):
    e = uid("PB_end")
    I("s_waitcnt vmcnt(0) lgkmcnt(0)")
    I("s_barrier")
    I("s_cmp_lg_u32 s69, 0")
    I(f"s_cbranch_scc1 {e}")
    get_nonce()
    I("v_mov_b32 v254, s68")
    I("s_mov_b64 s[72:73], exec")
    I("s_mov_b64 exec, 1")
    for soff in soffs:
        I(f"v_mov_b32 v253, s{soff}")
        I("global_store_dword v253, v254, s[70:71] sc1")
    I("s_mov_b64 exec, s[72:73]")
    L(e)


def wait_flags(specs, first_sleep=0):
    e = uid("W_end")
    I("s_cmp_lg_u32 s69, 0")
    I(f"s_cbranch_scc1 {e}")
    get_nonce()
    if first_sleep:
        I(f"s_sleep {first_sleep}")
    for (soff, n) in specs:
        a, b = uid("W_poll"), uid("W_ok")
        I("v_and_b32 v253, 63, v0")
        I(f"v_min_u32 v253, {n-1}, v253")
        I(f"v_lshl_add_u32 v253, v253, 2, s{soff}")
        L(a)
        I("global_load_dword v254, v253, s[70:71] sc1")
        I("s_waitcnt vmcnt(0)")
        I("v_cmp_ne_u32 vcc, s68, v254")
        I("s_cmp_eq_u64 vcc, 0")
        I(f"s_cbranch_scc1 {b}")
        I("s_sleep 3")
        I(f"s_branch {a}")
        L(b)
    L(e)
    I("s_barrier")


HEADER = open(f"cdna_kernels/{NAME}.s.ref").read().split("; Override launch")[0]
E(HEADER.rstrip("\n"))
E(f"; @launch grid=({GRID},1,1) block=(256,1,1) lds={LDS}")
E('.amdgcn_target "amdgcn-amd-amdhsa--gfx950"')
E(".text")
E(f".globl {NAME}_kernel")
E(".p2align 8")
E(f".type {NAME}_kernel,@function")
L(f"{NAME}_kernel")
I(f"s_cmp_ge_u32 s2, {GRID}")
I("s_cbranch_scc1 X_exit")
I("s_mov_b32 s28, s2")
if DSTAMP:
    I("s_memrealtime s[30:31]")
if STAMP:
    I("s_memrealtime s[30:31]")
    I("s_memtime s[32:33]")
I("s_load_dwordx4 s[64:67], s[0:1], 88")
I("v_readfirstlane_b32 s69, v0")
I("s_lshr_b32 s69, s69, 6")
I("s_mov_b32 s68, 0")
I("s_waitcnt lgkmcnt(0)")
I("s_mov_b32 s72, s64")
I("s_mov_b32 s73, s65")
I("s_mov_b32 s64, s66")
I("s_mov_b32 s65, s67")
I("s_mov_b32 s66, s72")
I("s_mov_b32 s67, s73")
I(f"s_add_u32 s70, s64, {WS_FLG}")
I("s_addc_u32 s71, s65, 0")
I("s_or_b32 s72, s2, s69")
I("s_cmp_lg_u32 s72, 0")
I("s_cbranch_scc1 X_nononce")
I("s_memrealtime s[72:73]")
I("s_waitcnt lgkmcnt(0)")
I("s_or_b32 s68, s72, 1")
I("v_mov_b32 v253, 0")
I("v_mov_b32 v254, s68")
I("s_mov_b64 exec, 1")
I("global_store_dword v253, v254, s[66:67] sc1")
I("s_mov_b64 exec, -1")
L("X_nononce")
I("v_mov_b32 v253, 0")
I("global_load_dword v255, v253, s[66:67] sc1")
I(f"s_cmp_ge_u32 s2, {NA}")
I("s_cbranch_scc1 B_start")

I(f"s_setprio {os.environ.get('PRIO_A', '3')}")
I("s_cmp_ge_u32 s2, 128")
I("s_cbranch_scc1 A_wtonly")
I("s_load_dwordx2 s[4:5], s[0:1], 0")
I("s_mov_b32 s14, s64")
I("s_mov_b32 s15, s65")
I("s_mov_b32 s3, s2")
I("v_lshrrev_b32 v1, 6, v0")
I("v_and_b32 v2, 63, v0")
I("s_lshl_b32 s6, s3, 4")
I("v_lshl_add_u32 v3, v1, 2, s6")
I("v_mul_u32_u24 v3, 896, v3")
I("v_lshl_add_u32 v3, v2, 4, v3")
I("s_mul_i32 s7, s3, 14336")
I("v_lshrrev_b32 v29, 2, v2")
I("v_lshlrev_b32 v29, 10, v29")
I("v_and_b32 v28, 3, v2")
I("v_lshl_add_u32 v29, v28, 8, v29")
I("v_lshl_add_u32 v29, v1, 6, v29")
I("s_mov_b32 s20, 0x3b124925")
I("s_mov_b32 s21, 0x43e00000")
I("s_mov_b32 s22, 0x3727c5ac")
for r in range(8, 24):
    I(f"v_mov_b32 v{r}, 0")
I("s_mov_b64 s[16:17], exec")
I("s_mov_b32 s18, -1")
I("s_mov_b32 s19, 0x00ffffff")
I("s_waitcnt lgkmcnt(0)")
I("s_mov_b64 exec, s[18:19]")
for k in range(4):
    I(f"global_load_dwordx4 v[{8+4*k}:{11+4*k}], v3, s[4:5] offset:{896*k}")
I("s_mov_b64 exec, s[16:17]")
I("s_waitcnt vmcnt(0)")
for k in range(4):
    for j in range(4):
        I(f"v_lshlrev_b32 v{32+8*k+2*j}, 16, v{8+4*k+j}")
        I(f"v_and_b32 v{33+8*k+2*j}, 0xffff0000, v{8+4*k+j}")


def rows(fmt, **kw):
    for k in range(4):
        b = 32 + 8 * k
        I(fmt.format(k=k, s=8 + k, t=12 + k, m=16 + k, u=20 + k, w=64 + k, x=68 + k, sg=24 + k,
                     b0=b, b1=b + 1, b2=b + 2, b3=b + 3, b4=b + 4, b5=b + 5, b6=b + 6, b7=b + 7, **kw))


def dpp4():
    for sh in (1, 2, 4, 8):
        rows("v_add_f32_dpp v{s}, v{s}, v{s} row_shr:%d row_mask:0xf bank_mask:0xf bound_ctrl:0" % sh)
    rows("v_add_f32_dpp v{s}, v{s}, v{s} row_bcast:15 row_mask:0xa bank_mask:0xf")
    rows("v_add_f32_dpp v{s}, v{s}, v{s} row_bcast:31 row_mask:0xc bank_mask:0xf")
    rows("v_readlane_b32 s{sg}, v{s}, 63")


rows("v_add_f32 v{s}, v{b0}, v{b1}")
rows("v_add_f32 v{t}, v{b2}, v{b3}")
rows("v_add_f32 v{m}, v{b4}, v{b5}")
rows("v_add_f32 v{u}, v{b6}, v{b7}")
rows("v_add_f32 v{s}, v{s}, v{t}")
rows("v_add_f32 v{m}, v{m}, v{u}")
rows("v_add_f32 v{s}, v{s}, v{m}")
dpp4()
rows("v_mov_b32 v{t}, s{sg}")
rows("v_mul_f32 v{m}, s20, v{t}")
rows("v_fma_f32 v{u}, -v{m}, s21, v{t}")
rows("v_fma_f32 v{m}, v{u}, s20, v{m}")
rows("v_mov_b32 v{s}, 0")
I("s_mov_b64 exec, s[18:19]")
for j in range(8):
    rows("v_sub_f32 v{t}, v{bj}, v{m}".replace("{bj}", "{b%d}" % j))
    rows("v_fmac_f32 v{s}, v{t}, v{t}")
I("s_mov_b64 exec, s[16:17]")
I("s_nop 1")
dpp4()
rows("v_mov_b32 v{t}, s{sg}")
rows("v_mul_f32 v{u}, s20, v{t}")
rows("v_fma_f32 v{w}, -v{u}, s21, v{t}")
rows("v_fma_f32 v{u}, v{w}, s20, v{u}")
rows("v_cvt_pk_bf16_f32 v{u}, v{u}, v{u}")
rows("v_cvt_pk_bf16_f32 v{m}, v{m}, v{m}")
rows("v_lshlrev_b32 v{u}, 16, v{u}")
rows("v_lshlrev_b32 v{m}, 16, v{m}")
rows("v_add_f32 v{u}, s22, v{u}")
rows("v_cvt_pk_bf16_f32 v{u}, v{u}, v{u}")
rows("v_lshlrev_b32 v{u}, 16, v{u}")
rows("v_sqrt_f32 v{w}, v{u}")
for j in range(8):
    rows("v_sub_f32 v{bj}, v{bj}, v{m}".replace("{bj}", "{b%d}" % j))
rows("v_rcp_f32 v{x}, v{w}")
rows("v_fma_f32 v{t}, -v{w}, v{w}, v{u}")
rows("v_mul_f32 v{x}, 0.5, v{x}")
rows("v_fma_f32 v{w}, v{t}, v{x}, v{w}")
rows("v_cvt_pk_bf16_f32 v{w}, v{w}, v{w}")
rows("v_lshlrev_b32 v{w}, 16, v{w}")
rows("v_rcp_f32 v{x}, v{w}")
for j in range(0, 8, 2):
    rows("v_cvt_pk_bf16_f32 v{t}, v{bj}, v{bk}".replace("{bj}", "{b%d}" % j).replace("{bk}", "{b%d}" % (j + 1)))
    rows("v_lshlrev_b32 v{bj}, 16, v{t}".replace("{bj}", "{b%d}" % j))
    rows("v_and_b32 v{bk}, 0xffff0000, v{t}".replace("{bk}", "{b%d}" % (j + 1)))
rows("v_fma_f32 v{t}, -v{w}, v{x}, 1.0")
rows("v_fma_f32 v{x}, v{t}, v{x}, v{x}")
for j in range(8):
    rows("v_mul_f32 v{t}, v{bj}, v{x}".replace("{bj}", "{b%d}" % j))
    rows("v_fma_f32 v{u}, -v{t}, v{w}, v{bj}".replace("{bj}", "{b%d}" % j))
    rows("v_fma_f32 v{bj}, v{u}, v{x}, v{t}".replace("{bj}", "{b%d}" % j))
for j in range(4):
    for k in range(4):
        b = 32 + 8 * k
        I(f"v_cvt_pk_bf16_f32 v{8+4*k+j}, v{b+2*j}, v{b+2*j+1}")
I("v_lshlrev_b32 v30, 2, v1")
I("v_mul_u32_u24 v30, 896, v30")
I("v_lshl_add_u32 v30, v2, 4, v30")
I("s_mov_b64 exec, s[18:19]")
for k in range(4):
    I(f"ds_write_b128 v29, v[{8+4*k}:{11+4*k}] offset:{16384 + 16*k}")
I("s_mov_b64 exec, s[16:17]")
I("s_waitcnt lgkmcnt(0)")
I("s_barrier")
I("v_lshlrev_b32 v4, 4, v0")
I("v_add_u32 v5, s7, v4")
for q in range(3):
    I(f"ds_read_b128 v[{8+4*q}:{11+4*q}], v4 offset:{16384 + 4096*q}")
I("v_cmp_gt_u32 vcc, 128, v0")
I("s_and_saveexec_b64 s[16:17], vcc")
I(f"ds_read_b128 v[20:23], v4 offset:{16384 + 12288}")
I("v_add_u32 v6, 0x3000, v5")
I("s_waitcnt lgkmcnt(0)")
I("global_store_dwordx4 v6, v[20:23], s[14:15] sc1")
I("s_mov_b64 exec, s[16:17]")
I("v_add_u32 v6, 0x1000, v5")
I("v_add_u32 v7, 0x2000, v5")
I("s_waitcnt lgkmcnt(0)")
I("global_store_dwordx4 v5, v[8:11], s[14:15] sc1")
I("global_store_dwordx4 v6, v[12:15], s[14:15] sc1")
I("global_store_dwordx4 v7, v[16:19], s[14:15] sc1")
I("s_lshl_b32 s74, s3, 2")
publish(74)
I("s_branch A_g1")
L("A_wtonly")
I("s_load_dwordx4 s[4:7], s[0:1], 64")
I("s_sub_u32 s3, s2, 128")
I("s_mov_b32 s75, 96")
I("s_cmp_lt_u32 s3, 4")
I("s_cselect_b32 s75, 192, s75")


def wt3(which):
    if which == 1:
        sst, dtile, magic, nk, sp, wsoff = 3584, 14336, 9363, 7, 4, WS_W1T
    else:
        sst, dtile, magic, nk, sp, wsoff = 896, 57344, 2341, 28, 6, WS_W2T
    I(f"s_add_u32 s14, s64, {wsoff}")
    I("s_addc_u32 s15, s65, 0")
    I("v_lshrrev_b32 v1, 3, v0")
    I("v_and_b32 v2, 7, v0")
    I(f"v_mul_u32_u24 v3, {sst}, v1")
    I("v_lshl_add_u32 v3, v2, 4, v3")
    I("v_lshlrev_b32 v5, 7, v1")
    I("v_lshl_add_u32 v5, v2, 4, v5")
    for j in range(3):
        sj = 80 + 4 * j
        if j == 0:
            I(f"s_mov_b32 s{sj}, s3")
        elif j == 1:
            I(f"s_add_u32 s{sj}, s3, 96")
        else:
            I(f"s_add_u32 s{sj}, s3, s75")
        I(f"s_mul_i32 s{sj+2}, s{sj}, {magic}")
        I(f"s_lshr_b32 s{sj+2}, s{sj+2}, 16")
        I(f"s_mul_i32 s{sj+1}, s{sj+2}, {nk}")
        I(f"s_sub_u32 s{sj+1}, s{sj}, s{sj+1}")
        if which == 1:
            I(f"s_and_b32 s{sj+3}, s{sj+2}, 1")
            I(f"s_mul_i32 s{sj+3}, s{sj+3}, 7")
            I(f"s_add_u32 s{sj+3}, s{sj+3}, s{sj+1}")
            I(f"s_lshl_b32 s{sj+3}, s{sj+3}, 2")
            I(f"s_lshr_b32 s12, s{sj+2}, 1")
            I("s_lshl_b32 s12, s12, 6")
            I(f"s_add_u32 s{sj+3}, s{sj+3}, s12")
            I(f"s_add_u32 s{sj+3}, s{sj+3}, {W1F}")
        else:
            I(f"s_lshl_b32 s{sj+3}, s{sj+2}, 7")
            I(f"s_lshl_b32 s12, s{sj+1}, 2")
            I(f"s_add_u32 s{sj+3}, s{sj+3}, s12")
            I(f"s_add_u32 s{sj+3}, s{sj+3}, {W2F}")
    I("s_waitcnt lgkmcnt(0)")
    for j in range(3):
        sj = 80 + 4 * j
        I(f"s_mul_i32 s12, s{sj+1}, {64*sst}")
        I(f"s_lshl_b32 s13, s{sj+2}, 7")
        I("s_add_u32 s12, s12, s13")
        I("v_add_u32 v4, s12, v3")
        I(f"v_add_u32 v6, {32*sst}, v4")
        I(f"global_load_dwordx4 v[{8+8*j}:{11+8*j}], v4, s[{sp}:{sp+1}]")
        I(f"global_load_dwordx4 v[{12+8*j}:{15+8*j}], v6, s[{sp}:{sp+1}]")
    for j in range(3):
        I(f"s_waitcnt vmcnt({4-2*j})")
        I(f"ds_write_b128 v5, v[{8+8*j}:{11+8*j}] offset:{8192*j}")
        I(f"ds_write_b128 v5, v[{12+8*j}:{15+8*j}] offset:{8192*j+4096}")
    I("s_waitcnt lgkmcnt(0)")
    I("s_barrier")
    I("v_and_b32 v1, 15, v0")
    I("v_bfe_u32 v2, v0, 4, 2")
    I("v_lshrrev_b32 v3, 6, v0")
    if which == 1:
        I("v_lshrrev_b32 v4, 2, v1")
        I("v_lshlrev_b32 v4, 4, v4")
        I("v_lshl_add_u32 v4, v3, 2, v4")
        I("v_and_b32 v6, 3, v1")
        I("v_add_u32 v4, v4, v6")
    else:
        I("v_lshl_add_u32 v4, v3, 4, v1")
    I("v_lshlrev_b32 v5, 10, v2")
    I("v_lshl_add_u32 v5, v4, 1, v5")
    I(f"v_mul_u32_u24 v3, {dtile}, v3")
    I("v_and_b32 v4, 63, v0")
    I("v_lshl_add_u32 v3, v4, 4, v3")
    for j in range(3):
        sj = 80 + 4 * j
        for c in range(2):
            for e in range(8):
                I(f"ds_read_u16 v{40 + 8*c + e}, v5 offset:{8192*j + 4096*c + 128*e}")
            if c == 0:
                I("s_waitcnt lgkmcnt(0)")
        I(f"s_mul_i32 s12, s{sj+2}, {4*dtile}")
        I(f"s_lshl_b32 s13, s{sj+1}, 11")
        I("s_add_u32 s12, s12, s13")
        I("v_add_u32 v6, s12, v3")
        I("s_waitcnt lgkmcnt(0)")
        for t in range(8):
            I(f"v_lshl_or_b32 v{8+8*j+t}, v{41+2*t}, 16, v{40+2*t}")
        I(f"global_store_dwordx4 v6, v[{8+8*j}:{11+8*j}], s[14:15] sc1")
        I(f"global_store_dwordx4 v6, v[{12+8*j}:{15+8*j}], s[14:15] offset:1024 sc1")
    publish(83, 87, 91)


wt3(1)
wt3(2)

L("A_g1")
MARK(0)
I(f"s_setprio {os.environ.get('PRIO_G', '2')}")
I("v_and_b32 v1, 15, v0")
I("v_bfe_u32 v2, v0, 4, 2")
I("v_lshrrev_b32 v3, 6, v0")
I("s_and_b32 s10, s2, 7")
I("s_lshr_b32 s3, s2, 3")
I("s_mul_i32 s8, s3, 9363")
I("s_lshr_b32 s8, s8, 16")
I("s_mul_i32 s9, s8, 7")
I("s_sub_u32 s9, s3, s9")
I("s_and_b32 s11, s10, 1")
I("s_mul_i32 s11, s11, 7")
I("s_add_u32 s9, s9, s11")
I("s_lshr_b32 s10, s10, 1")
I("s_lshl_b32 s10, s10, 2")
I("s_add_u32 s8, s8, s10")
I("s_lshl_b32 s76, s8, 5")
I("s_lshl_b32 s77, s9, 6")
I(f"s_add_u32 s77, s77, {W1F}")
I("s_lshl_b32 s74, s8, 6")
I("s_lshl_b32 s10, s9, 2")
I("s_add_u32 s74, s74, s10")
I(f"s_add_u32 s74, s74, {HF}")
wait_flags([(77, 14)])
I(f"s_add_u32 s4, s64, {WS_W1T}")
I("s_addc_u32 s5, s65, 0")
I(f"s_add_u32 s6, s64, {WS_XN}")
I("s_addc_u32 s7, s65, 0")
I("s_lshl_b32 s9, s9, 7")
I("s_lshl_b32 s8, s8, 7")
I("v_and_b32 v4, 1, v3")
I("v_lshl_add_u32 v4, v4, 6, s9")
I("v_lshrrev_b32 v5, 1, v3")
I("v_lshl_add_u32 v5, v5, 6, s8")
I("v_and_b32 v7, 63, v0")
I("v_lshlrev_b32 v7, 4, v7")
I("s_mul_i32 s10, s9, 896")
I("s_mul_i32 s11, s8, 896")
I("v_mul_u32_u24 v6, 28672, v3")
I("v_add_u32 v6, v6, v7")
I("v_add_u32 v8, s10, v6")
I("v_add_u32 v9, 14336, v8")
I("v_add_u32 v10, s11, v6")
I("v_add_u32 v11, 14336, v10")
I("s_lshl_b32 s12, s69, 11")
I("v_and_b32 v12, 1, v3")
I("v_lshl_add_u32 v12, v12, 12, v7")
I("v_lshrrev_b32 v13, 1, v3")
I("v_lshl_add_u32 v13, v13, 12, v7")
I("v_add_u32 v13, 0x2000, v13")
G_ACC = 16
G_FR = 80
issued = []


def g1_dma(st, part):
    slot = (st % 4) * 16384
    for (nm, va, sb, off) in (("A", 8, 4, 0), ("A", 9, 4, 1024), ("B", 10, 6, 8192), ("B", 11, 6, 9216)):
        if nm not in part:
            continue
        if st and off in (0, 8192):
            I(f"s_add_u32 s{sb}, s{sb}, 1024")
            I(f"s_addc_u32 s{sb+1}, s{sb+1}, 0")
        I(f"s_add_u32 m0, s12, {slot + off}")
        I("s_nop 0")
        I(f"global_load_lds_dwordx4 v{va}, s[{sb}:{sb+1}] sc1")
        issued.append(st)


def g1_wait(st):
    last = max(i for i, x in enumerate(issued) if x == st)
    return len(issued) - 1 - last


def g1_reads(st):
    slot = (st % 4) * 16384
    fb = G_FR + 32 * (st & 1)
    for j in range(4):
        I(f"ds_read_b128 v[{fb+4*j}:{fb+4*j+3}], v12 offset:{slot + 1024*j}")
    for j in range(4):
        I(f"ds_read_b128 v[{fb+16+4*j}:{fb+16+4*j+3}], v13 offset:{slot + 1024*j}")


NS1 = 14
for st in range(4):
    g1_dma(st, "A")
wait_flags([(76, 8)])
MARK(1)
for st in range(4):
    g1_dma(st, "B")
I(f"s_waitcnt vmcnt({g1_wait(0)})")
I("s_barrier")
g1_reads(0)
for st in range(NS1):
    if st + 1 < NS1:
        I(f"s_waitcnt vmcnt({g1_wait(st + 1)}) lgkmcnt(0)")
        I("s_barrier")
        if st + 4 < NS1:
            g1_dma(st + 4, "AB")
        g1_reads(st + 1)
    else:
        I("s_waitcnt lgkmcnt(0)")
    fb = G_FR + 32 * (st & 1)
    for a_ in range(4):
        for b_ in range(4):
            c = G_ACC + 16 * a_ + 4 * b_
            src = "0" if st == 0 else f"v[{c}:{c+3}]"
            I(f"v_mfma_f32_16x16x32_bf16 v[{c}:{c+3}], v[{fb+4*a_}:{fb+4*a_+3}], v[{fb+16+4*b_}:{fb+16+4*b_+3}], {src}")
I(f"s_add_u32 s4, s64, {WS_H}")
I("s_addc_u32 s5, s65, 0")
I("v_mul_u32_u24 v6, 3584, v5")
I("v_lshl_add_u32 v6, v4, 5, v6")
I("v_lshrrev_b32 v7, 1, v2")
I("v_lshl_add_u32 v6, v7, 10, v6")
I("v_and_b32 v7, 1, v2")
I("v_lshl_add_u32 v6, v7, 9, v6")
I("v_lshl_add_u32 v6, v1, 4, v6")
I("s_nop 4")
for b in range(4):
    for a in range(4):
        c = G_ACC + 16 * a + 4 * b
        for r in range(4):
            I(f"v_max_f32 v{c+r}, 0, v{c+r}")
        I(f"v_cvt_pk_bf16_f32 v{80+8*b+2*a}, v{c}, v{c+1}")
        I(f"v_cvt_pk_bf16_f32 v{81+8*b+2*a}, v{c+2}, v{c+3}")
    if b > 0:
        I(f"v_add_u32 v6, {57344}, v6")
    I(f"global_store_dwordx4 v6, v[{80+8*b}:{83+8*b}], s[4:5] sc1")
    I(f"global_store_dwordx4 v6, v[{84+8*b}:{87+8*b}], s[4:5] offset:256 sc1")
publish(74)
MARK(2)

I(f"s_setprio {os.environ.get('PRIO_G2', '0')}")
I("s_load_dwordx2 s[16:17], s[0:1], 0")
I("s_load_dwordx2 s[18:19], s[0:1], 48")
I("s_load_dwordx2 s[20:21], s[0:1], 80")
I("s_mov_b32 s14, s64")
I("s_mov_b32 s15, s65")
I("v_and_b32 v4, 63, v0")
I("s_and_b32 s10, s2, 7")
I("s_lshr_b32 s3, s2, 3")
I("s_mul_i32 s8, s3, 9363")
I("s_lshr_b32 s8, s8, 16")
I("s_mul_i32 s9, s8, 7")
I("s_sub_u32 s9, s3, s9")
I("s_lshl_b32 s10, s10, 2")
I("s_add_u32 s8, s8, s10")
I("s_lshr_b32 s76, s8, 1")
I("s_lshl_b32 s76, s76, 6")
I(f"s_add_u32 s76, s76, {HF}")
I("s_lshl_b32 s77, s9, 7")
I(f"s_add_u32 s78, s77, {YF}")
I(f"s_add_u32 s77, s77, {W2F}")
I("s_lshl_b32 s9, s9, 6")
I("s_lshl_b32 s8, s8, 6")
wait_flags([(77, 28), (76, 14)])
MARK(3)
I("s_waitcnt lgkmcnt(0)")
I(f"s_add_u32 s4, s64, {WS_W2T}")
I("s_addc_u32 s5, s65, 0")
I(f"s_add_u32 s6, s64, {WS_H}")
I("s_addc_u32 s7, s65, 0")
I(f"s_add_u32 s10, s64, {WS_YT}")
I("s_addc_u32 s11, s65, 0")
EX, EXN, EY, EDK = 232, 240, 216, 208


def fin_late():
    I("v_lshrrev_b32 v249, 2, v4")
    I("v_lshl_add_u32 v249, v3, 4, v249")
    I("v_add_u32 v250, s8, v249")
    I("v_and_b32 v251, 3, v4")
    I("v_mul_u32_u24 v5, 896, v250")
    I("s_lshl_b32 s12, s9, 1")
    I("v_lshl_add_u32 v6, v251, 5, s12")
    I("v_add_u32 v5, v5, v6")
    I(f"global_load_dwordx4 v[{EX}:{EX+3}], v5, s[16:17]")
    I(f"global_load_dwordx4 v[{EX+4}:{EX+7}], v5, s[16:17] offset:16")
    I("v_lshrrev_b32 v248, 4, v250")
    I("v_mul_u32_u24 v248, 14336, v248")
    I("v_and_b32 v7, 15, v250")
    I("v_lshl_add_u32 v248, v7, 4, v248")
    I("v_lshrrev_b32 v7, 6, v6")
    I("v_lshl_add_u32 v248, v7, 10, v248")
    I("v_bfe_u32 v7, v6, 4, 2")
    I("v_lshl_add_u32 v248, v7, 8, v248")
    I(f"global_load_dwordx4 v[{EXN}:{EXN+3}], v248, s[14:15] sc1")
    I(f"global_load_dwordx4 v[{EXN+4}:{EXN+7}], v248, s[14:15] offset:256 sc1")
    I(f"global_load_dwordx4 v[{EDK}:{EDK+3}], v6, s[18:19]")
    I(f"global_load_dwordx4 v[{EDK+4}:{EDK+7}], v6, s[18:19] offset:16")
    I("v_lshlrev_b32 v7, 11, v6")
    I("v_lshl_add_u32 v252, v250, 1, v7")


def gemm_core(sa, sb, va, vb, acc0, buf0, ring, late, nlate):
    NS = 14
    PF = ring - 1

    def loads(s):
        bb = buf0 + 32 * (s % ring)
        off = (s & 3) * 1024
        if s and (s & 3) == 0:
            I(f"s_add_u32 s{sa}, s{sa}, 4096")
            I(f"s_addc_u32 s{sa+1}, s{sa+1}, 0")
            I(f"s_add_u32 s{sb}, s{sb}, 4096")
            I(f"s_addc_u32 s{sb+1}, s{sb+1}, 0")
        for j in range(4):
            I(f"global_load_dwordx4 v[{bb+4*j}:{bb+4*j+3}], v{va+j}, s[{sa}:{sa+1}] offset:{off} sc1")
        for j in range(4):
            I(f"global_load_dwordx4 v[{bb+16+4*j}:{bb+16+4*j+3}], v{vb+j}, s[{sb}:{sb+1}] offset:{off} sc1")

    for s in range(PF):
        loads(s)
    for s in range(NS):
        if s + PF < NS:
            loads(s + PF)
            if s + PF == NS - 1:
                late()
                I(f"s_waitcnt vmcnt({8*PF + nlate})")
            else:
                I(f"s_waitcnt vmcnt({8*PF})")
        else:
            I(f"s_waitcnt vmcnt({8*(NS-1-s) + nlate})")
        bb = buf0 + 32 * (s % ring)
        for a in range(4):
            for b in range(4):
                c = acc0 + 16 * a + 4 * b
                src = "0" if s == 0 else f"v[{c}:{c+3}]"
                I(f"v_mfma_f32_16x16x32_bf16 v[{c}:{c+3}], v[{bb+4*a}:{bb+4*a+3}], v[{bb+16+4*b}:{bb+16+4*b+3}], {src}")


I("v_mul_u32_u24 v7, 14336, v3")
I("v_lshl_add_u32 v7, v4, 4, v7")
I("s_mul_i32 s12, s9, 3584")
I("v_add_u32 v8, s12, v7")
for j in range(1, 4):
    I(f"v_add_u32 v{8+j}, {57344*j}, v8")
I("s_mul_i32 s12, s8, 3584")
I("v_add_u32 v12, s12, v7")
for j in range(1, 4):
    I(f"v_add_u32 v{12+j}, {57344*j}, v12")
F_ACC = 16
F_BUF = 80
gemm_core(4, 6, 8, 12, F_ACC, F_BUF, 4, fin_late, 6)
MARK(4)
I("v_lshl_add_u32 v6, v3, 6, v1")
I("v_mul_u32_u24 v6, 272, v6")
I("v_lshl_add_u32 v6, v2, 4, v6")
I("s_nop 4")
for a_ in range(4):
    for b_ in range(4):
        c = F_ACC + 16 * a_ + 4 * b_
        I(f"ds_write_b128 v6, v[{c}:{c+3}] offset:{16*b_*272 + 64*a_}")
I("s_waitcnt lgkmcnt(0)")
wait_flags([(78, 32)])
MARK(5)
for dd in range(16):
    if dd:
        I("v_add_u32 v252, 0x1000, v252")
    I(f"global_load_ushort v{EY+dd}, v252, s[10:11] sc1")
I("v_mul_u32_u24 v6, 272, v249")
I("v_lshl_add_u32 v6, v251, 6, v6")
for p in range(4):
    for j in range(4):
        I(f"ds_read_b128 v[{80+16*p+4*j}:{83+16*p+4*j}], v6 offset:{p*64*272 + 16*j}")
I("s_mov_b32 s22, 0xbfb8aa3b")
I("s_waitcnt vmcnt(16) lgkmcnt(0)")


def bfr(r):
    return [f"v_cvt_pk_bf16_f32 v{r}, v{r}, v{r}", f"v_lshlrev_b32 v{r}, 16, v{r}"]


def epi1(dd):
    o = 80 + dd
    t1, t2, t3 = 144 + dd, 160 + dd, 176 + dd
    h = dd & 1

    def unp(dst, reg):
        if h:
            return f"v_and_b32 v{dst}, 0xffff0000, v{reg + dd//2}"
        return f"v_lshlrev_b32 v{dst}, 16, v{reg + dd//2}"
    return [f"v_add_f32 v{o}, v{o}, v{o+16}",
            f"v_add_f32 v{o+32}, v{o+32}, v{o+48}",
            unp(t2, EXN), unp(t3, EDK),
            f"v_add_f32 v{o}, v{o}, v{o+32}",
            f"v_mul_f32 v{t2}, v{t2}, v{t3}"] + bfr(o) + bfr(t2) + [
            f"v_mul_f32 v{t1}, s22, v{o}",
            unp(t3, EX),
            f"v_exp_f32 v{t1}, v{t1}",
            "s_nop 0",
            f"v_add_f32 v{t1}, 1.0, v{t1}",
            f"v_rcp_f32 v{t1}, v{t1}",
            "s_nop 0",
            f"v_mul_f32 v{o}, v{o}, v{t1}"] + bfr(o)


def epi2(dd):
    o = 80 + dd
    t1, t2, t3 = 144 + dd, 160 + dd, 176 + dd
    return [f"v_lshlrev_b32 v{t1}, 16, v{EY+dd}",
            f"v_add_f32 v{t2}, v{t2}, v{t1}"] + bfr(t2) + [
            f"v_mul_f32 v{o}, v{o}, v{t2}"] + bfr(o) + [
            f"v_add_f32 v{o}, v{o}, v{t3}"]


for g in range(0, 16, 4):
    interleave([epi1(dd) for dd in range(g, g + 4)])
I("s_waitcnt vmcnt(0)")
for g in range(0, 16, 4):
    interleave([epi2(dd) for dd in range(g, g + 4)])
for j in range(8):
    I(f"v_cvt_pk_bf16_f32 v{16+j}, v{80+2*j}, v{81+2*j}")
I("global_store_dwordx4 v5, v[16:19], s[20:21]")
I("global_store_dwordx4 v5, v[20:23], s[20:21] offset:16")
I("s_endpgm")

L("B_start")
I(f"s_setprio {os.environ.get('PRIO_B', '1')}")
I(f"s_sub_u32 s2, s2, {NA}")
KSTG = 35072
UB = 2 * KR_STRIDE
I("s_load_dwordx4 s[4:7], s[0:1], 8")
I("s_load_dwordx4 s[8:11], s[0:1], 24")
I("s_load_dwordx2 s[12:13], s[0:1], 40")
I("s_lshl_b32 s3, s2, 10")
I("v_lshl_add_u32 v1, v0, 1, s3")
I("s_lshl_b32 s16, s2, 2")
I("v_mov_b32 v7, s16")
I("s_mov_b32 s20, 0x3fb8aa3b")
I("s_mov_b32 s21, 0x32a57060")
I("s_mov_b32 s22, 0x3f317218")
I("s_mov_b32 s23, 0x3e22f983")
I("s_mov_b32 s24, 0x31dc9c88")
I("s_waitcnt lgkmcnt(0)")
for ch in range(2):
    rb = 140 + 5 * ch
    I(f"global_load_ushort v{rb}, v1, s[4:5] offset:{512*ch}")
    I(f"global_load_ushort v{rb+1}, v1, s[6:7] offset:{512*ch}")
    I(f"global_load_ushort v{rb+2}, v1, s[8:9] offset:{512*ch}")
    I(f"global_load_ushort v{rb+3}, v1, s[10:11] offset:{512*ch}")
    I(f"global_load_ushort v{rb+4}, v7, s[12:13] offset:{2*ch}")
I("s_mov_b32 s74, 0")
I("v_mov_b32 v60, 0x80")
for g in range(2):
    es = [4 * g + k for k in range(4)]
    A_, B_, C_, D_, F_ = 10, 14, 48, 52, 56

    def col(fmt):
        for k, e in enumerate(es):
            I(fmt.format(a=A_ + k, b=B_ + k, c=C_ + k, d=D_ + k, f=F_ + k, e=e, o=160 + e))
    col("v_lshl_add_u32 v{a}, v0, 3, {e}")
    col("v_cvt_f32_u32 v{a}, v{a}")
    col("v_cvt_pk_bf16_f32 v{a}, v{a}, v{a}")
    col("v_bfe_u32 v{b}, v{a}, 7, 8")
    col("v_lshlrev_b32 v{a}, 16, v{a}")
    col("v_subrev_u32 v{b}, 134, v{b}")
    col("v_cvt_u32_f32 v{a}, v{a}")
    col("v_med3_i32 v{b}, v{b}, 0, 3")
    col("v_lshlrev_b32 v{c}, v{b}, v60")
    col("v_sub_u32 v{f}, 3, v{b}")
    col("v_and_b32 v{c}, 0xffffff00, v{c}")
    col("v_sub_u32 v{a}, v{a}, v{c}")
    col("v_and_b32 v{c}, 7, v{a}")
    col("v_lshrrev_b32 v{d}, 7, v{a}")
    col("v_lshrrev_b32 v{c}, v{b}, v{c}")
    col("v_lshlrev_b32 v{d}, v{f}, v{d}")
    col("v_bfe_u32 v{a}, v{a}, 3, 4")
    col("v_add_u32 v{c}, v{c}, v{d}")
    col("v_min_u32 v{d}, 1, v{b}")
    col("v_lshl_add_u32 v{c}, v{c}, 4, v{a}")
    col("v_add_u32 v{d}, v{d}, v{b}")
    col("v_lshl_add_u32 v{c}, v{d}, 7, v{c}")
    col("v_lshlrev_b32 v{o}, 2, v{c}")
I("s_waitcnt vmcnt(0)")
L("B_kloop")
KMARK(0)
for k, r in enumerate((2, 3, 4, 5, 6)):
    I(f"v_lshlrev_b32 v{r}, 16, v{140+k}")


def exp_acc(dst, x, t0, t1):
    I(f"v_mul_f32 v{t0}, s20, v{x}")
    I(f"v_fma_f32 v{t1}, v{x}, s20, -v{t0}")
    I(f"v_fma_f32 v{t1}, v{x}, s21, v{t1}")
    I(f"v_exp_f32 v{dst}, v{t0}")
    I(f"v_mul_f32 v{t1}, s22, v{t1}")
    I(f"v_fma_f32 v{dst}, v{dst}, v{t1}, v{dst}")


exp_acc(8, 6, 10, 11)
bf16r(8, 8)
exp_acc(9, 2, 10, 11)
bf16r(9, 9)
I("v_mul_f32 v9, v9, v8")
I("v_mul_f32 v12, s20, v9")
I("v_sub_f32 v12, 0, v12")
I("v_mul_f32 v3, v3, v8")
I("v_mul_f32 v13, s23, v3")
I("v_fma_f32 v14, v3, s23, -v13")
I("v_fma_f32 v14, v3, s24, v14")
I("v_rndne_f32 v10, v13")
I("v_sub_f32 v10, v13, v10")
I("v_and_b32 v13, 0xffffff00, v10")
I("v_sub_f32 v10, v10, v13")
I("v_add_f32 v14, v10, v14")
I("v_mul_f32 v15, v4, v8")
I("v_add_f32 v15, v15, v15")
I("v_mul_f32 v16, v5, v8")
I("v_add_f32 v16, v16, v16")
WREG = 8704
LOO = 4352
I("v_and_b32 v2, 15, v0")
I("v_bfe_u32 v3, v0, 4, 2")
I("v_lshrrev_b32 v6, 6, v0")
I(f"v_mul_u32_u24 v6, {WREG}, v6")
I(f"v_add_u32 v6, {KSTG}, v6")
I("v_and_b32 v4, 63, v0")
I("v_lshl_add_u32 v4, v4, 2, v6")
I("v_mul_u32_u24 v5, 272, v2")
I("v_lshl_add_u32 v5, v3, 4, v5")
I("v_add_u32 v5, v5, v6")


def cexp_ops(p, d, t):
    return [f"v_mul_f32 v{t}, {p}, v12",
            f"v_mul_f32 v{t+1}, {p}, v13",
            f"v_exp_f32 v{t}, v{t}",
            f"v_fract_f32 v{t+1}, v{t+1}",
            f"v_mov_b32 v{d}, {p}",
            f"v_fma_f32 v{t+1}, v{d}, v14, v{t+1}",
            f"v_cos_f32 v{d}, v{t+1}",
            f"v_sin_f32 v{d+1}, v{t+1}",
            "s_nop 0",
            f"v_mul_f32 v{d}, v{d}, v{t}",
            f"v_mul_f32 v{d+1}, v{d+1}, v{t}"]


def cmul_ops(d, a, b):
    return [f"v_mul_f32 v{d}, v{a}, v{b}",
            f"v_mul_f32 v{d+1}, v{a}, v{b+1}",
            f"v_fma_f32 v{d}, -v{a+1}, v{b+1}, v{d}",
            f"v_fma_f32 v{d+1}, v{a+1}, v{b}, v{d+1}"]


def split_ops(v, row, t, neg=False):
    n = "-" if neg else ""
    return [f"v_cvt_pk_bf16_f32 v{t}, v{v}, {n}v{v+1}",
            f"v_lshlrev_b32 v{t+1}, 16, v{t}",
            f"v_and_b32 v{t+2}, 0xffff0000, v{t}",
            f"v_sub_f32 v{t+1}, v{v}, v{t+1}",
            f"v_sub_f32 v{t+2}, {n}v{v+1}, v{t+2}",
            f"ds_write_b32 v4, v{t} offset:{row*272}",
            f"v_cvt_pk_bf16_f32 v{t+1}, v{t+1}, v{t+2}",
            f"ds_write_b32 v4, v{t+1} offset:{LOO + row*272}"]


ZQ = lambda q: 20 + 2 * q
EJ = lambda j: 40 + 2 * j
Z128 = 18
BH, BL = 72, 88
AF = 40
ACC = 124
GT = [104, 106, 108, 110]
ST = [112, 115, 118, 121]
KMARK(1)
interleave([cexp_ops("1.0", ZQ(1), 104), cexp_ops("0x41000000", EJ(1), 106), cexp_ops("0x43000000", Z128, 108)])
I("v_mov_b32 v40, 1.0")
I("v_mov_b32 v41, 0")
interleave([cmul_ops(EJ(2), EJ(1), EJ(1)), cmul_ops(ZQ(2), ZQ(1), ZQ(1)), split_ops(40, 0, ST[0], True), split_ops(EJ(1), 1, ST[1], True)])
interleave([cmul_ops(EJ(3), EJ(2), EJ(1)), cmul_ops(EJ(4), EJ(2), EJ(2)), cmul_ops(ZQ(3), ZQ(2), ZQ(1)), cmul_ops(ZQ(4), ZQ(2), ZQ(2)), split_ops(EJ(2), 2, ST[0], True)])
interleave([cmul_ops(EJ(5), EJ(4), EJ(1)), cmul_ops(EJ(6), EJ(3), EJ(3)), cmul_ops(EJ(7), EJ(4), EJ(3)), cmul_ops(EJ(8), EJ(4), EJ(4)),
            split_ops(EJ(3), 3, ST[0], True), split_ops(EJ(4), 4, ST[1], True)])
interleave([cmul_ops(ZQ(5), ZQ(4), ZQ(1)), cmul_ops(ZQ(6), ZQ(3), ZQ(3)), cmul_ops(ZQ(7), ZQ(4), ZQ(3)),
            cmul_ops(EJ(9), EJ(8), EJ(1)), cmul_ops(EJ(10), EJ(8), EJ(2)), cmul_ops(EJ(11), EJ(8), EJ(3)),
            split_ops(EJ(5), 5, ST[0], True), split_ops(EJ(6), 6, ST[1], True)])
interleave([cmul_ops(EJ(12), EJ(8), EJ(4)), cmul_ops(EJ(13), EJ(8), EJ(5)), cmul_ops(EJ(14), EJ(8), EJ(6)), cmul_ops(EJ(15), EJ(8), EJ(7)),
            split_ops(EJ(7), 7, ST[0], True), split_ops(EJ(8), 8, ST[1], True), split_ops(EJ(9), 9, ST[2], True), split_ops(EJ(10), 10, ST[3], True)])
interleave([split_ops(EJ(11 + k), 11 + k, ST[k], True) for k in range(4)])
interleave([split_ops(EJ(15), 15, ST[0], True), cmul_ops(38, 15, Z128)])
I("v_mov_b32 v36, v15")
I("v_mov_b32 v37, v16")
I("s_waitcnt lgkmcnt(0)")
for sidx in range(4):
    I(f"ds_read_b128 v[{BH+4*sidx}:{BH+4*sidx+3}], v5 offset:{64*sidx}")
    I(f"ds_read_b128 v[{BL+4*sidx}:{BL+4*sidx+3}], v5 offset:{LOO+64*sidx}")
KMARK(2)
CR_ = [36, 38, 6, 8, 10]
CK = lambda k: CR_[k % 5] if k < 8 else 170 + 2 * (k - 8)


def rowval(k, q, row, gi):
    if q == 0:
        return split_ops(CK(k), row, ST[gi])
    return cmul_ops(GT[gi], CK(k), ZQ(q)) + split_ops(GT[gi], row, ST[gi])


def tile_mfma(t):
    I("s_waitcnt lgkmcnt(0)")
    for sidx in range(4):
        I(f"ds_read_b128 v[{AF+4*sidx}:{AF+4*sidx+3}], v5 offset:{64*sidx}")
        I(f"ds_read_b128 v[{AF+16+4*sidx}:{AF+16+4*sidx+3}], v5 offset:{LOO+64*sidx}")
    acc = ACC + 4 * t
    out = []
    for sidx in range(4):
        ah, al = AF + 4 * sidx, AF + 16 + 4 * sidx
        bh, bl = BH + 4 * sidx, BL + 4 * sidx
        for (x, y) in ((ah, bh), (al, bh), (ah, bl)):
            src = "0" if (sidx == 0 and (x, y) == (ah, bh)) else f"v[{acc}:{acc+3}]"
            out.append(f"v_mfma_f32_16x16x32_bf16 v[{acc}:{acc+3}], v[{x}:{x+3}], v[{y}:{y+3}], {src}")
    return out


def run_rows(rows_, extra):
    for g in range(0, len(rows_), 4):
        ch = [rowval(k, q, row, gi) for gi, (k, q, row) in enumerate(rows_[g:g + 4])]
        if extra:
            ch.append(extra.pop(0))
        interleave(ch)
    for e in extra:
        interleave([e])


run_rows([(kap, q, q + 8 * kap) for kap in (0, 1) for q in range(8)],
         [cmul_ops(CK(k), CK(k - 1), Z128) for k in (2, 3, 4)])
mf = tile_mfma(0)
I("s_waitcnt lgkmcnt(0)")
KMARK(3)
r1 = [(2 + kp, q, q // 2 + 4 * kp) for kp in (0, 1) for q in (0, 2, 4, 6)]
r1b = [(4 + kp, q, 8 + q // 4 + 2 * kp) for kp in range(4) for q in (0, 4)]
interleave([mf[:6]] + [rowval(k, q, row, gi) for gi, (k, q, row) in enumerate(r1[:4])])
interleave([mf[6:]] + [rowval(k, q, row, gi) for gi, (k, q, row) in enumerate(r1[4:])] + [cmul_ops(CK(5), CK(4), Z128)])
interleave([rowval(k, q, row, gi) for gi, (k, q, row) in enumerate(r1b[:4])] + [cmul_ops(CK(6), CK(5), Z128) + cmul_ops(CK(7), CK(6), Z128)])
interleave([rowval(k, q, row, gi) for gi, (k, q, row) in enumerate(r1b[4:])] + [sum([cmul_ops(CK(k), CK(k - 1), Z128) for k in (8, 9, 10)], [])])
mf = tile_mfma(1)
I("s_waitcnt lgkmcnt(0)")
KMARK(4)
interleave([split_ops(CK(8 + r), r, ST[r]) for r in range(3)] + [sum([cmul_ops(CK(k), CK(k - 1), Z128) for k in (11, 12, 13)], []), mf[:6]])
interleave([split_ops(CK(11 + r), 3 + r, ST[r]) for r in range(3)] + [sum([cmul_ops(CK(k), CK(k - 1), Z128) for k in (14, 15, 16)], []), mf[6:]])
interleave([split_ops(CK(14 + r), 6 + r, ST[r]) for r in range(3)])
mf = tile_mfma(2)
I("s_waitcnt lgkmcnt(0)")
for m in mf:
    I(m)
I("s_nop 7")
I("s_nop 1")
I("v_lshrrev_b32 v19, 6, v0")
I(f"v_mul_u32_u24 v19, {WREG}, v19")
I("v_lshl_add_u32 v19, v3, 8, v19")
I("v_lshl_add_u32 v19, v2, 2, v19")
for t in range(3):
    for r in range(4):
        I(f"ds_write_b32 v19, v{ACC+4*t+r} offset:{KSTG + t*1024 + r*64}")
I("s_waitcnt lgkmcnt(0)")
I("s_barrier")
KMARK(5)
for e in range(8):
    for w in range(4):
        I(f"ds_read_b32 v{16 + 4*e + w}, v{160+e} offset:{KSTG + w*8704}")
    if e == 3:
        I("s_waitcnt lgkmcnt(0)")
I("s_waitcnt lgkmcnt(0)")
for e in range(8):
    b = 16 + 4 * e
    I(f"v_add_f32 v{b}, v{b}, v{b+1}")
    I(f"v_add_f32 v{b+2}, v{b+2}, v{b+3}")
    I(f"v_add_f32 v{b}, v{b}, v{b+2}")
for j in range(4):
    ka, kb = 16 + 4 * (7 - 2 * j), 16 + 4 * (6 - 2 * j)
    I(f"v_cvt_pk_bf16_f32 v{48+j}, v{ka}, v{kb}")
    I(f"v_lshlrev_b32 v10, 16, v{48+j}")
    I(f"v_and_b32 v11, 0xffff0000, v{48+j}")
    I(f"v_sub_f32 v10, v{ka}, v10")
    I(f"v_sub_f32 v11, v{kb}, v11")
    I(f"v_cvt_pk_bf16_f32 v{52+j}, v10, v11")
I("v_lshlrev_b32 v10, 4, v0")
I("v_sub_u32 v10, 4080, v10")
I("v_add_u32 v10, s74, v10")
I("ds_write_b128 v10, v[48:51]")
I("ds_write_b128 v10, v[52:55] offset:4608")
I("v_cmp_gt_u32 vcc, 64, v0")
I("s_and_saveexec_b64 s[18:19], vcc")
I("v_and_b32 v10, 31, v0")
I("v_lshlrev_b32 v10, 4, v10")
I("v_lshrrev_b32 v11, 5, v0")
I("v_mul_u32_u24 v11, 4608, v11")
I("v_add3_u32 v10, v10, v11, s74")
for r in range(12, 16):
    I(f"v_mov_b32 v{r}, 0")
I("ds_write_b128 v10, v[12:15] offset:4096")
I("s_mov_b64 exec, s[18:19]")
I("s_waitcnt lgkmcnt(0)")
I("s_barrier")
KMARK(6)
for k in range(5):
    I(f"v_mov_b32 v{140+k}, v{145+k}")
I(f"s_add_u32 s74, s74, {KR_STRIDE}")
I(f"s_cmp_eq_u32 s74, {2*KR_STRIDE}")
I("s_cbranch_scc1 B_kdone")
MARK(0)
I(f"s_mov_b32 s76, {LNF}")
I(f"s_mov_b32 s77, {LNF + 256}")
wait_flags([(76, 64), (77, 64)])
I("v_and_b32 v1, 15, v0")
I("v_bfe_u32 v2, v0, 4, 2")
I("v_lshrrev_b32 v3, 6, v0")
I("s_lshr_b32 s6, s2, 4")
I("s_lshl_b32 s6, s6, 10")
I("s_lshr_b32 s7, s2, 2")
I("s_and_b32 s7, s7, 3")
I("s_lshl_b32 s7, s7, 8")
I("s_add_u32 s6, s6, s7")
I("s_and_b32 s7, s2, 3")
I("s_lshl_b32 s7, s7, 2")
I("s_add_u32 s6, s6, s7")
I("s_add_u32 s6, s64, s6")
I("s_addc_u32 s7, s65, 0")
I("v_lshrrev_b32 v4, 4, v0")
I("v_mul_u32_u24 v4, 14336, v4")
I("v_lshl_add_u32 v4, v1, 4, v4")
for j in range(8):
    if j:
        I(f"v_add_u32 v4, {16*14336}, v4")
    I(f"global_load_dword v{190+j}, v4, s[6:7] sc1")
I("s_branch B_kloop")
L("B_kdone")
I(f"s_setprio {os.environ.get('PRIO_C', '3')}")
MARK(1)
I("v_and_b32 v1, 15, v0")
I("v_bfe_u32 v2, v0, 4, 2")
I("v_lshrrev_b32 v3, 6, v0")
I("v_lshlrev_b32 v5, 1, v0")
I("v_cmp_gt_u32 vcc, 16, v0")
I("s_and_saveexec_b64 s[18:19], vcc")
I("v_mov_b32 v8, 0")
for q in range(4):
    I(f"ds_write_b16 v5, v8 offset:{UB + q*XNT_STRIDE}")
I("s_mov_b64 exec, s[18:19]")
I("s_waitcnt lgkmcnt(0)")
I("s_barrier")
for j in range(8):
    I(f"s_waitcnt vmcnt({7-j})")
    o = UB + 512 * j
    I(f"ds_write_b16 v5, v{190+j} offset:{o + 32}")
    I(f"ds_write_b16 v5, v{190+j} offset:{o + XNT_STRIDE + 30}")
    I(f"ds_write_b16_d16_hi v5, v{190+j} offset:{o + 2*XNT_STRIDE + 32}")
    I(f"ds_write_b16_d16_hi v5, v{190+j} offset:{o + 3*XNT_STRIDE + 30}")
I("s_waitcnt lgkmcnt(0)")
I("s_barrier")
MARK(2)
I("v_lshrrev_b32 v4, 1, v3")
I("v_lshl_add_u32 v5, v2, 3, v1")
I("v_add_u32 v5, 1, v5")
I("v_and_b32 v7, 1, v5")
I("v_sub_u32 v5, v5, v7")
I("v_lshlrev_b32 v5, 1, v5")
I(f"v_mul_u32_u24 v7, {XNT_STRIDE}, v7")
I("v_add_u32 v5, v5, v7")
I(f"v_mul_u32_u24 v7, {2*XNT_STRIDE}, v4")
I("v_add_u32 v5, v5, v7")
I("v_and_b32 v7, 1, v3")
I("v_lshl_add_u32 v5, v7, 8, v5")
I(f"v_add_u32 v232, {UB}, v5")
for c in range(1, 8):
    I(f"v_add_u32 v{232+c}, {512*c}, v232")
I(f"v_mul_u32_u24 v6, {KR_STRIDE}, v4")
I("v_lshl_add_u32 v6, v2, 4, v6")
I("v_lshl_add_u32 v6, v7, 8, v6")
I("v_lshlrev_b32 v7, 5, v1")
I("v_sub_u32 v6, v6, v7")
I("v_add_u32 v6, 480, v6")
CA0 = 8
CBUF = 40


def creads(r):
    bb = CBUF + 96 * (r & 1)
    out = []
    for c in range(8):
        out.append(f"ds_read2_b32 v[{bb+4*c}:{bb+4*c+1}], v{232+c} offset0:{16*r} offset1:{16*r+1}")
        out.append(f"ds_read2_b32 v[{bb+4*c+2}:{bb+4*c+3}], v{232+c} offset0:{16*r+2} offset1:{16*r+3}")
    for n in range(8):
        o = 3584 - 512 * n + 64 * r
        out.append(f"ds_read_b128 v[{bb+32+8*n}:{bb+32+8*n+3}], v6 offset:{o}")
        out.append(f"ds_read_b128 v[{bb+36+8*n}:{bb+36+8*n+3}], v6 offset:{o+4608}")
    return out


for x in creads(0):
    I(x)
for r in range(4):
    I("s_waitcnt lgkmcnt(0)")
    nxt = creads(r + 1) if r < 3 else []
    bb = CBUF + 96 * (r & 1)
    mf = []
    for T in range(8):
        acc = CA0 + 4 * T
        for c in range(T + 1):
            n = T - c
            first = (r == 0 and c == 0)
            src = "0" if first else f"v[{acc}:{acc+3}]"
            mf.append(f"v_mfma_f32_16x16x32_bf16 v[{acc}:{acc+3}], v[{bb+4*c}:{bb+4*c+3}], v[{bb+32+8*n}:{bb+32+8*n+3}], {src}")
            mf.append(f"v_mfma_f32_16x16x32_bf16 v[{acc}:{acc+3}], v[{bb+4*c}:{bb+4*c+3}], v[{bb+36+8*n}:{bb+36+8*n+3}], v[{acc}:{acc+3}]")
    k = 0
    for idx, m in enumerate(mf):
        I(m)
        if k < len(nxt) and idx % 2 == 1:
            I(nxt[k]); k += 1
    while k < len(nxt):
        I(nxt[k]); k += 1
I("s_barrier")
I("v_and_b32 v5, 63, v0")
I("v_lshlrev_b32 v5, 4, v5")
I("v_lshl_add_u32 v6, v3, 12, v5")
I("v_xor_b32 v7, 1, v3")
I("v_lshl_add_u32 v5, v7, 12, v5")
I("s_lshl_b32 s10, s2, 13")
I(f"s_add_u32 s10, s10, {WS_YT}")
I("s_add_u32 s10, s64, s10")
I("s_addc_u32 s11, s65, 0")
I("v_lshlrev_b32 v7, 12, v4")
I("v_lshl_add_u32 v7, v1, 5, v7")
I("v_lshl_add_u32 v7, v2, 3, v7")
I("s_lshl_b32 s74, s2, 2")
I(f"s_add_u32 s74, s74, {YF}")
I("s_and_b32 s9, s69, 1")
I("s_cmp_eq_u32 s9, 1")
I("s_cbranch_scc1 B_cv1")
for h in range(2):
    if h:
        L("B_cv1")
    keep = [4 * h + j for j in range(4)]
    give = [4 * (1 - h) + j for j in range(4)]
    for j, T in enumerate(give):
        I(f"ds_write_b128 v6, v[{CA0+4*T}:{CA0+4*T+3}] offset:{1024*j}")
    I("s_waitcnt lgkmcnt(0)")
    I("s_barrier")
    for j in range(4):
        I(f"ds_read_b128 v[{40+4*j}:{43+4*j}], v5 offset:{1024*j}")
    I("s_waitcnt lgkmcnt(0)")
    for j, T in enumerate(keep):
        acc = CA0 + 4 * T
        for r_ in range(4):
            I(f"v_add_f32 v{acc+r_}, v{acc+r_}, v{40+4*j+r_}")
        I(f"v_cvt_pk_bf16_f32 v{56+2*j}, v{acc}, v{acc+1}")
        I(f"v_cvt_pk_bf16_f32 v{57+2*j}, v{acc+2}, v{acc+3}")
        I(f"global_store_dwordx2 v7, v[{56+2*j}:{57+2*j}], s[10:11] offset:{512*T} sc1")
    if h == 0:
        I("s_branch B_pub")
L("B_pub")
MARK(3)
publish(74)
I("s_endpgm")
L("X_exit")
lines.append("    s_endpgm")

E('.section .rodata,"a"')
E(".p2align 6")
E(f".amdhsa_kernel {NAME}_kernel")
E("  .amdhsa_next_free_vgpr 256")
E("  .amdhsa_next_free_sgpr 96")
E("  .amdhsa_accum_offset 256")
E("  .amdhsa_group_segment_fixed_size 0")
E("  .amdhsa_kernarg_size 104")
E("  .amdhsa_user_sgpr_count 2")
E("  .amdhsa_user_sgpr_kernarg_segment_ptr 1")
E("  .amdhsa_system_sgpr_workgroup_id_x 1")
E("  .amdhsa_float_denorm_mode_32 3")
E(".end_amdhsa_kernel")
open(OUT, "w").write("\n".join(lines) + "\n")
print("wrote", OUT, len(lines), "lines")
```

```python
import sys, os

NAME = "recurrent_scan__ssm_conv_s4d__dense_activation_relu__prompt"
OUT = sys.argv[1] if len(sys.argv) > 1 else f"cdna_kernels/{NAME}.s"
STAMP = int(os.environ.get("STAMP", "0"))

WS_XN = 0x0000000
WS_XNT = 0x0200000
XNT_STRIDE = 4160
KR_STRIDE = 9216
if os.environ.get("COMPACT"):
    WS_FLG = 0x01C0000
    WS_W1T = 0x01C4000
    WS_W2T = WS_W1T + 0x188000
    WS_YT = WS_W2T + 0x188000
    WS_H = WS_YT + 0x1C0000
else:
    WS_W1T = 0x0400000
    WS_W2T = 0x0600000
    WS_H = 0x1000000
    WS_YT = 0x1800000
    WS_FLG = 0x1C00000
LNF, W1F, W2F, HF, YF, LNF2, DUMMYF = 0, 1024, 2048, 3072, 4096, 5120, 6144

NA, NB = 224, 224
GRID = NA + NB
LDS = 70144

lines = []


def E(s=""):
    lines.append(s)


DSTAMP = int(os.environ.get("DSTAMP", "0"))


def I(s):
    if DSTAMP and s == "s_endpgm":
        lb = uid("DS")
        for x in ("s_cmp_lg_u32 s69, 0", f"s_cbranch_scc1 {lb}",
                  "s_mov_b64 exec, 1", "s_memrealtime s[34:35]", "s_waitcnt vmcnt(0) lgkmcnt(0)",
                  "v_mov_b32 v1, 8", "v_mov_b32 v2, s34", "global_atomic_umax v1, v2, s[66:67]",
                  "s_cmp_lg_u32 s28, 0", f"s_cbranch_scc1 {lb}",
                  "v_mov_b32 v1, 4", "v_mov_b32 v2, s30", "global_store_dword v1, v2, s[66:67]"):
            lines.append("    " + x)
        lines.append(lb + ":")
    if STAMP and s == "s_endpgm":
        for x in ("s_mov_b64 exec, -1",
                  "s_memrealtime s[34:35]", "s_memtime s[36:37]",
                  "s_waitcnt vmcnt(0) lgkmcnt(0)",
                  f"s_add_u32 s38, s64, {0x2000000}", "s_addc_u32 s39, s65, 0",
                  "s_lshl_b32 s2, s28, 2", "s_add_u32 s2, s2, s69", "s_lshl_b32 s2, s2, 5", "v_mov_b32 v1, s2",
                  "v_mov_b32 v4, s30", "v_mov_b32 v5, s31", "v_mov_b32 v6, s34", "v_mov_b32 v7, s35",
                  "v_mov_b32 v8, s32", "v_mov_b32 v9, s33", "v_mov_b32 v10, s36", "v_mov_b32 v11, s37",
                  "global_store_dwordx4 v1, v[4:7], s[38:39]", "global_store_dwordx4 v1, v[8:11], s[38:39] offset:16",
                  "v_mov_b32 v4, s40", "v_mov_b32 v5, s42", "v_mov_b32 v6, s44", "v_mov_b32 v7, s46",
                  "v_mov_b32 v8, s48", "v_mov_b32 v9, s50", "v_mov_b32 v10, s52", "v_mov_b32 v11, s54",
                  "v_add_u32 v1, 0x100000, v1",
                  "global_store_dwordx4 v1, v[4:7], s[38:39]", "global_store_dwordx4 v1, v[8:11], s[38:39] offset:16"):
            lines.append("    " + x)
    lines.append("    " + s)


def KMARK(n):
    if STAMP and os.environ.get("KM"):
        lines.append(f"    s_memtime s[{40+2*n}:{41+2*n}]")


def MARK(n):
    if STAMP and not os.environ.get("KM"):
        lines.append(f"    s_memtime s[{40+2*n}:{41+2*n}]")


def L(lbl):
    lines.append(lbl + ":")


_uid = [0]


def uid(p):
    _uid[0] += 1
    return f"{p}_{_uid[0]}"


def interleave(chains):
    chains = [list(c) for c in chains]
    while any(chains):
        for c in chains:
            if c:
                I(c.pop(0))


def bf16r(dst, src):
    I(f"v_cvt_pk_bf16_f32 v{dst}, v{src}, v{src}")
    I(f"v_lshlrev_b32 v{dst}, 16, v{dst}")


def get_nonce():
    a, b = uid("N_poll"), uid("N_ok")
    I("s_cmp_lg_u32 s68, 0")
    I(f"s_cbranch_scc1 {b}")
    I("s_waitcnt vmcnt(0)")
    I("v_readfirstlane_b32 s68, v255")
    I("s_cmp_lg_u32 s68, 0")
    I(f"s_cbranch_scc1 {b}")
    I(f"v_mov_b32 v253, {128 if DSTAMP else 0}")
    L(a)
    I("global_load_dword v254, v253, s[66:67] sc1")
    I("s_waitcnt vmcnt(0)")
    I("v_readfirstlane_b32 s68, v254")
    I("s_cmp_lg_u32 s68, 0")
    I(f"s_cbranch_scc1 {b}")
    I("s_sleep 4")
    I(f"s_branch {a}")
    L(b)


def publish(*soffs):
    e = uid("PB_end")
    I("s_waitcnt vmcnt(0) lgkmcnt(0)")
    I("s_barrier")
    I("s_cmp_lg_u32 s69, 0")
    I(f"s_cbranch_scc1 {e}")
    get_nonce()
    I("v_mov_b32 v254, s68")
    I("s_mov_b64 s[72:73], exec")
    I("s_mov_b64 exec, 1")
    for soff in soffs:
        I(f"v_mov_b32 v253, s{soff}")
        I("global_store_dword v253, v254, s[70:71] sc1")
    I("s_mov_b64 exec, s[72:73]")
    L(e)


def wait_flags(specs, first_sleep=0):
    e = uid("W_end")
    I("s_cmp_lg_u32 s69, 0")
    I(f"s_cbranch_scc1 {e}")
    get_nonce()
    if first_sleep:
        I(f"s_sleep {first_sleep}")
    for (soff, n) in specs:
        a, b = uid("W_poll"), uid("W_ok")
        I("v_and_b32 v253, 63, v0")
        I(f"v_min_u32 v253, {n-1}, v253")
        I(f"v_lshl_add_u32 v253, v253, 2, s{soff}")
        L(a)
        I("global_load_dword v254, v253, s[70:71] sc1")
        I("s_waitcnt vmcnt(0)")
        I("v_cmp_ne_u32 vcc, s68, v254")
        I("s_cmp_eq_u64 vcc, 0")
        I(f"s_cbranch_scc1 {b}")
        I("s_sleep 3")
        I(f"s_branch {a}")
        L(b)
    L(e)
    I("s_barrier")


HEADER = open(f"cdna_kernels/{NAME}.s.ref").read().split("; Override launch")[0]
E(HEADER.rstrip("\n"))
E(f"; @launch grid=({GRID},1,1) block=(256,1,1) lds={LDS}")
E('.amdgcn_target "amdgcn-amd-amdhsa--gfx950"')
E(".text")
E(f".globl {NAME}_kernel")
E(".p2align 8")
E(f".type {NAME}_kernel,@function")
L(f"{NAME}_kernel")
I(f"s_cmp_ge_u32 s2, {GRID}")
I("s_cbranch_scc1 X_exit")
I("s_mov_b32 s28, s2")
if DSTAMP:
    I("s_memrealtime s[30:31]")
if STAMP:
    I("s_memrealtime s[30:31]")
    I("s_memtime s[32:33]")
I("s_load_dwordx4 s[64:67], s[0:1], 88")
I("v_readfirstlane_b32 s69, v0")
I("s_lshr_b32 s69, s69, 6")
I("s_mov_b32 s68, 0")
I("s_waitcnt lgkmcnt(0)")
I("s_mov_b32 s72, s64")
I("s_mov_b32 s73, s65")
I("s_mov_b32 s64, s66")
I("s_mov_b32 s65, s67")
I("s_mov_b32 s66, s72")
I("s_mov_b32 s67, s73")
I(f"s_add_u32 s70, s64, {WS_FLG}")
I("s_addc_u32 s71, s65, 0")
I("s_or_b32 s72, s2, s69")
I("s_cmp_lg_u32 s72, 0")
I("s_cbranch_scc1 X_nononce")
I("s_memrealtime s[72:73]")
I("s_waitcnt lgkmcnt(0)")
I("s_or_b32 s68, s72, 1")
I(f"v_mov_b32 v253, {128 if DSTAMP else 0}")
I("v_mov_b32 v254, s68")
I("s_mov_b64 exec, 1")
I("global_store_dword v253, v254, s[66:67] sc1")
I("s_mov_b64 exec, -1")
L("X_nononce")
I(f"v_mov_b32 v253, {128 if DSTAMP else 0}")
I("global_load_dword v255, v253, s[66:67] sc1")
I(f"s_cmp_ge_u32 s2, {NA}")
I("s_cbranch_scc1 B_start")

I(f"s_setprio {os.environ.get('PRIO_A', '3')}")
I("s_cmp_ge_u32 s2, 128")
I("s_cbranch_scc1 A_wtonly")
I("s_load_dwordx2 s[4:5], s[0:1], 0")
I("s_mov_b32 s14, s64")
I("s_mov_b32 s15, s65")
I("s_mov_b32 s3, s2")
I("v_lshrrev_b32 v1, 6, v0")
I("v_and_b32 v2, 63, v0")
I("s_lshl_b32 s6, s3, 4")
I("v_lshl_add_u32 v3, v1, 2, s6")
I("v_mul_u32_u24 v3, 896, v3")
I("v_lshl_add_u32 v3, v2, 4, v3")
I("s_mul_i32 s7, s3, 14336")
I("v_lshrrev_b32 v29, 2, v2")
I("v_lshlrev_b32 v29, 10, v29")
I("v_and_b32 v28, 3, v2")
I("v_lshl_add_u32 v29, v28, 8, v29")
I("v_lshl_add_u32 v29, v1, 6, v29")
I("s_mov_b32 s20, 0x3b124925")
I("s_mov_b32 s21, 0x43e00000")
I("s_mov_b32 s22, 0x3727c5ac")
for r in range(8, 24):
    I(f"v_mov_b32 v{r}, 0")
I("s_mov_b64 s[16:17], exec")
I("s_mov_b32 s18, -1")
I("s_mov_b32 s19, 0x00ffffff")
I("s_waitcnt lgkmcnt(0)")
I("s_mov_b64 exec, s[18:19]")
for k in range(4):
    I(f"global_load_dwordx4 v[{8+4*k}:{11+4*k}], v3, s[4:5] offset:{896*k}")
I("s_mov_b64 exec, s[16:17]")
I("s_waitcnt vmcnt(0)")
for k in range(4):
    for j in range(4):
        I(f"v_lshlrev_b32 v{32+8*k+2*j}, 16, v{8+4*k+j}")
        I(f"v_and_b32 v{33+8*k+2*j}, 0xffff0000, v{8+4*k+j}")


def rows(fmt, **kw):
    for k in range(4):
        b = 32 + 8 * k
        I(fmt.format(k=k, s=8 + k, t=12 + k, m=16 + k, u=20 + k, w=64 + k, x=68 + k, sg=24 + k,
                     b0=b, b1=b + 1, b2=b + 2, b3=b + 3, b4=b + 4, b5=b + 5, b6=b + 6, b7=b + 7, **kw))


def dpp4():
    for sh in (1, 2, 4, 8):
        rows("v_add_f32_dpp v{s}, v{s}, v{s} row_shr:%d row_mask:0xf bank_mask:0xf bound_ctrl:0" % sh)
    rows("v_add_f32_dpp v{s}, v{s}, v{s} row_bcast:15 row_mask:0xa bank_mask:0xf")
    rows("v_add_f32_dpp v{s}, v{s}, v{s} row_bcast:31 row_mask:0xc bank_mask:0xf")
    rows("v_readlane_b32 s{sg}, v{s}, 63")


rows("v_add_f32 v{s}, v{b0}, v{b1}")
rows("v_add_f32 v{t}, v{b2}, v{b3}")
rows("v_add_f32 v{m}, v{b4}, v{b5}")
rows("v_add_f32 v{u}, v{b6}, v{b7}")
rows("v_add_f32 v{s}, v{s}, v{t}")
rows("v_add_f32 v{m}, v{m}, v{u}")
rows("v_add_f32 v{s}, v{s}, v{m}")
dpp4()
rows("v_mov_b32 v{t}, s{sg}")
rows("v_mul_f32 v{m}, s20, v{t}")
rows("v_fma_f32 v{u}, -v{m}, s21, v{t}")
rows("v_fma_f32 v{m}, v{u}, s20, v{m}")
rows("v_mov_b32 v{s}, 0")
I("s_mov_b64 exec, s[18:19]")
for j in range(8):
    rows("v_sub_f32 v{t}, v{bj}, v{m}".replace("{bj}", "{b%d}" % j))
    rows("v_fmac_f32 v{s}, v{t}, v{t}")
I("s_mov_b64 exec, s[16:17]")
I("s_nop 1")
dpp4()
rows("v_mov_b32 v{t}, s{sg}")
rows("v_mul_f32 v{u}, s20, v{t}")
rows("v_fma_f32 v{w}, -v{u}, s21, v{t}")
rows("v_fma_f32 v{u}, v{w}, s20, v{u}")
rows("v_cvt_pk_bf16_f32 v{u}, v{u}, v{u}")
rows("v_cvt_pk_bf16_f32 v{m}, v{m}, v{m}")
rows("v_lshlrev_b32 v{u}, 16, v{u}")
rows("v_lshlrev_b32 v{m}, 16, v{m}")
rows("v_add_f32 v{u}, s22, v{u}")
rows("v_cvt_pk_bf16_f32 v{u}, v{u}, v{u}")
rows("v_lshlrev_b32 v{u}, 16, v{u}")
rows("v_sqrt_f32 v{w}, v{u}")
for j in range(8):
    rows("v_sub_f32 v{bj}, v{bj}, v{m}".replace("{bj}", "{b%d}" % j))
rows("v_rcp_f32 v{x}, v{w}")
rows("v_fma_f32 v{t}, -v{w}, v{w}, v{u}")
rows("v_mul_f32 v{x}, 0.5, v{x}")
rows("v_fma_f32 v{w}, v{t}, v{x}, v{w}")
rows("v_cvt_pk_bf16_f32 v{w}, v{w}, v{w}")
rows("v_lshlrev_b32 v{w}, 16, v{w}")
rows("v_rcp_f32 v{x}, v{w}")
for j in range(0, 8, 2):
    rows("v_cvt_pk_bf16_f32 v{t}, v{bj}, v{bk}".replace("{bj}", "{b%d}" % j).replace("{bk}", "{b%d}" % (j + 1)))
    rows("v_lshlrev_b32 v{bj}, 16, v{t}".replace("{bj}", "{b%d}" % j))
    rows("v_and_b32 v{bk}, 0xffff0000, v{t}".replace("{bk}", "{b%d}" % (j + 1)))
rows("v_fma_f32 v{t}, -v{w}, v{x}, 1.0")
rows("v_fma_f32 v{x}, v{t}, v{x}, v{x}")
for j in range(8):
    rows("v_mul_f32 v{t}, v{bj}, v{x}".replace("{bj}", "{b%d}" % j))
    rows("v_fma_f32 v{u}, -v{t}, v{w}, v{bj}".replace("{bj}", "{b%d}" % j))
    rows("v_fma_f32 v{bj}, v{u}, v{x}, v{t}".replace("{bj}", "{b%d}" % j))
for j in range(4):
    for k in range(4):
        b = 32 + 8 * k
        I(f"v_cvt_pk_bf16_f32 v{8+4*k+j}, v{b+2*j}, v{b+2*j+1}")
I("v_lshlrev_b32 v30, 2, v1")
I("v_mul_u32_u24 v30, 896, v30")
I("v_lshl_add_u32 v30, v2, 4, v30")
I("s_mov_b64 exec, s[18:19]")
for k in range(4):
    I(f"ds_write_b128 v29, v[{8+4*k}:{11+4*k}] offset:{16384 + 16*k}")
I("s_mov_b64 exec, s[16:17]")
I("s_waitcnt lgkmcnt(0)")
I("s_barrier")
I("v_lshlrev_b32 v4, 4, v0")
I("v_add_u32 v5, s7, v4")
for q in range(3):
    I(f"ds_read_b128 v[{8+4*q}:{11+4*q}], v4 offset:{16384 + 4096*q}")
I("v_cmp_gt_u32 vcc, 128, v0")
I("s_and_saveexec_b64 s[16:17], vcc")
I(f"ds_read_b128 v[20:23], v4 offset:{16384 + 12288}")
I("v_add_u32 v6, 0x3000, v5")
I("s_waitcnt lgkmcnt(0)")
I("global_store_dwordx4 v6, v[20:23], s[14:15] sc1")
I("s_mov_b64 exec, s[16:17]")
I("v_add_u32 v6, 0x1000, v5")
I("v_add_u32 v7, 0x2000, v5")
I("s_waitcnt lgkmcnt(0)")
I("global_store_dwordx4 v5, v[8:11], s[14:15] sc1")
I("global_store_dwordx4 v6, v[12:15], s[14:15] sc1")
I("global_store_dwordx4 v7, v[16:19], s[14:15] sc1")
I("s_lshl_b32 s74, s3, 2")
publish(74)
I("s_branch A_g1")
L("A_wtonly")
I("s_load_dwordx4 s[4:7], s[0:1], 64")
I("s_sub_u32 s3, s2, 128")
I("s_mov_b32 s75, 96")
I("s_cmp_lt_u32 s3, 4")
I("s_cselect_b32 s75, 192, s75")


def wt3(which):
    if which == 1:
        sst, dtile, magic, nk, sp, wsoff = 3584, 14336, 9363, 7, 4, WS_W1T
    else:
        sst, dtile, magic, nk, sp, wsoff = 896, 57344, 2341, 28, 6, WS_W2T
    I(f"s_add_u32 s14, s64, {wsoff}")
    I("s_addc_u32 s15, s65, 0")
    I("v_lshrrev_b32 v1, 3, v0")
    I("v_and_b32 v2, 7, v0")
    I(f"v_mul_u32_u24 v3, {sst}, v1")
    I("v_lshl_add_u32 v3, v2, 4, v3")
    I("v_lshlrev_b32 v5, 7, v1")
    I("v_lshl_add_u32 v5, v2, 4, v5")
    for j in range(3):
        sj = 80 + 4 * j
        if j == 0:
            I(f"s_mov_b32 s{sj}, s3")
        elif j == 1:
            I(f"s_add_u32 s{sj}, s3, 96")
        else:
            I(f"s_add_u32 s{sj}, s3, s75")
        I(f"s_mul_i32 s{sj+2}, s{sj}, {magic}")
        I(f"s_lshr_b32 s{sj+2}, s{sj+2}, 16")
        I(f"s_mul_i32 s{sj+1}, s{sj+2}, {nk}")
        I(f"s_sub_u32 s{sj+1}, s{sj}, s{sj+1}")
        if which == 1:
            I(f"s_and_b32 s{sj+3}, s{sj+2}, 1")
            I(f"s_mul_i32 s{sj+3}, s{sj+3}, 7")
            I(f"s_add_u32 s{sj+3}, s{sj+3}, s{sj+1}")
            I(f"s_lshl_b32 s{sj+3}, s{sj+3}, 2")
            I(f"s_lshr_b32 s12, s{sj+2}, 1")
            I("s_lshl_b32 s12, s12, 6")
            I(f"s_add_u32 s{sj+3}, s{sj+3}, s12")
            I(f"s_add_u32 s{sj+3}, s{sj+3}, {W1F}")
        else:
            I(f"s_lshl_b32 s{sj+3}, s{sj+2}, 7")
            I(f"s_lshl_b32 s12, s{sj+1}, 2")
            I(f"s_add_u32 s{sj+3}, s{sj+3}, s12")
            I(f"s_add_u32 s{sj+3}, s{sj+3}, {W2F}")
    I("s_waitcnt lgkmcnt(0)")
    for j in range(3):
        sj = 80 + 4 * j
        I(f"s_mul_i32 s12, s{sj+1}, {64*sst}")
        I(f"s_lshl_b32 s13, s{sj+2}, 7")
        I("s_add_u32 s12, s12, s13")
        I("v_add_u32 v4, s12, v3")
        I(f"v_add_u32 v6, {32*sst}, v4")
        I(f"global_load_dwordx4 v[{8+8*j}:{11+8*j}], v4, s[{sp}:{sp+1}]")
        I(f"global_load_dwordx4 v[{12+8*j}:{15+8*j}], v6, s[{sp}:{sp+1}]")
    for j in range(3):
        I(f"s_waitcnt vmcnt({4-2*j})")
        I(f"ds_write_b128 v5, v[{8+8*j}:{11+8*j}] offset:{8192*j}")
        I(f"ds_write_b128 v5, v[{12+8*j}:{15+8*j}] offset:{8192*j+4096}")
    I("s_waitcnt lgkmcnt(0)")
    I("s_barrier")
    I("v_and_b32 v1, 15, v0")
    I("v_bfe_u32 v2, v0, 4, 2")
    I("v_lshrrev_b32 v3, 6, v0")
    if which == 1:
        I("v_lshrrev_b32 v4, 2, v1")
        I("v_lshlrev_b32 v4, 4, v4")
        I("v_lshl_add_u32 v4, v3, 2, v4")
        I("v_and_b32 v6, 3, v1")
        I("v_add_u32 v4, v4, v6")
    else:
        I("v_lshl_add_u32 v4, v3, 4, v1")
    I("v_lshlrev_b32 v5, 10, v2")
    I("v_lshl_add_u32 v5, v4, 1, v5")
    I(f"v_mul_u32_u24 v3, {dtile}, v3")
    I("v_and_b32 v4, 63, v0")
    I("v_lshl_add_u32 v3, v4, 4, v3")
    for j in range(3):
        sj = 80 + 4 * j
        for c in range(2):
            for e in range(8):
                I(f"ds_read_u16 v{40 + 8*c + e}, v5 offset:{8192*j + 4096*c + 128*e}")
            if c == 0:
                I("s_waitcnt lgkmcnt(0)")
        I(f"s_mul_i32 s12, s{sj+2}, {4*dtile}")
        I(f"s_lshl_b32 s13, s{sj+1}, 11")
        I("s_add_u32 s12, s12, s13")
        I("v_add_u32 v6, s12, v3")
        I("s_waitcnt lgkmcnt(0)")
        for t in range(8):
            I(f"v_lshl_or_b32 v{8+8*j+t}, v{41+2*t}, 16, v{40+2*t}")
        I(f"global_store_dwordx4 v6, v[{8+8*j}:{11+8*j}], s[14:15] sc1")
        I(f"global_store_dwordx4 v6, v[{12+8*j}:{15+8*j}], s[14:15] offset:1024 sc1")
    publish(83, 87, 91)


wt3(1)
wt3(2)

L("A_g1")
MARK(0)
I(f"s_setprio {os.environ.get('PRIO_G', '2')}")
I("v_and_b32 v1, 15, v0")
I("v_bfe_u32 v2, v0, 4, 2")
I("v_lshrrev_b32 v3, 6, v0")
I("s_and_b32 s10, s2, 7")
I("s_lshr_b32 s3, s2, 3")
I("s_mul_i32 s8, s3, 9363")
I("s_lshr_b32 s8, s8, 16")
I("s_mul_i32 s9, s8, 7")
I("s_sub_u32 s9, s3, s9")
I("s_and_b32 s11, s10, 1")
I("s_mul_i32 s11, s11, 7")
I("s_add_u32 s9, s9, s11")
I("s_lshr_b32 s10, s10, 1")
I("s_lshl_b32 s10, s10, 2")
I("s_add_u32 s8, s8, s10")
I("s_lshl_b32 s76, s8, 5")
I("s_lshl_b32 s77, s9, 6")
I(f"s_add_u32 s77, s77, {W1F}")
I("s_lshl_b32 s74, s8, 6")
I("s_lshl_b32 s10, s9, 2")
I("s_add_u32 s74, s74, s10")
I(f"s_add_u32 s74, s74, {HF}")
wait_flags([(77, 14)])
I(f"s_add_u32 s4, s64, {WS_W1T}")
I("s_addc_u32 s5, s65, 0")
I(f"s_add_u32 s6, s64, {WS_XN}")
I("s_addc_u32 s7, s65, 0")
I("s_lshl_b32 s9, s9, 7")
I("s_lshl_b32 s8, s8, 7")
I("v_and_b32 v4, 1, v3")
I("v_lshl_add_u32 v4, v4, 6, s9")
I("v_lshrrev_b32 v5, 1, v3")
I("v_lshl_add_u32 v5, v5, 6, s8")
I("v_and_b32 v7, 63, v0")
I("v_lshlrev_b32 v7, 4, v7")
I("s_mul_i32 s10, s9, 896")
I("s_mul_i32 s11, s8, 896")
I("v_mul_u32_u24 v6, 28672, v3")
I("v_add_u32 v6, v6, v7")
I("v_add_u32 v8, s10, v6")
I("v_add_u32 v9, 14336, v8")
I("v_add_u32 v10, s11, v6")
I("v_add_u32 v11, 14336, v10")
I("s_lshl_b32 s12, s69, 11")
I("v_and_b32 v12, 1, v3")
I("v_lshl_add_u32 v12, v12, 12, v7")
I("v_lshrrev_b32 v13, 1, v3")
I("v_lshl_add_u32 v13, v13, 12, v7")
I("v_add_u32 v13, 0x2000, v13")
G_ACC = 16
G_FR = 80
issued = []


def g1_dma(st, part):
    slot = (st % 4) * 16384
    for (nm, va, sb, off) in (("A", 8, 4, 0), ("A", 9, 4, 1024), ("B", 10, 6, 8192), ("B", 11, 6, 9216)):
        if nm not in part:
            continue
        if st and off in (0, 8192):
            I(f"s_add_u32 s{sb}, s{sb}, 1024")
            I(f"s_addc_u32 s{sb+1}, s{sb+1}, 0")
        I(f"s_add_u32 m0, s12, {slot + off}")
        I("s_nop 0")
        I(f"global_load_lds_dwordx4 v{va}, s[{sb}:{sb+1}] sc1")
        issued.append(st)


def g1_wait(st):
    last = max(i for i, x in enumerate(issued) if x == st)
    return len(issued) - 1 - last


def g1_reads(st):
    slot = (st % 4) * 16384
    fb = G_FR + 32 * (st & 1)
    for j in range(4):
        I(f"ds_read_b128 v[{fb+4*j}:{fb+4*j+3}], v12 offset:{slot + 1024*j}")
    for j in range(4):
        I(f"ds_read_b128 v[{fb+16+4*j}:{fb+16+4*j+3}], v13 offset:{slot + 1024*j}")


NS1 = 14
for st in range(4):
    g1_dma(st, "A")
wait_flags([(76, 8)])
MARK(1)
for st in range(4):
    g1_dma(st, "B")
I(f"s_waitcnt vmcnt({g1_wait(0)})")
I("s_barrier")
g1_reads(0)
for st in range(NS1):
    if st + 1 < NS1:
        I(f"s_waitcnt vmcnt({g1_wait(st + 1)}) lgkmcnt(0)")
        I("s_barrier")
        if st + 4 < NS1:
            g1_dma(st + 4, "AB")
        g1_reads(st + 1)
    else:
        I("s_waitcnt lgkmcnt(0)")
    fb = G_FR + 32 * (st & 1)
    for a_ in range(4):
        for b_ in range(4):
            c = G_ACC + 16 * a_ + 4 * b_
            src = "0" if st == 0 else f"v[{c}:{c+3}]"
            I(f"v_mfma_f32_16x16x32_bf16 v[{c}:{c+3}], v[{fb+4*a_}:{fb+4*a_+3}], v[{fb+16+4*b_}:{fb+16+4*b_+3}], {src}")
I(f"s_add_u32 s4, s64, {WS_H}")
I("s_addc_u32 s5, s65, 0")
I("v_mul_u32_u24 v6, 3584, v5")
I("v_lshl_add_u32 v6, v4, 5, v6")
I("v_lshrrev_b32 v7, 1, v2")
I("v_lshl_add_u32 v6, v7, 10, v6")
I("v_and_b32 v7, 1, v2")
I("v_lshl_add_u32 v6, v7, 9, v6")
I("v_lshl_add_u32 v6, v1, 4, v6")
I("s_nop 4")
for b in range(4):
    for a in range(4):
        c = G_ACC + 16 * a + 4 * b
        for r in range(4):
            I(f"v_max_f32 v{c+r}, 0, v{c+r}")
        I(f"v_cvt_pk_bf16_f32 v{80+8*b+2*a}, v{c}, v{c+1}")
        I(f"v_cvt_pk_bf16_f32 v{81+8*b+2*a}, v{c+2}, v{c+3}")
    if b > 0:
        I(f"v_add_u32 v6, {57344}, v6")
    I(f"global_store_dwordx4 v6, v[{80+8*b}:{83+8*b}], s[4:5] sc1")
    I(f"global_store_dwordx4 v6, v[{84+8*b}:{87+8*b}], s[4:5] offset:256 sc1")
publish(74)
MARK(2)

I(f"s_setprio {os.environ.get('PRIO_G2', '0')}")
I("s_load_dwordx2 s[16:17], s[0:1], 0")
I("s_load_dwordx2 s[18:19], s[0:1], 48")
I("s_load_dwordx2 s[20:21], s[0:1], 80")
I("s_mov_b32 s14, s64")
I("s_mov_b32 s15, s65")
I("v_and_b32 v4, 63, v0")
I("s_and_b32 s10, s2, 7")
I("s_lshr_b32 s3, s2, 3")
I("s_mul_i32 s8, s3, 9363")
I("s_lshr_b32 s8, s8, 16")
I("s_mul_i32 s9, s8, 7")
I("s_sub_u32 s9, s3, s9")
I("s_lshl_b32 s10, s10, 2")
I("s_add_u32 s8, s8, s10")
I("s_lshr_b32 s76, s8, 1")
I("s_lshl_b32 s76, s76, 6")
I(f"s_add_u32 s76, s76, {HF}")
I("s_lshl_b32 s77, s9, 7")
I(f"s_add_u32 s78, s77, {YF}")
I(f"s_add_u32 s77, s77, {W2F}")
I("s_lshl_b32 s9, s9, 6")
I("s_lshl_b32 s8, s8, 6")
wait_flags([(77, 28), (76, 14)])
MARK(3)
I("s_waitcnt lgkmcnt(0)")
I(f"s_add_u32 s4, s64, {WS_W2T}")
I("s_addc_u32 s5, s65, 0")
I(f"s_add_u32 s6, s64, {WS_H}")
I("s_addc_u32 s7, s65, 0")
I(f"s_add_u32 s10, s64, {WS_YT}")
I("s_addc_u32 s11, s65, 0")
EX, EXN, EY, EDK = 232, 240, 216, 208


def fin_late():
    I("v_lshrrev_b32 v249, 2, v4")
    I("v_lshl_add_u32 v249, v3, 4, v249")
    I("v_add_u32 v250, s8, v249")
    I("v_and_b32 v251, 3, v4")
    I("v_mul_u32_u24 v5, 896, v250")
    I("s_lshl_b32 s12, s9, 1")
    I("v_lshl_add_u32 v6, v251, 5, s12")
    I("v_add_u32 v5, v5, v6")
    I(f"global_load_dwordx4 v[{EX}:{EX+3}], v5, s[16:17]")
    I(f"global_load_dwordx4 v[{EX+4}:{EX+7}], v5, s[16:17] offset:16")
    I("v_lshrrev_b32 v248, 4, v250")
    I("v_mul_u32_u24 v248, 14336, v248")
    I("v_and_b32 v7, 15, v250")
    I("v_lshl_add_u32 v248, v7, 4, v248")
    I("v_lshrrev_b32 v7, 6, v6")
    I("v_lshl_add_u32 v248, v7, 10, v248")
    I("v_bfe_u32 v7, v6, 4, 2")
    I("v_lshl_add_u32 v248, v7, 8, v248")
    I(f"global_load_dwordx4 v[{EXN}:{EXN+3}], v248, s[14:15] sc1")
    I(f"global_load_dwordx4 v[{EXN+4}:{EXN+7}], v248, s[14:15] offset:256 sc1")
    I(f"global_load_dwordx4 v[{EDK}:{EDK+3}], v6, s[18:19]")
    I(f"global_load_dwordx4 v[{EDK+4}:{EDK+7}], v6, s[18:19] offset:16")
    I("v_lshlrev_b32 v7, 11, v6")
    I("v_lshl_add_u32 v252, v250, 1, v7")


def gemm_core(sa, sb, va, vb, acc0, buf0, ring, late, nlate):
    NS = 14
    PF = ring - 1

    def loads(s):
        bb = buf0 + 32 * (s % ring)
        off = (s & 3) * 1024
        if s and (s & 3) == 0:
            I(f"s_add_u32 s{sa}, s{sa}, 4096")
            I(f"s_addc_u32 s{sa+1}, s{sa+1}, 0")
            I(f"s_add_u32 s{sb}, s{sb}, 4096")
            I(f"s_addc_u32 s{sb+1}, s{sb+1}, 0")
        for j in range(4):
            I(f"global_load_dwordx4 v[{bb+4*j}:{bb+4*j+3}], v{va+j}, s[{sa}:{sa+1}] offset:{off} sc1")
        for j in range(4):
            I(f"global_load_dwordx4 v[{bb+16+4*j}:{bb+16+4*j+3}], v{vb+j}, s[{sb}:{sb+1}] offset:{off} sc1")

    for s in range(PF):
        loads(s)
    for s in range(NS):
        if s + PF < NS:
            loads(s + PF)
            if s + PF == NS - 1:
                late()
                I(f"s_waitcnt vmcnt({8*PF + nlate})")
            else:
                I(f"s_waitcnt vmcnt({8*PF})")
        else:
            I(f"s_waitcnt vmcnt({8*(NS-1-s) + nlate})")
        bb = buf0 + 32 * (s % ring)
        for a in range(4):
            for b in range(4):
                c = acc0 + 16 * a + 4 * b
                src = "0" if s == 0 else f"v[{c}:{c+3}]"
                I(f"v_mfma_f32_16x16x32_bf16 v[{c}:{c+3}], v[{bb+4*a}:{bb+4*a+3}], v[{bb+16+4*b}:{bb+16+4*b+3}], {src}")


I("v_mul_u32_u24 v7, 14336, v3")
I("v_lshl_add_u32 v7, v4, 4, v7")
I("s_mul_i32 s12, s9, 3584")
I("v_add_u32 v8, s12, v7")
for j in range(1, 4):
    I(f"v_add_u32 v{8+j}, {57344*j}, v8")
I("s_mul_i32 s12, s8, 3584")
I("v_add_u32 v12, s12, v7")
for j in range(1, 4):
    I(f"v_add_u32 v{12+j}, {57344*j}, v12")
F_ACC = 16
F_BUF = 80
gemm_core(4, 6, 8, 12, F_ACC, F_BUF, 4, fin_late, 6)
MARK(4)
I("v_lshl_add_u32 v6, v3, 6, v1")
I("v_mul_u32_u24 v6, 272, v6")
I("v_lshl_add_u32 v6, v2, 4, v6")
I("s_nop 4")
for a_ in range(4):
    for b_ in range(4):
        c = F_ACC + 16 * a_ + 4 * b_
        I(f"ds_write_b128 v6, v[{c}:{c+3}] offset:{16*b_*272 + 64*a_}")
I("s_waitcnt lgkmcnt(0)")
wait_flags([(78, 32)])
MARK(5)
for dd in range(16):
    if dd:
        I("v_add_u32 v252, 0x1000, v252")
    I(f"global_load_ushort v{EY+dd}, v252, s[10:11] sc1")
I("v_mul_u32_u24 v6, 272, v249")
I("v_lshl_add_u32 v6, v251, 6, v6")
for p in range(4):
    for j in range(4):
        I(f"ds_read_b128 v[{80+16*p+4*j}:{83+16*p+4*j}], v6 offset:{p*64*272 + 16*j}")
I("s_mov_b32 s22, 0xbfb8aa3b")
I("s_waitcnt vmcnt(16) lgkmcnt(0)")


def bfr(r):
    return [f"v_cvt_pk_bf16_f32 v{r}, v{r}, v{r}", f"v_lshlrev_b32 v{r}, 16, v{r}"]


def epi1(dd):
    o = 80 + dd
    t1, t2, t3 = 144 + dd, 160 + dd, 176 + dd
    h = dd & 1

    def unp(dst, reg):
        if h:
            return f"v_and_b32 v{dst}, 0xffff0000, v{reg + dd//2}"
        return f"v_lshlrev_b32 v{dst}, 16, v{reg + dd//2}"
    return [f"v_add_f32 v{o}, v{o}, v{o+16}",
            f"v_add_f32 v{o+32}, v{o+32}, v{o+48}",
            unp(t2, EXN), unp(t3, EDK),
            f"v_add_f32 v{o}, v{o}, v{o+32}",
            f"v_mul_f32 v{t2}, v{t2}, v{t3}"] + bfr(o) + bfr(t2) + [
            f"v_mul_f32 v{t1}, s22, v{o}",
            unp(t3, EX),
            f"v_exp_f32 v{t1}, v{t1}",
            "s_nop 0",
            f"v_add_f32 v{t1}, 1.0, v{t1}",
            f"v_rcp_f32 v{t1}, v{t1}",
            "s_nop 0",
            f"v_mul_f32 v{o}, v{o}, v{t1}"] + bfr(o)


def epi2(dd):
    o = 80 + dd
    t1, t2, t3 = 144 + dd, 160 + dd, 176 + dd
    return [f"v_lshlrev_b32 v{t1}, 16, v{EY+dd}",
            f"v_add_f32 v{t2}, v{t2}, v{t1}"] + bfr(t2) + [
            f"v_mul_f32 v{o}, v{o}, v{t2}"] + bfr(o) + [
            f"v_add_f32 v{o}, v{o}, v{t3}"]


for g in range(0, 16, 4):
    interleave([epi1(dd) for dd in range(g, g + 4)])
I("s_waitcnt vmcnt(0)")
for g in range(0, 16, 4):
    interleave([epi2(dd) for dd in range(g, g + 4)])
for j in range(8):
    I(f"v_cvt_pk_bf16_f32 v{16+j}, v{80+2*j}, v{81+2*j}")
I("global_store_dwordx4 v5, v[16:19], s[20:21]")
I("global_store_dwordx4 v5, v[20:23], s[20:21] offset:16")
I("s_endpgm")

L("B_start")
I(f"s_setprio {os.environ.get('PRIO_B', '1')}")
I(f"s_sub_u32 s2, s2, {NA}")
KSTG = 35072
UB = 2 * KR_STRIDE
I("s_load_dwordx4 s[4:7], s[0:1], 8")
I("s_load_dwordx4 s[8:11], s[0:1], 24")
I("s_load_dwordx2 s[12:13], s[0:1], 40")
I("s_lshl_b32 s3, s2, 10")
I("v_lshl_add_u32 v1, v0, 1, s3")
I("s_lshl_b32 s16, s2, 2")
I("v_mov_b32 v7, s16")
I("s_mov_b32 s20, 0x3fb8aa3b")
I("s_mov_b32 s21, 0x32a57060")
I("s_mov_b32 s22, 0x3f317218")
I("s_mov_b32 s23, 0x3e22f983")
I("s_mov_b32 s24, 0x31dc9c88")
I("s_waitcnt lgkmcnt(0)")
for ch in range(2):
    rb = 140 + 5 * ch
    I(f"global_load_ushort v{rb}, v1, s[4:5] offset:{512*ch}")
    I(f"global_load_ushort v{rb+1}, v1, s[6:7] offset:{512*ch}")
    I(f"global_load_ushort v{rb+2}, v1, s[8:9] offset:{512*ch}")
    I(f"global_load_ushort v{rb+3}, v1, s[10:11] offset:{512*ch}")
    I(f"global_load_ushort v{rb+4}, v7, s[12:13] offset:{2*ch}")
I("s_mov_b32 s74, 0")
I("v_mov_b32 v60, 0x80")
for g in range(2):
    es = [4 * g + k for k in range(4)]
    A_, B_, C_, D_, F_ = 10, 14, 48, 52, 56

    def col(fmt):
        for k, e in enumerate(es):
            I(fmt.format(a=A_ + k, b=B_ + k, c=C_ + k, d=D_ + k, f=F_ + k, e=e, o=160 + e))
    col("v_lshl_add_u32 v{a}, v0, 3, {e}")
    col("v_cvt_f32_u32 v{a}, v{a}")
    col("v_cvt_pk_bf16_f32 v{a}, v{a}, v{a}")
    col("v_bfe_u32 v{b}, v{a}, 7, 8")
    col("v_lshlrev_b32 v{a}, 16, v{a}")
    col("v_subrev_u32 v{b}, 134, v{b}")
    col("v_cvt_u32_f32 v{a}, v{a}")
    col("v_med3_i32 v{b}, v{b}, 0, 3")
    col("v_lshlrev_b32 v{c}, v{b}, v60")
    col("v_sub_u32 v{f}, 3, v{b}")
    col("v_and_b32 v{c}, 0xffffff00, v{c}")
    col("v_sub_u32 v{a}, v{a}, v{c}")
    col("v_and_b32 v{c}, 7, v{a}")
    col("v_lshrrev_b32 v{d}, 7, v{a}")
    col("v_lshrrev_b32 v{c}, v{b}, v{c}")
    col("v_lshlrev_b32 v{d}, v{f}, v{d}")
    col("v_bfe_u32 v{a}, v{a}, 3, 4")
    col("v_add_u32 v{c}, v{c}, v{d}")
    col("v_min_u32 v{d}, 1, v{b}")
    col("v_lshl_add_u32 v{c}, v{c}, 4, v{a}")
    col("v_add_u32 v{d}, v{d}, v{b}")
    col("v_lshl_add_u32 v{c}, v{d}, 7, v{c}")
    col("v_lshlrev_b32 v{o}, 2, v{c}")
I("s_waitcnt vmcnt(0)")
L("B_kloop")
KMARK(0)
for k, r in enumerate((2, 3, 4, 5, 6)):
    I(f"v_lshlrev_b32 v{r}, 16, v{140+k}")


def exp_acc(dst, x, t0, t1):
    I(f"v_mul_f32 v{t0}, s20, v{x}")
    I(f"v_fma_f32 v{t1}, v{x}, s20, -v{t0}")
    I(f"v_fma_f32 v{t1}, v{x}, s21, v{t1}")
    I(f"v_exp_f32 v{dst}, v{t0}")
    I(f"v_mul_f32 v{t1}, s22, v{t1}")
    I(f"v_fma_f32 v{dst}, v{dst}, v{t1}, v{dst}")


exp_acc(8, 6, 10, 11)
bf16r(8, 8)
exp_acc(9, 2, 10, 11)
bf16r(9, 9)
I("v_mul_f32 v9, v9, v8")
I("v_mul_f32 v12, s20, v9")
I("v_sub_f32 v12, 0, v12")
I("v_mul_f32 v3, v3, v8")
I("v_mul_f32 v13, s23, v3")
I("v_fma_f32 v14, v3, s23, -v13")
I("v_fma_f32 v14, v3, s24, v14")
I("v_rndne_f32 v10, v13")
I("v_sub_f32 v10, v13, v10")
I("v_and_b32 v13, 0xffffff00, v10")
I("v_sub_f32 v10, v10, v13")
I("v_add_f32 v14, v10, v14")
I("v_mul_f32 v15, v4, v8")
I("v_add_f32 v15, v15, v15")
I("v_mul_f32 v16, v5, v8")
I("v_add_f32 v16, v16, v16")
WREG = 8704
LOO = 4352
I("v_and_b32 v2, 15, v0")
I("v_bfe_u32 v3, v0, 4, 2")
I("v_lshrrev_b32 v6, 6, v0")
I(f"v_mul_u32_u24 v6, {WREG}, v6")
I(f"v_add_u32 v6, {KSTG}, v6")
I("v_and_b32 v4, 63, v0")
I("v_lshl_add_u32 v4, v4, 2, v6")
I("v_mul_u32_u24 v5, 272, v2")
I("v_lshl_add_u32 v5, v3, 4, v5")
I("v_add_u32 v5, v5, v6")


def cexp_ops(p, d, t):
    return [f"v_mul_f32 v{t}, {p}, v12",
            f"v_mul_f32 v{t+1}, {p}, v13",
            f"v_exp_f32 v{t}, v{t}",
            f"v_fract_f32 v{t+1}, v{t+1}",
            f"v_mov_b32 v{d}, {p}",
            f"v_fma_f32 v{t+1}, v{d}, v14, v{t+1}",
            f"v_cos_f32 v{d}, v{t+1}",
            f"v_sin_f32 v{d+1}, v{t+1}",
            "s_nop 0",
            f"v_mul_f32 v{d}, v{d}, v{t}",
            f"v_mul_f32 v{d+1}, v{d+1}, v{t}"]


def cmul_ops(d, a, b):
    return [f"v_mul_f32 v{d}, v{a}, v{b}",
            f"v_mul_f32 v{d+1}, v{a}, v{b+1}",
            f"v_fma_f32 v{d}, -v{a+1}, v{b+1}, v{d}",
            f"v_fma_f32 v{d+1}, v{a+1}, v{b}, v{d+1}"]


def split_ops(v, row, t, neg=False):
    n = "-" if neg else ""
    return [f"v_cvt_pk_bf16_f32 v{t}, v{v}, {n}v{v+1}",
            f"v_lshlrev_b32 v{t+1}, 16, v{t}",
            f"v_and_b32 v{t+2}, 0xffff0000, v{t}",
            f"v_sub_f32 v{t+1}, v{v}, v{t+1}",
            f"v_sub_f32 v{t+2}, {n}v{v+1}, v{t+2}",
            f"ds_write_b32 v4, v{t} offset:{row*272}",
            f"v_cvt_pk_bf16_f32 v{t+1}, v{t+1}, v{t+2}",
            f"ds_write_b32 v4, v{t+1} offset:{LOO + row*272}"]


ZQ = lambda q: 20 + 2 * q
EJ = lambda j: 40 + 2 * j
Z128 = 18
BH, BL = 72, 88
AF = 40
ACC = 124
GT = [104, 106, 108, 110]
ST = [112, 115, 118, 121]
KMARK(1)
interleave([cexp_ops("1.0", ZQ(1), 104), cexp_ops("0x41000000", EJ(1), 106), cexp_ops("0x43000000", Z128, 108)])
I("v_mov_b32 v40, 1.0")
I("v_mov_b32 v41, 0")
interleave([cmul_ops(EJ(2), EJ(1), EJ(1)), cmul_ops(ZQ(2), ZQ(1), ZQ(1)), split_ops(40, 0, ST[0], True), split_ops(EJ(1), 1, ST[1], True)])
interleave([cmul_ops(EJ(3), EJ(2), EJ(1)), cmul_ops(EJ(4), EJ(2), EJ(2)), cmul_ops(ZQ(3), ZQ(2), ZQ(1)), cmul_ops(ZQ(4), ZQ(2), ZQ(2)), split_ops(EJ(2), 2, ST[0], True)])
interleave([cmul_ops(EJ(5), EJ(4), EJ(1)), cmul_ops(EJ(6), EJ(3), EJ(3)), cmul_ops(EJ(7), EJ(4), EJ(3)), cmul_ops(EJ(8), EJ(4), EJ(4)),
            split_ops(EJ(3), 3, ST[0], True), split_ops(EJ(4), 4, ST[1], True)])
interleave([cmul_ops(ZQ(5), ZQ(4), ZQ(1)), cmul_ops(ZQ(6), ZQ(3), ZQ(3)), cmul_ops(ZQ(7), ZQ(4), ZQ(3)),
            cmul_ops(EJ(9), EJ(8), EJ(1)), cmul_ops(EJ(10), EJ(8), EJ(2)), cmul_ops(EJ(11), EJ(8), EJ(3)),
            split_ops(EJ(5), 5, ST[0], True), split_ops(EJ(6), 6, ST[1], True)])
interleave([cmul_ops(EJ(12), EJ(8), EJ(4)), cmul_ops(EJ(13), EJ(8), EJ(5)), cmul_ops(EJ(14), EJ(8), EJ(6)), cmul_ops(EJ(15), EJ(8), EJ(7)),
            split_ops(EJ(7), 7, ST[0], True), split_ops(EJ(8), 8, ST[1], True), split_ops(EJ(9), 9, ST[2], True), split_ops(EJ(10), 10, ST[3], True)])
interleave([split_ops(EJ(11 + k), 11 + k, ST[k], True) for k in range(4)])
interleave([split_ops(EJ(15), 15, ST[0], True), cmul_ops(38, 15, Z128)])
I("v_mov_b32 v36, v15")
I("v_mov_b32 v37, v16")
I("s_waitcnt lgkmcnt(0)")
for sidx in range(4):
    I(f"ds_read_b128 v[{BH+4*sidx}:{BH+4*sidx+3}], v5 offset:{64*sidx}")
    I(f"ds_read_b128 v[{BL+4*sidx}:{BL+4*sidx+3}], v5 offset:{LOO+64*sidx}")
KMARK(2)
CR_ = [36, 38, 6, 8, 10]
CK = lambda k: CR_[k % 5] if k < 8 else 170 + 2 * (k - 8)


def rowval(k, q, row, gi):
    if q == 0:
        return split_ops(CK(k), row, ST[gi])
    return cmul_ops(GT[gi], CK(k), ZQ(q)) + split_ops(GT[gi], row, ST[gi])


def tile_mfma(t):
    I("s_waitcnt lgkmcnt(0)")
    for sidx in range(4):
        I(f"ds_read_b128 v[{AF+4*sidx}:{AF+4*sidx+3}], v5 offset:{64*sidx}")
        I(f"ds_read_b128 v[{AF+16+4*sidx}:{AF+16+4*sidx+3}], v5 offset:{LOO+64*sidx}")
    acc = ACC + 4 * t
    out = []
    for sidx in range(4):
        ah, al = AF + 4 * sidx, AF + 16 + 4 * sidx
        bh, bl = BH + 4 * sidx, BL + 4 * sidx
        for (x, y) in ((ah, bh), (al, bh), (ah, bl)):
            src = "0" if (sidx == 0 and (x, y) == (ah, bh)) else f"v[{acc}:{acc+3}]"
            out.append(f"v_mfma_f32_16x16x32_bf16 v[{acc}:{acc+3}], v[{x}:{x+3}], v[{y}:{y+3}], {src}")
    return out


def run_rows(rows_, extra):
    for g in range(0, len(rows_), 4):
        ch = [rowval(k, q, row, gi) for gi, (k, q, row) in enumerate(rows_[g:g + 4])]
        if extra:
            ch.append(extra.pop(0))
        interleave(ch)
    for e in extra:
        interleave([e])


run_rows([(kap, q, q + 8 * kap) for kap in (0, 1) for q in range(8)],
         [cmul_ops(CK(k), CK(k - 1), Z128) for k in (2, 3, 4)])
mf = tile_mfma(0)
I("s_waitcnt lgkmcnt(0)")
KMARK(3)
r1 = [(2 + kp, q, q // 2 + 4 * kp) for kp in (0, 1) for q in (0, 2, 4, 6)]
r1b = [(4 + kp, q, 8 + q // 4 + 2 * kp) for kp in range(4) for q in (0, 4)]
interleave([mf[:6]] + [rowval(k, q, row, gi) for gi, (k, q, row) in enumerate(r1[:4])])
interleave([mf[6:]] + [rowval(k, q, row, gi) for gi, (k, q, row) in enumerate(r1[4:])] + [cmul_ops(CK(5), CK(4), Z128)])
interleave([rowval(k, q, row, gi) for gi, (k, q, row) in enumerate(r1b[:4])] + [cmul_ops(CK(6), CK(5), Z128) + cmul_ops(CK(7), CK(6), Z128)])
interleave([rowval(k, q, row, gi) for gi, (k, q, row) in enumerate(r1b[4:])] + [sum([cmul_ops(CK(k), CK(k - 1), Z128) for k in (8, 9, 10)], [])])
mf = tile_mfma(1)
I("s_waitcnt lgkmcnt(0)")
KMARK(4)
interleave([split_ops(CK(8 + r), r, ST[r]) for r in range(3)] + [sum([cmul_ops(CK(k), CK(k - 1), Z128) for k in (11, 12, 13)], []), mf[:6]])
interleave([split_ops(CK(11 + r), 3 + r, ST[r]) for r in range(3)] + [sum([cmul_ops(CK(k), CK(k - 1), Z128) for k in (14, 15, 16)], []), mf[6:]])
interleave([split_ops(CK(14 + r), 6 + r, ST[r]) for r in range(3)])
mf = tile_mfma(2)
I("s_waitcnt lgkmcnt(0)")
for m in mf:
    I(m)
I("s_nop 7")
I("s_nop 1")
I("v_lshrrev_b32 v19, 6, v0")
I(f"v_mul_u32_u24 v19, {WREG}, v19")
I("v_lshl_add_u32 v19, v3, 8, v19")
I("v_lshl_add_u32 v19, v2, 2, v19")
for t in range(3):
    for r in range(4):
        I(f"ds_write_b32 v19, v{ACC+4*t+r} offset:{KSTG + t*1024 + r*64}")
I("s_waitcnt lgkmcnt(0)")
I("s_barrier")
KMARK(5)
for e in range(8):
    for w in range(4):
        I(f"ds_read_b32 v{16 + 4*e + w}, v{160+e} offset:{KSTG + w*8704}")
    if e == 3:
        I("s_waitcnt lgkmcnt(0)")
I("s_waitcnt lgkmcnt(0)")
for e in range(8):
    b = 16 + 4 * e
    I(f"v_add_f32 v{b}, v{b}, v{b+1}")
    I(f"v_add_f32 v{b+2}, v{b+2}, v{b+3}")
    I(f"v_add_f32 v{b}, v{b}, v{b+2}")
for j in range(4):
    ka, kb = 16 + 4 * (7 - 2 * j), 16 + 4 * (6 - 2 * j)
    I(f"v_cvt_pk_bf16_f32 v{48+j}, v{ka}, v{kb}")
    I(f"v_lshlrev_b32 v10, 16, v{48+j}")
    I(f"v_and_b32 v11, 0xffff0000, v{48+j}")
    I(f"v_sub_f32 v10, v{ka}, v10")
    I(f"v_sub_f32 v11, v{kb}, v11")
    I(f"v_cvt_pk_bf16_f32 v{52+j}, v10, v11")
I("v_lshlrev_b32 v10, 4, v0")
I("v_sub_u32 v10, 4080, v10")
I("v_add_u32 v10, s74, v10")
I("ds_write_b128 v10, v[48:51]")
I("ds_write_b128 v10, v[52:55] offset:4608")
I("v_cmp_gt_u32 vcc, 64, v0")
I("s_and_saveexec_b64 s[18:19], vcc")
I("v_and_b32 v10, 31, v0")
I("v_lshlrev_b32 v10, 4, v10")
I("v_lshrrev_b32 v11, 5, v0")
I("v_mul_u32_u24 v11, 4608, v11")
I("v_add3_u32 v10, v10, v11, s74")
for r in range(12, 16):
    I(f"v_mov_b32 v{r}, 0")
I("ds_write_b128 v10, v[12:15] offset:4096")
I("s_mov_b64 exec, s[18:19]")
I("s_waitcnt lgkmcnt(0)")
I("s_barrier")
KMARK(6)
for k in range(5):
    I(f"v_mov_b32 v{140+k}, v{145+k}")
I(f"s_add_u32 s74, s74, {KR_STRIDE}")
I(f"s_cmp_eq_u32 s74, {2*KR_STRIDE}")
I("s_cbranch_scc1 B_kdone")
MARK(0)
I(f"s_mov_b32 s76, {LNF}")
I(f"s_mov_b32 s77, {LNF + 256}")
wait_flags([(76, 64), (77, 64)])
I("v_and_b32 v1, 15, v0")
I("v_bfe_u32 v2, v0, 4, 2")
I("v_lshrrev_b32 v3, 6, v0")
I("s_lshr_b32 s6, s2, 4")
I("s_lshl_b32 s6, s6, 10")
I("s_lshr_b32 s7, s2, 2")
I("s_and_b32 s7, s7, 3")
I("s_lshl_b32 s7, s7, 8")
I("s_add_u32 s6, s6, s7")
I("s_and_b32 s7, s2, 3")
I("s_lshl_b32 s7, s7, 2")
I("s_add_u32 s6, s6, s7")
I("s_add_u32 s6, s64, s6")
I("s_addc_u32 s7, s65, 0")
I("v_lshrrev_b32 v4, 4, v0")
I("v_mul_u32_u24 v4, 14336, v4")
I("v_lshl_add_u32 v4, v1, 4, v4")
for j in range(8):
    if j:
        I(f"v_add_u32 v4, {16*14336}, v4")
    I(f"global_load_dword v{190+j}, v4, s[6:7] sc1")
I("s_branch B_kloop")
L("B_kdone")
I(f"s_setprio {os.environ.get('PRIO_C', '3')}")
MARK(1)
I("v_and_b32 v1, 15, v0")
I("v_bfe_u32 v2, v0, 4, 2")
I("v_lshrrev_b32 v3, 6, v0")
I("v_lshlrev_b32 v5, 1, v0")
I("v_cmp_gt_u32 vcc, 16, v0")
I("s_and_saveexec_b64 s[18:19], vcc")
I("v_mov_b32 v8, 0")
for q in range(4):
    I(f"ds_write_b16 v5, v8 offset:{UB + q*XNT_STRIDE}")
I("s_mov_b64 exec, s[18:19]")
I("s_waitcnt lgkmcnt(0)")
I("s_barrier")
for j in range(8):
    I(f"s_waitcnt vmcnt({7-j})")
    o = UB + 512 * j
    I(f"ds_write_b16 v5, v{190+j} offset:{o + 32}")
    I(f"ds_write_b16 v5, v{190+j} offset:{o + XNT_STRIDE + 30}")
    I(f"ds_write_b16_d16_hi v5, v{190+j} offset:{o + 2*XNT_STRIDE + 32}")
    I(f"ds_write_b16_d16_hi v5, v{190+j} offset:{o + 3*XNT_STRIDE + 30}")
I("s_waitcnt lgkmcnt(0)")
I("s_barrier")
MARK(2)
I("v_lshrrev_b32 v4, 1, v3")
I("v_lshl_add_u32 v5, v2, 3, v1")
I("v_add_u32 v5, 1, v5")
I("v_and_b32 v7, 1, v5")
I("v_sub_u32 v5, v5, v7")
I("v_lshlrev_b32 v5, 1, v5")
I(f"v_mul_u32_u24 v7, {XNT_STRIDE}, v7")
I("v_add_u32 v5, v5, v7")
I(f"v_mul_u32_u24 v7, {2*XNT_STRIDE}, v4")
I("v_add_u32 v5, v5, v7")
I("v_and_b32 v7, 1, v3")
I("v_lshl_add_u32 v5, v7, 8, v5")
I(f"v_add_u32 v232, {UB}, v5")
for c in range(1, 8):
    I(f"v_add_u32 v{232+c}, {512*c}, v232")
I(f"v_mul_u32_u24 v6, {KR_STRIDE}, v4")
I("v_lshl_add_u32 v6, v2, 4, v6")
I("v_lshl_add_u32 v6, v7, 8, v6")
I("v_lshlrev_b32 v7, 5, v1")
I("v_sub_u32 v6, v6, v7")
I("v_add_u32 v6, 480, v6")
CA0 = 8
CBUF = 40


def creads(r):
    bb = CBUF + 96 * (r & 1)
    out = []
    for c in range(8):
        out.append(f"ds_read2_b32 v[{bb+4*c}:{bb+4*c+1}], v{232+c} offset0:{16*r} offset1:{16*r+1}")
        out.append(f"ds_read2_b32 v[{bb+4*c+2}:{bb+4*c+3}], v{232+c} offset0:{16*r+2} offset1:{16*r+3}")
    for n in range(8):
        o = 3584 - 512 * n + 64 * r
        out.append(f"ds_read_b128 v[{bb+32+8*n}:{bb+32+8*n+3}], v6 offset:{o}")
        out.append(f"ds_read_b128 v[{bb+36+8*n}:{bb+36+8*n+3}], v6 offset:{o+4608}")
    return out


for x in creads(0):
    I(x)
for r in range(4):
    I("s_waitcnt lgkmcnt(0)")
    nxt = creads(r + 1) if r < 3 else []
    bb = CBUF + 96 * (r & 1)
    mf = []
    for T in range(8):
        acc = CA0 + 4 * T
        for c in range(T + 1):
            n = T - c
            first = (r == 0 and c == 0)
            src = "0" if first else f"v[{acc}:{acc+3}]"
            mf.append(f"v_mfma_f32_16x16x32_bf16 v[{acc}:{acc+3}], v[{bb+4*c}:{bb+4*c+3}], v[{bb+32+8*n}:{bb+32+8*n+3}], {src}")
            mf.append(f"v_mfma_f32_16x16x32_bf16 v[{acc}:{acc+3}], v[{bb+4*c}:{bb+4*c+3}], v[{bb+36+8*n}:{bb+36+8*n+3}], v[{acc}:{acc+3}]")
    k = 0
    for idx, m in enumerate(mf):
        I(m)
        if k < len(nxt) and idx % 2 == 1:
            I(nxt[k]); k += 1
    while k < len(nxt):
        I(nxt[k]); k += 1
I("s_barrier")
I("v_and_b32 v5, 63, v0")
I("v_lshlrev_b32 v5, 4, v5")
I("v_lshl_add_u32 v6, v3, 12, v5")
I("v_xor_b32 v7, 1, v3")
I("v_lshl_add_u32 v5, v7, 12, v5")
I("s_lshl_b32 s10, s2, 13")
I(f"s_add_u32 s10, s10, {WS_YT}")
I("s_add_u32 s10, s64, s10")
I("s_addc_u32 s11, s65, 0")
I("v_lshlrev_b32 v7, 12, v4")
I("v_lshl_add_u32 v7, v1, 5, v7")
I("v_lshl_add_u32 v7, v2, 3, v7")
I("s_lshl_b32 s74, s2, 2")
I(f"s_add_u32 s74, s74, {YF}")
I("s_and_b32 s9, s69, 1")
I("s_cmp_eq_u32 s9, 1")
I("s_cbranch_scc1 B_cv1")
for h in range(2):
    if h:
        L("B_cv1")
    keep = [4 * h + j for j in range(4)]
    give = [4 * (1 - h) + j for j in range(4)]
    for j, T in enumerate(give):
        I(f"ds_write_b128 v6, v[{CA0+4*T}:{CA0+4*T+3}] offset:{1024*j}")
    I("s_waitcnt lgkmcnt(0)")
    I("s_barrier")
    for j in range(4):
        I(f"ds_read_b128 v[{40+4*j}:{43+4*j}], v5 offset:{1024*j}")
    I("s_waitcnt lgkmcnt(0)")
    for j, T in enumerate(keep):
        acc = CA0 + 4 * T
        for r_ in range(4):
            I(f"v_add_f32 v{acc+r_}, v{acc+r_}, v{40+4*j+r_}")
        I(f"v_cvt_pk_bf16_f32 v{56+2*j}, v{acc}, v{acc+1}")
        I(f"v_cvt_pk_bf16_f32 v{57+2*j}, v{acc+2}, v{acc+3}")
        I(f"global_store_dwordx2 v7, v[{56+2*j}:{57+2*j}], s[10:11] offset:{512*T} sc1")
    if h == 0:
        I("s_branch B_pub")
L("B_pub")
MARK(3)
publish(74)
I("s_endpgm")
L("X_exit")
lines.append("    s_endpgm")

E('.section .rodata,"a"')
E(".p2align 6")
E(f".amdhsa_kernel {NAME}_kernel")
E("  .amdhsa_next_free_vgpr 256")
E("  .amdhsa_next_free_sgpr 96")
E("  .amdhsa_accum_offset 256")
E("  .amdhsa_group_segment_fixed_size 0")
E("  .amdhsa_kernarg_size 104")
E("  .amdhsa_user_sgpr_count 2")
E("  .amdhsa_user_sgpr_kernarg_segment_ptr 1")
E("  .amdhsa_system_sgpr_workgroup_id_x 1")
E("  .amdhsa_float_denorm_mode_32 3")
E(".end_amdhsa_kernel")
open(OUT, "w").write("\n".join(lines) + "\n")
print("wrote", OUT, len(lines), "lines")
```

```python
import sys, os

NAME = "recurrent_scan__ssm_conv_s4d__dense_activation_relu__prompt"
OUT = sys.argv[1] if len(sys.argv) > 1 else f"cdna_kernels/{NAME}.s"
STAMP = int(os.environ.get("STAMP", "0"))

WS_XN = 0x0000000
WS_XNT = 0x0200000
XNT_STRIDE = 4160
KR_STRIDE = 9216
if os.environ.get("COMPACT"):
    WS_FLG = 0x01C0000
    WS_W1T = 0x01C4000
    WS_W2T = WS_W1T + 0x188000
    WS_YT = WS_W2T + 0x188000
    WS_H = WS_YT + 0x1C0000
else:
    WS_W1T = 0x0400000
    WS_W2T = 0x0600000
    WS_H = 0x1000000
    WS_YT = 0x1800000
    WS_FLG = 0x1C00000
LNF, W1F, W2F, HF, YF, LNF2, DUMMYF = 0, 1024, 2048, 3072, 4096, 5120, 6144

NA, NB = 224, 224
GRID = NA + NB
LDS = 70144

lines = []


def E(s=""):
    lines.append(s)


DSTAMP = int(os.environ.get("DSTAMP", "0"))


def I(s):
    if DSTAMP and s == "s_endpgm":
        lb = uid("DS")
        for x in ("s_cmp_lg_u32 s69, 0", f"s_cbranch_scc1 {lb}",
                  "s_mov_b64 exec, 1", "s_memrealtime s[34:35]", "s_waitcnt vmcnt(0) lgkmcnt(0)",
                  "v_mov_b32 v1, 8", "v_mov_b32 v2, s34", "global_atomic_umax v1, v2, s[66:67]",
                  "s_cmp_lg_u32 s28, 0", f"s_cbranch_scc1 {lb}",
                  "v_mov_b32 v1, 4", "v_mov_b32 v2, s30", "global_store_dword v1, v2, s[66:67]"):
            lines.append("    " + x)
        lines.append(lb + ":")
    if STAMP and s == "s_endpgm":
        for x in ("s_mov_b64 exec, -1",
                  "s_memrealtime s[34:35]", "s_memtime s[36:37]",
                  "s_waitcnt vmcnt(0) lgkmcnt(0)",
                  f"s_add_u32 s38, s64, {0x2000000}", "s_addc_u32 s39, s65, 0",
                  "s_lshl_b32 s2, s28, 2", "s_add_u32 s2, s2, s69", "s_lshl_b32 s2, s2, 5", "v_mov_b32 v1, s2",
                  "v_mov_b32 v4, s30", "v_mov_b32 v5, s31", "v_mov_b32 v6, s34", "v_mov_b32 v7, s35",
                  "v_mov_b32 v8, s32", "v_mov_b32 v9, s33", "v_mov_b32 v10, s36", "v_mov_b32 v11, s37",
                  "global_store_dwordx4 v1, v[4:7], s[38:39]", "global_store_dwordx4 v1, v[8:11], s[38:39] offset:16",
                  "v_mov_b32 v4, s40", "v_mov_b32 v5, s42", "v_mov_b32 v6, s44", "v_mov_b32 v7, s46",
                  "v_mov_b32 v8, s48", "v_mov_b32 v9, s50", "v_mov_b32 v10, s52", "v_mov_b32 v11, s54",
                  "v_add_u32 v1, 0x100000, v1",
                  "global_store_dwordx4 v1, v[4:7], s[38:39]", "global_store_dwordx4 v1, v[8:11], s[38:39] offset:16"):
            lines.append("    " + x)
    lines.append("    " + s)


def KMARK(n):
    if STAMP and os.environ.get("KM"):
        lines.append(f"    s_memtime s[{40+2*n}:{41+2*n}]")


def MARK(n):
    if STAMP and not os.environ.get("KM"):
        lines.append(f"    s_memtime s[{40+2*n}:{41+2*n}]")


def L(lbl):
    lines.append(lbl + ":")


_uid = [0]


def uid(p):
    _uid[0] += 1
    return f"{p}_{_uid[0]}"


def interleave(chains):
    chains = [list(c) for c in chains]
    while any(chains):
        for c in chains:
            if c:
                I(c.pop(0))


def bf16r(dst, src):
    I(f"v_cvt_pk_bf16_f32 v{dst}, v{src}, v{src}")
    I(f"v_lshlrev_b32 v{dst}, 16, v{dst}")


def get_nonce():
    a, b = uid("N_poll"), uid("N_ok")
    I("s_cmp_lg_u32 s68, 0")
    I(f"s_cbranch_scc1 {b}")
    I("s_waitcnt vmcnt(0)")
    I("v_readfirstlane_b32 s68, v255")
    I("s_cmp_lg_u32 s68, 0")
    I(f"s_cbranch_scc1 {b}")
    I(f"v_mov_b32 v253, {128 if DSTAMP else 0}")
    L(a)
    I("global_load_dword v254, v253, s[66:67] sc1")
    I("s_waitcnt vmcnt(0)")
    I("v_readfirstlane_b32 s68, v254")
    I("s_cmp_lg_u32 s68, 0")
    I(f"s_cbranch_scc1 {b}")
    I("s_sleep 4")
    I(f"s_branch {a}")
    L(b)


def publish(*soffs):
    e = uid("PB_end")
    I("s_waitcnt vmcnt(0) lgkmcnt(0)")
    I("s_barrier")
    I("s_cmp_lg_u32 s69, 0")
    I(f"s_cbranch_scc1 {e}")
    get_nonce()
    I("v_mov_b32 v254, s68")
    I("s_mov_b64 s[72:73], exec")
    I("s_mov_b64 exec, 1")
    for soff in soffs:
        I(f"v_mov_b32 v253, s{soff}")
        I("global_store_dword v253, v254, s[70:71] sc1")
    I("s_mov_b64 exec, s[72:73]")
    L(e)


def wait_flags(specs, first_sleep=0):
    e = uid("W_end")
    I("s_cmp_lg_u32 s69, 0")
    I(f"s_cbranch_scc1 {e}")
    get_nonce()
    if first_sleep:
        I(f"s_sleep {first_sleep}")
    for (soff, n) in specs:
        a, b = uid("W_poll"), uid("W_ok")
        I("v_and_b32 v253, 63, v0")
        I(f"v_min_u32 v253, {n-1}, v253")
        I(f"v_lshl_add_u32 v253, v253, 2, s{soff}")
        L(a)
        I("global_load_dword v254, v253, s[70:71] sc1")
        I("s_waitcnt vmcnt(0)")
        I("v_cmp_ne_u32 vcc, s68, v254")
        I("s_cmp_eq_u64 vcc, 0")
        I(f"s_cbranch_scc1 {b}")
        I("s_sleep 3")
        I(f"s_branch {a}")
        L(b)
    L(e)
    I("s_barrier")


HEADER = open(f"cdna_kernels/{NAME}.s.ref").read().split("; Override launch")[0]
E(HEADER.rstrip("\n"))
E(f"; @launch grid=({GRID},1,1) block=(256,1,1) lds={LDS}")
E('.amdgcn_target "amdgcn-amd-amdhsa--gfx950"')
E(".text")
E(f".globl {NAME}_kernel")
E(".p2align 8")
E(f".type {NAME}_kernel,@function")
L(f"{NAME}_kernel")
I(f"s_cmp_ge_u32 s2, {GRID}")
I("s_cbranch_scc1 X_exit")
I("s_mov_b32 s28, s2")
if DSTAMP:
    I("s_memrealtime s[30:31]")
if STAMP:
    I("s_memrealtime s[30:31]")
    I("s_memtime s[32:33]")
I("s_load_dwordx16 s[4:19], s[0:1], 0")
I("s_load_dwordx8 s[56:63], s[0:1], 64")
I("s_load_dwordx2 s[64:65], s[0:1], 96")
I("v_readfirstlane_b32 s69, v0")
I("s_lshr_b32 s69, s69, 6")
I("s_mov_b32 s68, 0")
I("s_waitcnt lgkmcnt(0)")
I("s_mov_b32 s66, s62")
I("s_mov_b32 s67, s63")
I(f"s_add_u32 s70, s64, {WS_FLG}")
I("s_addc_u32 s71, s65, 0")
I("s_or_b32 s72, s2, s69")
I("s_cmp_lg_u32 s72, 0")
I("s_cbranch_scc1 X_nononce")
I("s_memrealtime s[72:73]")
I("s_waitcnt lgkmcnt(0)")
I("s_or_b32 s68, s72, 1")
I(f"v_mov_b32 v253, {128 if DSTAMP else 0}")
I("v_mov_b32 v254, s68")
I("s_mov_b64 exec, 1")
I("global_store_dword v253, v254, s[66:67] sc1")
I("s_mov_b64 exec, -1")
L("X_nononce")
I(f"v_mov_b32 v253, {128 if DSTAMP else 0}")
I("global_load_dword v255, v253, s[66:67] sc1")
I(f"s_cmp_ge_u32 s2, {NA}")
I("s_cbranch_scc1 B_start")

if os.environ.get("NOA"):
    I("s_branch X_exit")
I(f"s_setprio {os.environ.get('PRIO_A', '3')}")
I("s_cmp_ge_u32 s2, 128")
I("s_cbranch_scc1 A_wtonly")
I("s_mov_b32 s14, s64")
I("s_mov_b32 s15, s65")
I("s_mov_b32 s3, s2")
I("v_lshrrev_b32 v1, 6, v0")
I("v_and_b32 v2, 63, v0")
I("s_lshl_b32 s6, s3, 4")
I("v_lshl_add_u32 v3, v1, 2, s6")
I("v_mul_u32_u24 v3, 896, v3")
I("v_lshl_add_u32 v3, v2, 4, v3")
I("s_mul_i32 s7, s3, 14336")
I("v_lshrrev_b32 v29, 2, v2")
I("v_lshlrev_b32 v29, 10, v29")
I("v_and_b32 v28, 3, v2")
I("v_lshl_add_u32 v29, v28, 8, v29")
I("v_lshl_add_u32 v29, v1, 6, v29")
I("s_mov_b32 s20, 0x3b124925")
I("s_mov_b32 s21, 0x43e00000")
I("s_mov_b32 s22, 0x3727c5ac")
for r in range(8, 24):
    I(f"v_mov_b32 v{r}, 0")
I("s_mov_b64 s[16:17], exec")
I("s_mov_b32 s18, -1")
I("s_mov_b32 s19, 0x00ffffff")
I("s_waitcnt lgkmcnt(0)")
I("s_mov_b64 exec, s[18:19]")
for k in range(4):
    I(f"global_load_dwordx4 v[{8+4*k}:{11+4*k}], v3, s[4:5] offset:{896*k}")
I("s_mov_b64 exec, s[16:17]")
I("s_waitcnt vmcnt(0)")
for k in range(4):
    for j in range(4):
        I(f"v_lshlrev_b32 v{32+8*k+2*j}, 16, v{8+4*k+j}")
        I(f"v_and_b32 v{33+8*k+2*j}, 0xffff0000, v{8+4*k+j}")


def rows(fmt, **kw):
    for k in range(4):
        b = 32 + 8 * k
        I(fmt.format(k=k, s=8 + k, t=12 + k, m=16 + k, u=20 + k, w=64 + k, x=68 + k, sg=24 + k,
                     b0=b, b1=b + 1, b2=b + 2, b3=b + 3, b4=b + 4, b5=b + 5, b6=b + 6, b7=b + 7, **kw))


def dpp4():
    for sh in (1, 2, 4, 8):
        rows("v_add_f32_dpp v{s}, v{s}, v{s} row_shr:%d row_mask:0xf bank_mask:0xf bound_ctrl:0" % sh)
    rows("v_add_f32_dpp v{s}, v{s}, v{s} row_bcast:15 row_mask:0xa bank_mask:0xf")
    rows("v_add_f32_dpp v{s}, v{s}, v{s} row_bcast:31 row_mask:0xc bank_mask:0xf")
    rows("v_readlane_b32 s{sg}, v{s}, 63")


rows("v_add_f32 v{s}, v{b0}, v{b1}")
rows("v_add_f32 v{t}, v{b2}, v{b3}")
rows("v_add_f32 v{m}, v{b4}, v{b5}")
rows("v_add_f32 v{u}, v{b6}, v{b7}")
rows("v_add_f32 v{s}, v{s}, v{t}")
rows("v_add_f32 v{m}, v{m}, v{u}")
rows("v_add_f32 v{s}, v{s}, v{m}")
dpp4()
rows("v_mov_b32 v{t}, s{sg}")
rows("v_mul_f32 v{m}, s20, v{t}")
rows("v_fma_f32 v{u}, -v{m}, s21, v{t}")
rows("v_fma_f32 v{m}, v{u}, s20, v{m}")
rows("v_mov_b32 v{s}, 0")
I("s_mov_b64 exec, s[18:19]")
for j in range(8):
    rows("v_sub_f32 v{t}, v{bj}, v{m}".replace("{bj}", "{b%d}" % j))
    rows("v_fmac_f32 v{s}, v{t}, v{t}")
I("s_mov_b64 exec, s[16:17]")
I("s_nop 1")
dpp4()
rows("v_mov_b32 v{t}, s{sg}")
rows("v_mul_f32 v{u}, s20, v{t}")
rows("v_fma_f32 v{w}, -v{u}, s21, v{t}")
rows("v_fma_f32 v{u}, v{w}, s20, v{u}")
rows("v_cvt_pk_bf16_f32 v{u}, v{u}, v{u}")
rows("v_cvt_pk_bf16_f32 v{m}, v{m}, v{m}")
rows("v_lshlrev_b32 v{u}, 16, v{u}")
rows("v_lshlrev_b32 v{m}, 16, v{m}")
rows("v_add_f32 v{u}, s22, v{u}")
rows("v_cvt_pk_bf16_f32 v{u}, v{u}, v{u}")
rows("v_lshlrev_b32 v{u}, 16, v{u}")
rows("v_sqrt_f32 v{w}, v{u}")
for j in range(8):
    rows("v_sub_f32 v{bj}, v{bj}, v{m}".replace("{bj}", "{b%d}" % j))
rows("v_rcp_f32 v{x}, v{w}")
rows("v_fma_f32 v{t}, -v{w}, v{w}, v{u}")
rows("v_mul_f32 v{x}, 0.5, v{x}")
rows("v_fma_f32 v{w}, v{t}, v{x}, v{w}")
rows("v_cvt_pk_bf16_f32 v{w}, v{w}, v{w}")
rows("v_lshlrev_b32 v{w}, 16, v{w}")
rows("v_rcp_f32 v{x}, v{w}")
for j in range(0, 8, 2):
    rows("v_cvt_pk_bf16_f32 v{t}, v{bj}, v{bk}".replace("{bj}", "{b%d}" % j).replace("{bk}", "{b%d}" % (j + 1)))
    rows("v_lshlrev_b32 v{bj}, 16, v{t}".replace("{bj}", "{b%d}" % j))
    rows("v_and_b32 v{bk}, 0xffff0000, v{t}".replace("{bk}", "{b%d}" % (j + 1)))
rows("v_fma_f32 v{t}, -v{w}, v{x}, 1.0")
rows("v_fma_f32 v{x}, v{t}, v{x}, v{x}")
for j in range(8):
    rows("v_mul_f32 v{t}, v{bj}, v{x}".replace("{bj}", "{b%d}" % j))
    rows("v_fma_f32 v{u}, -v{t}, v{w}, v{bj}".replace("{bj}", "{b%d}" % j))
    rows("v_fma_f32 v{bj}, v{u}, v{x}, v{t}".replace("{bj}", "{b%d}" % j))
for j in range(4):
    for k in range(4):
        b = 32 + 8 * k
        I(f"v_cvt_pk_bf16_f32 v{8+4*k+j}, v{b+2*j}, v{b+2*j+1}")
I("v_lshlrev_b32 v30, 2, v1")
I("v_mul_u32_u24 v30, 896, v30")
I("v_lshl_add_u32 v30, v2, 4, v30")
I("s_mov_b64 exec, s[18:19]")
for k in range(4):
    I(f"ds_write_b128 v29, v[{8+4*k}:{11+4*k}] offset:{16384 + 16*k}")
I("s_mov_b64 exec, s[16:17]")
I("s_waitcnt lgkmcnt(0)")
I("s_barrier")
I("v_lshlrev_b32 v4, 4, v0")
I("v_add_u32 v5, s7, v4")
for q in range(3):
    I(f"ds_read_b128 v[{8+4*q}:{11+4*q}], v4 offset:{16384 + 4096*q}")
I("v_cmp_gt_u32 vcc, 128, v0")
I("s_and_saveexec_b64 s[16:17], vcc")
I(f"ds_read_b128 v[20:23], v4 offset:{16384 + 12288}")
I("v_add_u32 v6, 0x3000, v5")
I("s_waitcnt lgkmcnt(0)")
I("global_store_dwordx4 v6, v[20:23], s[14:15] sc1")
I("s_mov_b64 exec, s[16:17]")
I("v_add_u32 v6, 0x1000, v5")
I("v_add_u32 v7, 0x2000, v5")
I("s_waitcnt lgkmcnt(0)")
I("global_store_dwordx4 v5, v[8:11], s[14:15] sc1")
I("global_store_dwordx4 v6, v[12:15], s[14:15] sc1")
I("global_store_dwordx4 v7, v[16:19], s[14:15] sc1")
I("s_lshl_b32 s74, s3, 2")
publish(74)
I("s_branch A_g1")
L("A_wtonly")
I("s_sub_u32 s3, s2, 128")
I("s_mov_b32 s75, 96")
I("s_cmp_lt_u32 s3, 4")
I("s_cselect_b32 s75, 192, s75")


CFG = {1: (3584, 14336, 9363, 7, 56, WS_W1T), 2: (896, 57344, 2341, 28, 58, WS_W2T)}


def wt_params(which):
    sst, dtile, magic, nk, sp, wsoff = CFG[which]
    sb = 80 if which == 1 else 4
    for j in range(3):
        sj = sb + 4 * j
        if j == 0:
            I(f"s_mov_b32 s{sj}, s3")
        elif j == 1:
            I(f"s_add_u32 s{sj}, s3, 96")
        else:
            I(f"s_add_u32 s{sj}, s3, s75")
        I(f"s_mul_i32 s{sj+2}, s{sj}, {magic}")
        I(f"s_lshr_b32 s{sj+2}, s{sj+2}, 16")
        I(f"s_mul_i32 s{sj+1}, s{sj+2}, {nk}")
        I(f"s_sub_u32 s{sj+1}, s{sj}, s{sj+1}")
        if which == 1:
            I(f"s_and_b32 s{sj+3}, s{sj+2}, 1")
            I(f"s_mul_i32 s{sj+3}, s{sj+3}, 7")
            I(f"s_add_u32 s{sj+3}, s{sj+3}, s{sj+1}")
            I(f"s_lshl_b32 s{sj+3}, s{sj+3}, 2")
            I(f"s_lshr_b32 s20, s{sj+2}, 1")
            I("s_lshl_b32 s20, s20, 6")
            I(f"s_add_u32 s{sj+3}, s{sj+3}, s20")
            I(f"s_add_u32 s{sj+3}, s{sj+3}, {W1F}")
        else:
            I(f"s_lshl_b32 s{sj+3}, s{sj+2}, 7")
            I(f"s_lshl_b32 s20, s{sj+1}, 2")
            I(f"s_add_u32 s{sj+3}, s{sj+3}, s20")
            I(f"s_add_u32 s{sj+3}, s{sj+3}, {W2F}")


def wt_loads(which):
    sst, dtile, magic, nk, sp, wsoff = CFG[which]
    sb = 80 if which == 1 else 4
    rb = 8 if which == 1 else 32
    I(f"v_mul_u32_u24 v3, {sst}, v1")
    I("v_lshl_add_u32 v3, v2, 4, v3")
    for j in range(3):
        sj = sb + 4 * j
        I(f"s_mul_i32 s20, s{sj+1}, {64*sst}")
        I(f"s_lshl_b32 s21, s{sj+2}, 7")
        I("s_add_u32 s20, s20, s21")
        I("v_add_u32 v4, s20, v3")
        I(f"v_add_u32 v6, {32*sst}, v4")
        I(f"global_load_dwordx4 v[{rb+8*j}:{rb+3+8*j}], v4, s[{sp}:{sp+1}]")
        I(f"global_load_dwordx4 v[{rb+4+8*j}:{rb+7+8*j}], v6, s[{sp}:{sp+1}]")


def wt_out(which):
    sst, dtile, magic, nk, sp, wsoff = CFG[which]
    sb = 80 if which == 1 else 4
    lb = 0 if which == 1 else 24576
    I(f"s_add_u32 s22, s64, {wsoff}")
    I("s_addc_u32 s23, s65, 0")
    if which == 1:
        I("v_lshrrev_b32 v4, 2, v1")
        I("v_lshlrev_b32 v4, 4, v4")
        I("v_lshl_add_u32 v4, v3, 2, v4")
        I("v_and_b32 v6, 3, v1")
        I("v_add_u32 v4, v4, v6")
    else:
        I("v_lshl_add_u32 v4, v3, 4, v1")
    I("v_lshlrev_b32 v5, 10, v2")
    I("v_lshl_add_u32 v5, v4, 1, v5")
    I(f"v_mul_u32_u24 v7, {dtile}, v3")
    I("v_and_b32 v4, 63, v0")
    I("v_lshl_add_u32 v7, v4, 4, v7")
    for j in range(3):
        sj = sb + 4 * j
        for c in range(2):
            for e in range(8):
                I(f"ds_read_u16 v{64 + 8*c + e}, v5 offset:{lb + 8192*j + 4096*c + 128*e}")
            if c == 0:
                I("s_waitcnt lgkmcnt(0)")
        I(f"s_mul_i32 s20, s{sj+2}, {4*dtile}")
        I(f"s_lshl_b32 s21, s{sj+1}, 11")
        I("s_add_u32 s20, s20, s21")
        I("v_add_u32 v6, s20, v7")
        I("s_waitcnt lgkmcnt(0)")
        for t in range(8):
            I(f"v_lshl_or_b32 v{8+8*j+t}, v{65+2*t}, 16, v{64+2*t}")
        I(f"global_store_dwordx4 v6, v[{8+8*j}:{11+8*j}], s[22:23] sc1")
        I(f"global_store_dwordx4 v6, v[{12+8*j}:{15+8*j}], s[22:23] offset:1024 sc1")
    publish(sb + 3, sb + 7, sb + 11)


I("v_lshrrev_b32 v1, 3, v0")
I("v_and_b32 v2, 7, v0")
wt_params(1)
wt_loads(1)
wt_params(2)
I("v_lshlrev_b32 v56, 7, v1")
I("v_lshl_add_u32 v56, v2, 4, v56")
for j in range(3):
    I(f"s_waitcnt vmcnt({4-2*j})")
    I(f"ds_write_b128 v56, v[{8+8*j}:{11+8*j}] offset:{8192*j}")
    I(f"ds_write_b128 v56, v[{12+8*j}:{15+8*j}] offset:{8192*j+4096}")
wt_loads(2)
I("s_waitcnt lgkmcnt(0)")
I("s_barrier")
I("v_and_b32 v1, 15, v0")
I("v_bfe_u32 v2, v0, 4, 2")
I("v_lshrrev_b32 v3, 6, v0")
wt_out(1)
for j in range(3, 6):
    I(f"ds_write_b128 v56, v[{8+8*j}:{11+8*j}] offset:{8192*j}")
    I(f"ds_write_b128 v56, v[{12+8*j}:{15+8*j}] offset:{8192*j+4096}")
I("s_waitcnt lgkmcnt(0)")
I("s_barrier")
wt_out(2)

L("A_g1")
MARK(0)
I(f"s_setprio {os.environ.get('PRIO_G', '2')}")
I("v_and_b32 v1, 15, v0")
I("v_bfe_u32 v2, v0, 4, 2")
I("v_lshrrev_b32 v3, 6, v0")
I("s_and_b32 s10, s2, 7")
I("s_lshr_b32 s3, s2, 3")
I("s_mul_i32 s8, s3, 9363")
I("s_lshr_b32 s8, s8, 16")
I("s_mul_i32 s9, s8, 7")
I("s_sub_u32 s9, s3, s9")
I("s_and_b32 s11, s10, 1")
I("s_mul_i32 s11, s11, 7")
I("s_add_u32 s9, s9, s11")
I("s_lshr_b32 s10, s10, 1")
I("s_lshl_b32 s10, s10, 2")
I("s_add_u32 s8, s8, s10")
I("s_lshl_b32 s76, s8, 5")
I("s_lshl_b32 s77, s9, 6")
I(f"s_add_u32 s77, s77, {W1F}")
I("s_lshl_b32 s74, s8, 6")
I("s_lshl_b32 s10, s9, 2")
I("s_add_u32 s74, s74, s10")
I(f"s_add_u32 s74, s74, {HF}")
wait_flags([(77, 14)])
I(f"s_add_u32 s4, s64, {WS_W1T}")
I("s_addc_u32 s5, s65, 0")
I(f"s_add_u32 s6, s64, {WS_XN}")
I("s_addc_u32 s7, s65, 0")
I("s_lshl_b32 s9, s9, 7")
I("s_lshl_b32 s8, s8, 7")
I("v_and_b32 v4, 1, v3")
I("v_lshl_add_u32 v4, v4, 6, s9")
I("v_lshrrev_b32 v5, 1, v3")
I("v_lshl_add_u32 v5, v5, 6, s8")
I("v_and_b32 v7, 63, v0")
I("v_lshlrev_b32 v7, 4, v7")
I("s_mul_i32 s10, s9, 896")
I("s_mul_i32 s11, s8, 896")
I("v_mul_u32_u24 v6, 28672, v3")
I("v_add_u32 v6, v6, v7")
I("v_add_u32 v8, s10, v6")
I("v_add_u32 v9, 14336, v8")
I("v_add_u32 v10, s11, v6")
I("v_add_u32 v11, 14336, v10")
I("s_lshl_b32 s12, s69, 11")
I("v_and_b32 v12, 1, v3")
I("v_lshl_add_u32 v12, v12, 12, v7")
I("v_lshrrev_b32 v13, 1, v3")
I("v_lshl_add_u32 v13, v13, 12, v7")
I("v_add_u32 v13, 0x2000, v13")
G_ACC = 16
G_FR = 80
issued = []


def g1_dma(st, part):
    slot = (st % 4) * 16384
    for (nm, va, sb, off) in (("A", 8, 4, 0), ("A", 9, 4, 1024), ("B", 10, 6, 8192), ("B", 11, 6, 9216)):
        if nm not in part:
            continue
        if st and off in (0, 8192):
            I(f"s_add_u32 s{sb}, s{sb}, 1024")
            I(f"s_addc_u32 s{sb+1}, s{sb+1}, 0")
        I(f"s_add_u32 m0, s12, {slot + off}")
        I("s_nop 0")
        I(f"global_load_lds_dwordx4 v{va}, s[{sb}:{sb+1}] sc1")
        issued.append(st)


def g1_wait(st):
    last = max(i for i, x in enumerate(issued) if x == st)
    return len(issued) - 1 - last


def g1_reads(st):
    slot = (st % 4) * 16384
    fb = G_FR + 32 * (st & 1)
    for j in range(4):
        I(f"ds_read_b128 v[{fb+4*j}:{fb+4*j+3}], v12 offset:{slot + 1024*j}")
    for j in range(4):
        I(f"ds_read_b128 v[{fb+16+4*j}:{fb+16+4*j+3}], v13 offset:{slot + 1024*j}")


NS1 = 14
for st in range(4):
    g1_dma(st, "A")
wait_flags([(76, 8)])
MARK(1)
for st in range(4):
    g1_dma(st, "B")
I(f"s_waitcnt vmcnt({g1_wait(0)})")
I("s_barrier")
g1_reads(0)
for st in range(NS1):
    if st + 1 < NS1:
        I(f"s_waitcnt vmcnt({g1_wait(st + 1)}) lgkmcnt(0)")
        I("s_barrier")
        if st + 4 < NS1:
            g1_dma(st + 4, "AB")
        g1_reads(st + 1)
    else:
        I("s_waitcnt lgkmcnt(0)")
    fb = G_FR + 32 * (st & 1)
    for a_ in range(4):
        for b_ in range(4):
            c = G_ACC + 16 * a_ + 4 * b_
            src = "0" if st == 0 else f"v[{c}:{c+3}]"
            I(f"v_mfma_f32_16x16x32_bf16 v[{c}:{c+3}], v[{fb+4*a_}:{fb+4*a_+3}], v[{fb+16+4*b_}:{fb+16+4*b_+3}], {src}")
I(f"s_add_u32 s4, s64, {WS_H}")
I("s_addc_u32 s5, s65, 0")
I("v_mul_u32_u24 v6, 3584, v5")
I("v_lshl_add_u32 v6, v4, 5, v6")
I("v_lshrrev_b32 v7, 1, v2")
I("v_lshl_add_u32 v6, v7, 10, v6")
I("v_and_b32 v7, 1, v2")
I("v_lshl_add_u32 v6, v7, 9, v6")
I("v_lshl_add_u32 v6, v1, 4, v6")
I("s_nop 4")
for b in range(4):
    for a in range(4):
        c = G_ACC + 16 * a + 4 * b
        for r in range(4):
            I(f"v_max_f32 v{c+r}, 0, v{c+r}")
        I(f"v_cvt_pk_bf16_f32 v{80+8*b+2*a}, v{c}, v{c+1}")
        I(f"v_cvt_pk_bf16_f32 v{81+8*b+2*a}, v{c+2}, v{c+3}")
    if b > 0:
        I(f"v_add_u32 v6, {57344}, v6")
    I(f"global_store_dwordx4 v6, v[{80+8*b}:{83+8*b}], s[4:5] sc1")
    I(f"global_store_dwordx4 v6, v[{84+8*b}:{87+8*b}], s[4:5] offset:256 sc1")
publish(74)
MARK(2)

I(f"s_setprio {os.environ.get('PRIO_G2', '0')}")
I("s_load_dwordx2 s[16:17], s[0:1], 0")
I("s_load_dwordx2 s[18:19], s[0:1], 48")
I("s_load_dwordx2 s[20:21], s[0:1], 80")
I("s_mov_b32 s14, s64")
I("s_mov_b32 s15, s65")
I("v_and_b32 v4, 63, v0")
I("s_and_b32 s10, s2, 7")
I("s_lshr_b32 s3, s2, 3")
I("s_mul_i32 s8, s3, 9363")
I("s_lshr_b32 s8, s8, 16")
I("s_mul_i32 s9, s8, 7")
I("s_sub_u32 s9, s3, s9")
I("s_lshl_b32 s10, s10, 2")
I("s_add_u32 s8, s8, s10")
I("s_lshr_b32 s76, s8, 1")
I("s_lshl_b32 s76, s76, 6")
I(f"s_add_u32 s76, s76, {HF}")
I("s_lshl_b32 s77, s9, 7")
I(f"s_add_u32 s78, s77, {YF}")
I(f"s_add_u32 s77, s77, {W2F}")
I("s_lshl_b32 s9, s9, 6")
I("s_lshl_b32 s8, s8, 6")
wait_flags([(77, 28), (76, 14)])
MARK(3)
I("s_waitcnt lgkmcnt(0)")
I(f"s_add_u32 s4, s64, {WS_W2T}")
I("s_addc_u32 s5, s65, 0")
I(f"s_add_u32 s6, s64, {WS_H}")
I("s_addc_u32 s7, s65, 0")
I(f"s_add_u32 s10, s64, {WS_YT}")
I("s_addc_u32 s11, s65, 0")
EX, EXN, EY, EDK = 232, 240, 216, 208


def fin_late():
    I("v_lshrrev_b32 v249, 2, v4")
    I("v_lshl_add_u32 v249, v3, 4, v249")
    I("v_add_u32 v250, s8, v249")
    I("v_and_b32 v251, 3, v4")
    I("v_mul_u32_u24 v5, 896, v250")
    I("s_lshl_b32 s12, s9, 1")
    I("v_lshl_add_u32 v6, v251, 5, s12")
    I("v_add_u32 v5, v5, v6")
    I(f"global_load_dwordx4 v[{EX}:{EX+3}], v5, s[16:17]")
    I(f"global_load_dwordx4 v[{EX+4}:{EX+7}], v5, s[16:17] offset:16")
    I("v_lshrrev_b32 v248, 4, v250")
    I("v_mul_u32_u24 v248, 14336, v248")
    I("v_and_b32 v7, 15, v250")
    I("v_lshl_add_u32 v248, v7, 4, v248")
    I("v_lshrrev_b32 v7, 6, v6")
    I("v_lshl_add_u32 v248, v7, 10, v248")
    I("v_bfe_u32 v7, v6, 4, 2")
    I("v_lshl_add_u32 v248, v7, 8, v248")
    I(f"global_load_dwordx4 v[{EXN}:{EXN+3}], v248, s[14:15] sc1")
    I(f"global_load_dwordx4 v[{EXN+4}:{EXN+7}], v248, s[14:15] offset:256 sc1")
    I(f"global_load_dwordx4 v[{EDK}:{EDK+3}], v6, s[18:19]")
    I(f"global_load_dwordx4 v[{EDK+4}:{EDK+7}], v6, s[18:19] offset:16")
    I("v_lshlrev_b32 v7, 11, v6")
    I("v_lshl_add_u32 v252, v250, 1, v7")
    I("v_and_b32 v253, 31, v0")
    I("v_lshl_add_u32 v253, v253, 2, s78")
    I("global_load_dword v254, v253, s[70:71] sc1")
    I(f"v_mov_b32 v7, {128 if DSTAMP else 0}")
    I("global_load_dword v255, v7, s[66:67] sc1")


def gemm_core(sa, sb, va, vb, acc0, buf0, ring, late, nlate):
    NS = 14
    PF = ring - 1

    def loads(s):
        bb = buf0 + 32 * (s % ring)
        off = (s & 3) * 1024
        if s and (s & 3) == 0:
            I(f"s_add_u32 s{sa}, s{sa}, 4096")
            I(f"s_addc_u32 s{sa+1}, s{sa+1}, 0")
            I(f"s_add_u32 s{sb}, s{sb}, 4096")
            I(f"s_addc_u32 s{sb+1}, s{sb+1}, 0")
        for j in range(4):
            I(f"global_load_dwordx4 v[{bb+4*j}:{bb+4*j+3}], v{va+j}, s[{sa}:{sa+1}] offset:{off} sc1")
        for j in range(4):
            I(f"global_load_dwordx4 v[{bb+16+4*j}:{bb+16+4*j+3}], v{vb+j}, s[{sb}:{sb+1}] offset:{off} sc1")

    for s in range(PF):
        loads(s)
    for s in range(NS):
        if s + PF < NS:
            loads(s + PF)
            if s + PF == NS - 1:
                late()
                I(f"s_waitcnt vmcnt({8*PF + nlate})")
            else:
                I(f"s_waitcnt vmcnt({8*PF})")
        else:
            I(f"s_waitcnt vmcnt({8*(NS-1-s) + nlate})")
        bb = buf0 + 32 * (s % ring)
        for a in range(4):
            for b in range(4):
                c = acc0 + 16 * a + 4 * b
                src = "0" if s == 0 else f"v[{c}:{c+3}]"
                I(f"v_mfma_f32_16x16x32_bf16 v[{c}:{c+3}], v[{bb+4*a}:{bb+4*a+3}], v[{bb+16+4*b}:{bb+16+4*b+3}], {src}")


I("v_mul_u32_u24 v7, 14336, v3")
I("v_lshl_add_u32 v7, v4, 4, v7")
I("s_mul_i32 s12, s9, 3584")
I("v_add_u32 v8, s12, v7")
for j in range(1, 4):
    I(f"v_add_u32 v{8+j}, {57344*j}, v8")
I("s_mul_i32 s12, s8, 3584")
I("v_add_u32 v12, s12, v7")
for j in range(1, 4):
    I(f"v_add_u32 v{12+j}, {57344*j}, v12")
F_ACC = 16
F_BUF = 80
gemm_core(4, 6, 8, 12, F_ACC, F_BUF, 4, fin_late, 8)
MARK(4)
I("s_waitcnt vmcnt(0)")
L("A_ypoll")
I("v_cmp_ne_u32 vcc, v255, v254")
I("s_cmp_eq_u64 vcc, 0")
I("s_cbranch_scc1 A_yok")
I("s_sleep 3")
I("global_load_dword v254, v253, s[70:71] sc1")
I("s_waitcnt vmcnt(0)")
I("s_branch A_ypoll")
L("A_yok")
MARK(5)
for dd in range(16):
    if dd:
        I("v_add_u32 v252, 0x1000, v252")
    I(f"global_load_ushort v{EY+dd}, v252, s[10:11] sc1")
I("v_lshl_add_u32 v6, v3, 6, v1")
I("v_mul_u32_u24 v6, 272, v6")
I("v_lshl_add_u32 v6, v2, 4, v6")
for a_ in range(4):
    for b_ in range(4):
        c = F_ACC + 16 * a_ + 4 * b_
        I(f"ds_write_b128 v6, v[{c}:{c+3}] offset:{16*b_*272 + 64*a_}")
I("s_waitcnt lgkmcnt(0)")
I("s_barrier")
I("v_mul_u32_u24 v6, 272, v249")
I("v_lshl_add_u32 v6, v251, 6, v6")
for p in range(4):
    for j in range(4):
        I(f"ds_read_b128 v[{80+16*p+4*j}:{83+16*p+4*j}], v6 offset:{p*64*272 + 16*j}")
I("s_mov_b32 s22, 0xbfb8aa3b")
I("s_waitcnt vmcnt(16) lgkmcnt(0)")


def bfr(r):
    return [f"v_cvt_pk_bf16_f32 v{r}, v{r}, v{r}", f"v_lshlrev_b32 v{r}, 16, v{r}"]


def epi1(dd):
    o = 80 + dd
    t1, t2, t3 = 144 + dd, 160 + dd, 176 + dd
    h = dd & 1

    def unp(dst, reg):
        if h:
            return f"v_and_b32 v{dst}, 0xffff0000, v{reg + dd//2}"
        return f"v_lshlrev_b32 v{dst}, 16, v{reg + dd//2}"
    return [f"v_add_f32 v{o}, v{o}, v{o+16}",
            f"v_add_f32 v{o+32}, v{o+32}, v{o+48}",
            unp(t2, EXN), unp(t3, EDK),
            f"v_add_f32 v{o}, v{o}, v{o+32}",
            f"v_mul_f32 v{t2}, v{t2}, v{t3}"] + bfr(o) + bfr(t2) + [
            f"v_mul_f32 v{t1}, s22, v{o}",
            unp(t3, EX),
            f"v_exp_f32 v{t1}, v{t1}",
            "s_nop 0",
            f"v_add_f32 v{t1}, 1.0, v{t1}",
            f"v_rcp_f32 v{t1}, v{t1}",
            "s_nop 0",
            f"v_mul_f32 v{o}, v{o}, v{t1}"] + bfr(o)


def epi2(dd):
    o = 80 + dd
    t1, t2, t3 = 144 + dd, 160 + dd, 176 + dd
    return [f"v_lshlrev_b32 v{t1}, 16, v{EY+dd}",
            f"v_add_f32 v{t2}, v{t2}, v{t1}"] + bfr(t2) + [
            f"v_mul_f32 v{o}, v{o}, v{t2}"] + bfr(o) + [
            f"v_add_f32 v{o}, v{o}, v{t3}"]


for g in range(0, 16, 4):
    interleave([epi1(dd) for dd in range(g, g + 4)])
I("s_waitcnt vmcnt(0)")
for g in range(0, 16, 4):
    interleave([epi2(dd) for dd in range(g, g + 4)])
for j in range(8):
    I(f"v_cvt_pk_bf16_f32 v{16+j}, v{80+2*j}, v{81+2*j}")
I("global_store_dwordx4 v5, v[16:19], s[20:21]")
I("global_store_dwordx4 v5, v[20:23], s[20:21] offset:16")
I("s_endpgm")

L("B_start")
I(f"s_setprio {os.environ.get('PRIO_B', '1')}")
I(f"s_sub_u32 s2, s2, {NA}")
KSTG = 35072
UB = 2 * KR_STRIDE
I("s_lshl_b32 s3, s2, 10")
I("v_lshl_add_u32 v1, v0, 1, s3")
I("s_lshl_b32 s16, s2, 2")
I("v_mov_b32 v7, s16")
I("s_mov_b32 s20, 0x3fb8aa3b")
I("s_mov_b32 s21, 0x32a57060")
I("s_mov_b32 s22, 0x3f317218")
I("s_mov_b32 s23, 0x3e22f983")
I("s_mov_b32 s24, 0x31dc9c88")
I("s_waitcnt lgkmcnt(0)")
for ch in range(2):
    rb = 140 + 5 * ch
    I(f"global_load_ushort v{rb}, v1, s[6:7] offset:{512*ch}")
    I(f"global_load_ushort v{rb+1}, v1, s[8:9] offset:{512*ch}")
    I(f"global_load_ushort v{rb+2}, v1, s[10:11] offset:{512*ch}")
    I(f"global_load_ushort v{rb+3}, v1, s[12:13] offset:{512*ch}")
    I(f"global_load_ushort v{rb+4}, v7, s[14:15] offset:{2*ch}")
I("s_mov_b32 s74, 0")
I("v_mov_b32 v60, 0x80")
for g in range(2):
    es = [4 * g + k for k in range(4)]
    A_, B_, C_, D_, F_ = 10, 14, 48, 52, 56

    def col(fmt):
        for k, e in enumerate(es):
            I(fmt.format(a=A_ + k, b=B_ + k, c=C_ + k, d=D_ + k, f=F_ + k, e=e, o=160 + e))
    col("v_lshl_add_u32 v{a}, v0, 3, {e}")
    col("v_cvt_f32_u32 v{a}, v{a}")
    col("v_cvt_pk_bf16_f32 v{a}, v{a}, v{a}")
    col("v_bfe_u32 v{b}, v{a}, 7, 8")
    col("v_lshlrev_b32 v{a}, 16, v{a}")
    col("v_subrev_u32 v{b}, 134, v{b}")
    col("v_cvt_u32_f32 v{a}, v{a}")
    col("v_med3_i32 v{b}, v{b}, 0, 3")
    col("v_lshlrev_b32 v{c}, v{b}, v60")
    col("v_sub_u32 v{f}, 3, v{b}")
    col("v_and_b32 v{c}, 0xffffff00, v{c}")
    col("v_sub_u32 v{a}, v{a}, v{c}")
    col("v_and_b32 v{c}, 7, v{a}")
    col("v_lshrrev_b32 v{d}, 7, v{a}")
    col("v_lshrrev_b32 v{c}, v{b}, v{c}")
    col("v_lshlrev_b32 v{d}, v{f}, v{d}")
    col("v_bfe_u32 v{a}, v{a}, 3, 4")
    col("v_add_u32 v{c}, v{c}, v{d}")
    col("v_min_u32 v{d}, 1, v{b}")
    col("v_lshl_add_u32 v{c}, v{c}, 4, v{a}")
    col("v_add_u32 v{d}, v{d}, v{b}")
    col("v_lshl_add_u32 v{c}, v{d}, 7, v{c}")
    col("v_lshlrev_b32 v{o}, 2, v{c}")
I("s_waitcnt vmcnt(0)")
L("B_kloop")
KMARK(0)
for k, r in enumerate((2, 3, 4, 5, 6)):
    I(f"v_lshlrev_b32 v{r}, 16, v{140+k}")


def exp_acc(dst, x, t0, t1):
    I(f"v_mul_f32 v{t0}, s20, v{x}")
    I(f"v_fma_f32 v{t1}, v{x}, s20, -v{t0}")
    I(f"v_fma_f32 v{t1}, v{x}, s21, v{t1}")
    I(f"v_exp_f32 v{dst}, v{t0}")
    I(f"v_mul_f32 v{t1}, s22, v{t1}")
    I(f"v_fma_f32 v{dst}, v{dst}, v{t1}, v{dst}")


exp_acc(8, 6, 10, 11)
bf16r(8, 8)
exp_acc(9, 2, 10, 11)
bf16r(9, 9)
I("v_mul_f32 v9, v9, v8")
I("v_mul_f32 v12, s20, v9")
I("v_sub_f32 v12, 0, v12")
I("v_mul_f32 v3, v3, v8")
I("v_mul_f32 v13, s23, v3")
I("v_fma_f32 v14, v3, s23, -v13")
I("v_fma_f32 v14, v3, s24, v14")
I("v_rndne_f32 v10, v13")
I("v_sub_f32 v10, v13, v10")
I("v_and_b32 v13, 0xffffff00, v10")
I("v_sub_f32 v10, v10, v13")
I("v_add_f32 v14, v10, v14")
I("v_mul_f32 v15, v4, v8")
I("v_add_f32 v15, v15, v15")
I("v_mul_f32 v16, v5, v8")
I("v_add_f32 v16, v16, v16")
WREG = 8704
LOO = 4352
I("v_and_b32 v2, 15, v0")
I("v_bfe_u32 v3, v0, 4, 2")
I("v_lshrrev_b32 v6, 6, v0")
I(f"v_mul_u32_u24 v6, {WREG}, v6")
I(f"v_add_u32 v6, {KSTG}, v6")
I("v_and_b32 v4, 63, v0")
I("v_lshl_add_u32 v4, v4, 3, v6")
I("v_mul_u32_u24 v5, 528, v2")
I("v_lshl_add_u32 v5, v3, 4, v5")
I("v_add_u32 v5, v5, v6")


def cexp_ops(p, d, t):
    return [f"v_mul_f32 v{t}, {p}, v12",
            f"v_mul_f32 v{t+1}, {p}, v13",
            f"v_exp_f32 v{t}, v{t}",
            f"v_fract_f32 v{t+1}, v{t+1}",
            f"v_mov_b32 v{d}, {p}",
            f"v_fma_f32 v{t+1}, v{d}, v14, v{t+1}",
            f"v_cos_f32 v{d}, v{t+1}",
            f"v_sin_f32 v{d+1}, v{t+1}",
            "s_nop 0",
            f"v_mul_f32 v{d}, v{d}, v{t}",
            f"v_mul_f32 v{d+1}, v{d+1}, v{t}"]


def cmul_ops(d, a, b):
    return [f"v_mul_f32 v{d}, v{a}, v{b}",
            f"v_mul_f32 v{d+1}, v{a}, v{b+1}",
            f"v_fma_f32 v{d}, -v{a+1}, v{b+1}, v{d}",
            f"v_fma_f32 v{d+1}, v{a+1}, v{b}, v{d+1}"]


def split_ops(v, row, t, neg=False):
    n = "-" if neg else ""
    return [f"v_cvt_pk_bf16_f32 v{t}, v{v}, {n}v{v+1}",
            f"v_lshlrev_b32 v{t+1}, 16, v{t}",
            f"v_and_b32 v{t+2}, 0xffff0000, v{t}",
            f"v_sub_f32 v{t+1}, v{v}, v{t+1}",
            f"v_sub_f32 v{t+2}, {n}v{v+1}, v{t+2}",
            f"v_cvt_pk_bf16_f32 v{t+1}, v{t+1}, v{t+2}",
            f"ds_write_b64 v4, v[{t}:{t+1}] offset:{row*528}"]


ZQ = lambda q: 20 + 2 * q
EJ = lambda j: 40 + 2 * j
Z128 = 18
BH, BL = 72, 200
AF = 40
ACC = 124
GT = [104, 106, 108, 110]
ST = [112, 116, 120, 136]
KMARK(1)
interleave([cexp_ops("1.0", ZQ(1), 104), cexp_ops("0x41000000", EJ(1), 106), cexp_ops("0x43000000", Z128, 108)])
I("v_mov_b32 v40, 1.0")
I("v_mov_b32 v41, 0")
interleave([cmul_ops(EJ(2), EJ(1), EJ(1)), cmul_ops(ZQ(2), ZQ(1), ZQ(1)), split_ops(40, 0, ST[0], True), split_ops(EJ(1), 1, ST[1], True)])
interleave([cmul_ops(EJ(3), EJ(2), EJ(1)), cmul_ops(EJ(4), EJ(2), EJ(2)), cmul_ops(ZQ(3), ZQ(2), ZQ(1)), cmul_ops(ZQ(4), ZQ(2), ZQ(2)), split_ops(EJ(2), 2, ST[0], True)])
interleave([cmul_ops(EJ(5), EJ(4), EJ(1)), cmul_ops(EJ(6), EJ(3), EJ(3)), cmul_ops(EJ(7), EJ(4), EJ(3)), cmul_ops(EJ(8), EJ(4), EJ(4)),
            split_ops(EJ(3), 3, ST[0], True), split_ops(EJ(4), 4, ST[1], True)])
interleave([cmul_ops(ZQ(5), ZQ(4), ZQ(1)), cmul_ops(ZQ(6), ZQ(3), ZQ(3)), cmul_ops(ZQ(7), ZQ(4), ZQ(3)),
            cmul_ops(EJ(9), EJ(8), EJ(1)), cmul_ops(EJ(10), EJ(8), EJ(2)), cmul_ops(EJ(11), EJ(8), EJ(3)),
            split_ops(EJ(5), 5, ST[0], True), split_ops(EJ(6), 6, ST[1], True)])
interleave([cmul_ops(EJ(12), EJ(8), EJ(4)), cmul_ops(EJ(13), EJ(8), EJ(5)), cmul_ops(EJ(14), EJ(8), EJ(6)), cmul_ops(EJ(15), EJ(8), EJ(7)),
            split_ops(EJ(7), 7, ST[0], True), split_ops(EJ(8), 8, ST[1], True), split_ops(EJ(9), 9, ST[2], True), split_ops(EJ(10), 10, ST[3], True)])
interleave([split_ops(EJ(11 + k), 11 + k, ST[k], True) for k in range(4)])
interleave([split_ops(EJ(15), 15, ST[0], True), cmul_ops(38, 15, Z128)])
I("v_mov_b32 v36, v15")
I("v_mov_b32 v37, v16")
I("s_waitcnt lgkmcnt(0)")
for sidx in range(8):
    I(f"ds_read_b128 v[{AF+4*sidx}:{AF+4*sidx+3}], v5 offset:{64*sidx}")
I("s_waitcnt lgkmcnt(0)")
for sidx in range(8):
    r_ = AF + 4 * sidx
    I(f"v_mov_b32 v{BH+4*sidx}, v{r_}")
    I(f"v_mov_b32 v{BH+4*sidx+1}, v{r_}")
    I(f"v_mov_b32 v{BH+4*sidx+2}, v{r_+2}")
    I(f"v_mov_b32 v{BH+4*sidx+3}, v{r_+2}")
    I(f"v_mov_b32 v{BL+4*sidx}, v{r_+1}")
    I(f"v_mov_b32 v{BL+4*sidx+1}, v{r_+1}")
    I(f"v_mov_b32 v{BL+4*sidx+2}, v{r_+3}")
    I(f"v_mov_b32 v{BL+4*sidx+3}, v{r_+3}")
KMARK(2)
CR_ = [36, 38, 6, 8, 10]
CK = lambda k: CR_[k % 5] if k < 8 else 170 + 2 * (k - 8)


def rowval(k, q, row, gi):
    if q == 0:
        return split_ops(CK(k), row, ST[gi])
    return cmul_ops(GT[gi], CK(k), ZQ(q)) + split_ops(GT[gi], row, ST[gi])


def tile_mfma(t):
    I("s_waitcnt lgkmcnt(0)")
    for sidx in range(8):
        I(f"ds_read_b128 v[{AF+4*sidx}:{AF+4*sidx+3}], v5 offset:{64*sidx}")
    acc = ACC + 4 * t
    out = []
    for sidx in range(8):
        a_ = AF + 4 * sidx
        for y in (BH + 4 * sidx, BL + 4 * sidx):
            src = "0" if (sidx == 0 and y == BH) else f"v[{acc}:{acc+3}]"
            out.append(f"v_mfma_f32_16x16x32_bf16 v[{acc}:{acc+3}], v[{a_}:{a_+3}], v[{y}:{y+3}], {src}")
    return out


def run_rows(rows_, extra):
    for g in range(0, len(rows_), 4):
        ch = [rowval(k, q, row, gi) for gi, (k, q, row) in enumerate(rows_[g:g + 4])]
        if extra:
            ch.append(extra.pop(0))
        interleave(ch)
    for e in extra:
        interleave([e])


run_rows([(kap, q, q + 8 * kap) for kap in (0, 1) for q in range(8)],
         [cmul_ops(CK(k), CK(k - 1), Z128) for k in (2, 3, 4)])
mf = tile_mfma(0)
I("s_waitcnt lgkmcnt(0)")
KMARK(3)
r1 = [(2 + kp, q, q // 2 + 4 * kp) for kp in (0, 1) for q in (0, 2, 4, 6)]
r1b = [(4 + kp, q, 8 + q // 4 + 2 * kp) for kp in range(4) for q in (0, 4)]
interleave([mf[:8]] + [rowval(k, q, row, gi) for gi, (k, q, row) in enumerate(r1[:4])])
interleave([mf[8:]] + [rowval(k, q, row, gi) for gi, (k, q, row) in enumerate(r1[4:])] + [cmul_ops(CK(5), CK(4), Z128)])
interleave([rowval(k, q, row, gi) for gi, (k, q, row) in enumerate(r1b[:4])] + [cmul_ops(CK(6), CK(5), Z128) + cmul_ops(CK(7), CK(6), Z128)])
interleave([rowval(k, q, row, gi) for gi, (k, q, row) in enumerate(r1b[4:])] + [sum([cmul_ops(CK(k), CK(k - 1), Z128) for k in (8, 9, 10)], [])])
mf = tile_mfma(1)
I("s_waitcnt lgkmcnt(0)")
KMARK(4)
interleave([split_ops(CK(8 + r), r, ST[r]) for r in range(3)] + [sum([cmul_ops(CK(k), CK(k - 1), Z128) for k in (11, 12, 13)], []), mf[:8]])
interleave([split_ops(CK(11 + r), 3 + r, ST[r]) for r in range(3)] + [sum([cmul_ops(CK(k), CK(k - 1), Z128) for k in (14, 15, 16)], []), mf[8:]])
interleave([split_ops(CK(14 + r), 6 + r, ST[r]) for r in range(3)])
mf = tile_mfma(2)
I("s_waitcnt lgkmcnt(0)")
for m in mf:
    I(m)
I("s_nop 7")
I("s_nop 1")
I("v_lshrrev_b32 v19, 6, v0")
I(f"v_mul_u32_u24 v19, {WREG}, v19")
I("v_lshl_add_u32 v19, v3, 8, v19")
I("v_lshl_add_u32 v19, v2, 2, v19")
for t in range(3):
    for r in range(4):
        I(f"ds_write_b32 v19, v{ACC+4*t+r} offset:{KSTG + t*1024 + r*64}")
I("s_waitcnt lgkmcnt(0)")
I("s_barrier")
KMARK(5)
for e in range(8):
    for w in range(4):
        I(f"ds_read_b32 v{16 + 4*e + w}, v{160+e} offset:{KSTG + w*8704}")
    if e == 3:
        I("s_waitcnt lgkmcnt(0)")
I("s_waitcnt lgkmcnt(0)")
for e in range(8):
    b = 16 + 4 * e
    I(f"v_add_f32 v{b}, v{b}, v{b+1}")
    I(f"v_add_f32 v{b+2}, v{b+2}, v{b+3}")
    I(f"v_add_f32 v{b}, v{b}, v{b+2}")
for j in range(4):
    ka, kb = 16 + 4 * (7 - 2 * j), 16 + 4 * (6 - 2 * j)
    I(f"v_cvt_pk_bf16_f32 v{48+j}, v{ka}, v{kb}")
    I(f"v_lshlrev_b32 v10, 16, v{48+j}")
    I(f"v_and_b32 v11, 0xffff0000, v{48+j}")
    I(f"v_sub_f32 v10, v{ka}, v10")
    I(f"v_sub_f32 v11, v{kb}, v11")
    I(f"v_cvt_pk_bf16_f32 v{52+j}, v10, v11")
I("v_lshlrev_b32 v10, 4, v0")
I("v_sub_u32 v10, 4080, v10")
I("v_add_u32 v10, s74, v10")
I("ds_write_b128 v10, v[48:51]")
I("ds_write_b128 v10, v[52:55] offset:4608")
I("v_cmp_gt_u32 vcc, 64, v0")
I("s_and_saveexec_b64 s[18:19], vcc")
I("v_and_b32 v10, 31, v0")
I("v_lshlrev_b32 v10, 4, v10")
I("v_lshrrev_b32 v11, 5, v0")
I("v_mul_u32_u24 v11, 4608, v11")
I("v_add3_u32 v10, v10, v11, s74")
for r in range(12, 16):
    I(f"v_mov_b32 v{r}, 0")
I("ds_write_b128 v10, v[12:15] offset:4096")
I("s_mov_b64 exec, s[18:19]")
I("s_waitcnt lgkmcnt(0)")
I("s_barrier")
KMARK(6)
for k in range(5):
    I(f"v_mov_b32 v{140+k}, v{145+k}")
I(f"s_add_u32 s74, s74, {KR_STRIDE}")
I(f"s_cmp_eq_u32 s74, {2*KR_STRIDE}")
I("s_cbranch_scc1 B_kdone")
MARK(0)
I(f"s_mov_b32 s76, {LNF}")
I(f"s_mov_b32 s77, {LNF + 256}")
if not os.environ.get("NOA"):
    wait_flags([(76, 64), (77, 64)])
I("v_and_b32 v1, 15, v0")
I("v_bfe_u32 v2, v0, 4, 2")
I("v_lshrrev_b32 v3, 6, v0")
I("s_lshr_b32 s6, s2, 4")
I("s_lshl_b32 s6, s6, 10")
I("s_lshr_b32 s7, s2, 2")
I("s_and_b32 s7, s7, 3")
I("s_lshl_b32 s7, s7, 8")
I("s_add_u32 s6, s6, s7")
I("s_and_b32 s7, s2, 3")
I("s_lshl_b32 s7, s7, 2")
I("s_add_u32 s6, s6, s7")
I("s_add_u32 s6, s64, s6")
I("s_addc_u32 s7, s65, 0")
I("v_lshrrev_b32 v4, 4, v0")
I("v_mul_u32_u24 v4, 14336, v4")
I("v_lshl_add_u32 v4, v1, 4, v4")
for j in range(8):
    if j:
        I(f"v_add_u32 v4, {16*14336}, v4")
    I(f"global_load_dword v{190+j}, v4, s[6:7] sc1")
I("s_branch B_kloop")
L("B_kdone")
I(f"s_setprio {os.environ.get('PRIO_C', '3')}")
MARK(1)
I("v_and_b32 v1, 15, v0")
I("v_bfe_u32 v2, v0, 4, 2")
I("v_lshrrev_b32 v3, 6, v0")
I("v_lshlrev_b32 v5, 1, v0")
I("v_cmp_gt_u32 vcc, 16, v0")
I("s_and_saveexec_b64 s[18:19], vcc")
I("v_mov_b32 v8, 0")
for q in range(4):
    I(f"ds_write_b16 v5, v8 offset:{UB + q*XNT_STRIDE}")
I("s_mov_b64 exec, s[18:19]")
I("s_waitcnt lgkmcnt(0)")
I("s_barrier")
for j in range(8):
    I(f"s_waitcnt vmcnt({7-j})")
    o = UB + 512 * j
    I(f"ds_write_b16 v5, v{190+j} offset:{o + 32}")
    I(f"ds_write_b16 v5, v{190+j} offset:{o + XNT_STRIDE + 30}")
    I(f"ds_write_b16_d16_hi v5, v{190+j} offset:{o + 2*XNT_STRIDE + 32}")
    I(f"ds_write_b16_d16_hi v5, v{190+j} offset:{o + 3*XNT_STRIDE + 30}")
I("s_waitcnt lgkmcnt(0)")
I("s_barrier")
MARK(2)
I("v_lshrrev_b32 v4, 1, v3")
I("v_lshl_add_u32 v5, v2, 3, v1")
I("v_add_u32 v5, 1, v5")
I("v_and_b32 v7, 1, v5")
I("v_sub_u32 v5, v5, v7")
I("v_lshlrev_b32 v5, 1, v5")
I(f"v_mul_u32_u24 v7, {XNT_STRIDE}, v7")
I("v_add_u32 v5, v5, v7")
I(f"v_mul_u32_u24 v7, {2*XNT_STRIDE}, v4")
I("v_add_u32 v5, v5, v7")
I("v_and_b32 v7, 1, v3")
I("v_lshl_add_u32 v5, v7, 8, v5")
I(f"v_add_u32 v232, {UB}, v5")
for c in range(1, 8):
    I(f"v_add_u32 v{232+c}, {512*c}, v232")
I(f"v_mul_u32_u24 v6, {KR_STRIDE}, v4")
I("v_lshl_add_u32 v6, v2, 4, v6")
I("v_lshl_add_u32 v6, v7, 8, v6")
I("v_lshlrev_b32 v7, 5, v1")
I("v_sub_u32 v6, v6, v7")
I("v_add_u32 v6, 480, v6")
CA0 = 8
CBUF = 40


def creads(r):
    bb = CBUF + 96 * (r & 1)
    out = []
    for c in range(8):
        out.append(f"ds_read2_b32 v[{bb+4*c}:{bb+4*c+1}], v{232+c} offset0:{16*r} offset1:{16*r+1}")
        out.append(f"ds_read2_b32 v[{bb+4*c+2}:{bb+4*c+3}], v{232+c} offset0:{16*r+2} offset1:{16*r+3}")
    for n in range(8):
        o = 3584 - 512 * n + 64 * r
        out.append(f"ds_read_b128 v[{bb+32+8*n}:{bb+32+8*n+3}], v6 offset:{o}")
        out.append(f"ds_read_b128 v[{bb+36+8*n}:{bb+36+8*n+3}], v6 offset:{o+4608}")
    return out


for x in creads(0):
    I(x)
for r in range(4):
    I("s_waitcnt lgkmcnt(0)")
    nxt = creads(r + 1) if r < 3 else []
    bb = CBUF + 96 * (r & 1)
    mf = []
    for T in range(8):
        acc = CA0 + 4 * T
        for c in range(T + 1):
            n = T - c
            first = (r == 0 and c == 0)
            src = "0" if first else f"v[{acc}:{acc+3}]"
            mf.append(f"v_mfma_f32_16x16x32_bf16 v[{acc}:{acc+3}], v[{bb+4*c}:{bb+4*c+3}], v[{bb+32+8*n}:{bb+32+8*n+3}], {src}")
            mf.append(f"v_mfma_f32_16x16x32_bf16 v[{acc}:{acc+3}], v[{bb+4*c}:{bb+4*c+3}], v[{bb+36+8*n}:{bb+36+8*n+3}], v[{acc}:{acc+3}]")
    k = 0
    for idx, m in enumerate(mf):
        I(m)
        if k < len(nxt) and idx % 2 == 1:
            I(nxt[k]); k += 1
    while k < len(nxt):
        I(nxt[k]); k += 1
I("s_barrier")
I("v_and_b32 v5, 63, v0")
I("v_lshlrev_b32 v5, 4, v5")
I("v_lshl_add_u32 v6, v3, 12, v5")
I("v_xor_b32 v7, 1, v3")
I("v_lshl_add_u32 v5, v7, 12, v5")
I("s_lshl_b32 s10, s2, 13")
I(f"s_add_u32 s10, s10, {WS_YT}")
I("s_add_u32 s10, s64, s10")
I("s_addc_u32 s11, s65, 0")
I("v_lshlrev_b32 v7, 12, v4")
I("v_lshl_add_u32 v7, v1, 5, v7")
I("v_lshl_add_u32 v7, v2, 3, v7")
I("s_lshl_b32 s74, s2, 2")
I(f"s_add_u32 s74, s74, {YF}")
I("s_and_b32 s9, s69, 1")
I("s_cmp_eq_u32 s9, 1")
I("s_cbranch_scc1 B_cv1")
for h in range(2):
    if h:
        L("B_cv1")
    keep = [4 * h + j for j in range(4)]
    give = [4 * (1 - h) + j for j in range(4)]
    for j, T in enumerate(give):
        I(f"ds_write_b128 v6, v[{CA0+4*T}:{CA0+4*T+3}] offset:{1024*j}")
    I("s_waitcnt lgkmcnt(0)")
    I("s_barrier")
    for j in range(4):
        I(f"ds_read_b128 v[{40+4*j}:{43+4*j}], v5 offset:{1024*j}")
    I("s_waitcnt lgkmcnt(0)")
    for j, T in enumerate(keep):
        acc = CA0 + 4 * T
        for r_ in range(4):
            I(f"v_add_f32 v{acc+r_}, v{acc+r_}, v{40+4*j+r_}")
        I(f"v_cvt_pk_bf16_f32 v{56+2*j}, v{acc}, v{acc+1}")
        I(f"v_cvt_pk_bf16_f32 v{57+2*j}, v{acc+2}, v{acc+3}")
        I(f"global_store_dwordx2 v7, v[{56+2*j}:{57+2*j}], s[10:11] offset:{512*T} sc1")
    if h == 0:
        I("s_branch B_pub")
L("B_pub")
MARK(3)
publish(74)
I("s_endpgm")
L("X_exit")
lines.append("    s_endpgm")

E('.section .rodata,"a"')
E(".p2align 6")
E(f".amdhsa_kernel {NAME}_kernel")
E("  .amdhsa_next_free_vgpr 256")
E("  .amdhsa_next_free_sgpr 96")
E("  .amdhsa_accum_offset 256")
E("  .amdhsa_group_segment_fixed_size 0")
E("  .amdhsa_kernarg_size 104")
E("  .amdhsa_user_sgpr_count 2")
E("  .amdhsa_user_sgpr_kernarg_segment_ptr 1")
E("  .amdhsa_system_sgpr_workgroup_id_x 1")
E("  .amdhsa_float_denorm_mode_32 3")
E(".end_amdhsa_kernel")
open(OUT, "w").write("\n".join(lines) + "\n")
print("wrote", OUT, len(lines), "lines")
```

```python
import sys, os

NAME = "recurrent_scan__ssm_conv_s4d__dense_activation_relu__prompt"
OUT = sys.argv[1] if len(sys.argv) > 1 else f"cdna_kernels/{NAME}.s"
STAMP = int(os.environ.get("STAMP", "0"))

WS_XN = 0x0000000
WS_XNT = 0x0200000
XNT_STRIDE = 4160
KR_STRIDE = 9216
if os.environ.get("COMPACT"):
    WS_FLG = 0x01C0000
    WS_W1T = 0x01C4000
    WS_W2T = WS_W1T + 0x188000
    WS_YT = WS_W2T + 0x188000
    WS_H = WS_YT + 0x1C0000
else:
    WS_W1T = 0x0400000
    WS_W2T = 0x0600000
    WS_H = 0x1000000
    WS_YT = 0x1800000
    WS_FLG = 0x1C00000
LNF, W1F, W2F, HF, YF, LNF2, DUMMYF = 0, 1024, 2048, 3072, 4096, 5120, 6144

NA, NB = 224, 224
GRID = NA + NB
LDS = 70144

lines = []


def E(s=""):
    lines.append(s)


DSTAMP = int(os.environ.get("DSTAMP", "0"))


def I(s):
    if DSTAMP and s == "s_endpgm":
        lb = uid("DS")
        for x in ("s_cmp_lg_u32 s69, 0", f"s_cbranch_scc1 {lb}",
                  "s_mov_b64 exec, 1", "s_memrealtime s[34:35]", "s_waitcnt vmcnt(0) lgkmcnt(0)",
                  "v_mov_b32 v1, 8", "v_mov_b32 v2, s34", "global_atomic_umax v1, v2, s[66:67]",
                  "s_cmp_lg_u32 s28, 0", f"s_cbranch_scc1 {lb}",
                  "v_mov_b32 v1, 4", "v_mov_b32 v2, s30", "global_store_dword v1, v2, s[66:67]"):
            lines.append("    " + x)
        lines.append(lb + ":")
    if STAMP and s == "s_endpgm":
        for x in ("s_mov_b64 exec, -1",
                  "s_memrealtime s[34:35]", "s_memtime s[36:37]",
                  "s_waitcnt vmcnt(0) lgkmcnt(0)",
                  f"s_add_u32 s38, s64, {0x2000000}", "s_addc_u32 s39, s65, 0",
                  "s_lshl_b32 s2, s28, 2", "s_add_u32 s2, s2, s69", "s_lshl_b32 s2, s2, 5", "v_mov_b32 v1, s2",
                  "v_mov_b32 v4, s30", "v_mov_b32 v5, s31", "v_mov_b32 v6, s34", "v_mov_b32 v7, s35",
                  "v_mov_b32 v8, s32", "v_mov_b32 v9, s33", "v_mov_b32 v10, s36", "v_mov_b32 v11, s37",
                  "global_store_dwordx4 v1, v[4:7], s[38:39]", "global_store_dwordx4 v1, v[8:11], s[38:39] offset:16",
                  "v_mov_b32 v4, s40", "v_mov_b32 v5, s42", "v_mov_b32 v6, s44", "v_mov_b32 v7, s46",
                  "v_mov_b32 v8, s48", "v_mov_b32 v9, s50", "v_mov_b32 v10, s52", "v_mov_b32 v11, s54",
                  "v_add_u32 v1, 0x100000, v1",
                  "global_store_dwordx4 v1, v[4:7], s[38:39]", "global_store_dwordx4 v1, v[8:11], s[38:39] offset:16"):
            lines.append("    " + x)
    lines.append("    " + s)


def KMARK(n):
    if STAMP and os.environ.get("KM"):
        lines.append(f"    s_memtime s[{40+2*n}:{41+2*n}]")


def MARK(n):
    if STAMP and not os.environ.get("KM"):
        lines.append(f"    s_memtime s[{40+2*n}:{41+2*n}]")


def L(lbl):
    lines.append(lbl + ":")


_uid = [0]


def uid(p):
    _uid[0] += 1
    return f"{p}_{_uid[0]}"


def interleave(chains):
    chains = [list(c) for c in chains]
    while any(chains):
        for c in chains:
            if c:
                I(c.pop(0))


def bf16r(dst, src):
    I(f"v_cvt_pk_bf16_f32 v{dst}, v{src}, v{src}")
    I(f"v_lshlrev_b32 v{dst}, 16, v{dst}")


def get_nonce():
    a, b = uid("N_poll"), uid("N_ok")
    I("s_cmp_lg_u32 s68, 0")
    I(f"s_cbranch_scc1 {b}")
    I("s_waitcnt vmcnt(0)")
    I("v_readfirstlane_b32 s68, v255")
    I("s_cmp_lg_u32 s68, 0")
    I(f"s_cbranch_scc1 {b}")
    I(f"v_mov_b32 v253, {128 if DSTAMP else 0}")
    L(a)
    I("global_load_dword v254, v253, s[66:67] sc1")
    I("s_waitcnt vmcnt(0)")
    I("v_readfirstlane_b32 s68, v254")
    I("s_cmp_lg_u32 s68, 0")
    I(f"s_cbranch_scc1 {b}")
    I("s_sleep 4")
    I(f"s_branch {a}")
    L(b)


def publish(*soffs):
    e = uid("PB_end")
    I("s_waitcnt vmcnt(0) lgkmcnt(0)")
    I("s_barrier")
    I("s_cmp_lg_u32 s69, 0")
    I(f"s_cbranch_scc1 {e}")
    get_nonce()
    I("v_mov_b32 v254, s68")
    I("s_mov_b64 s[72:73], exec")
    I("s_mov_b64 exec, 1")
    for soff in soffs:
        I(f"v_mov_b32 v253, s{soff}")
        I("global_store_dword v253, v254, s[70:71] sc1")
    I("s_mov_b64 exec, s[72:73]")
    L(e)


def wait_flags(specs, first_sleep=0):
    e = uid("W_end")
    I("s_cmp_lg_u32 s69, 0")
    I(f"s_cbranch_scc1 {e}")
    get_nonce()
    if first_sleep:
        I(f"s_sleep {first_sleep}")
    for (soff, n) in specs:
        a, b = uid("W_poll"), uid("W_ok")
        I("v_and_b32 v253, 63, v0")
        I(f"v_min_u32 v253, {n-1}, v253")
        I(f"v_lshl_add_u32 v253, v253, 2, s{soff}")
        L(a)
        I("global_load_dword v254, v253, s[70:71] sc1")
        I("s_waitcnt vmcnt(0)")
        I("v_cmp_ne_u32 vcc, s68, v254")
        I("s_cmp_eq_u64 vcc, 0")
        I(f"s_cbranch_scc1 {b}")
        I("s_sleep 3")
        I(f"s_branch {a}")
        L(b)
    L(e)
    I("s_barrier")


HEADER = open(f"cdna_kernels/{NAME}.s.ref").read().split("; Override launch")[0]
E(HEADER.rstrip("\n"))
E(f"; @launch grid=({GRID},1,1) block=(256,1,1) lds={LDS}")
E('.amdgcn_target "amdgcn-amd-amdhsa--gfx950"')
E(".text")
E(f".globl {NAME}_kernel")
E(".p2align 8")
E(f".type {NAME}_kernel,@function")
L(f"{NAME}_kernel")
I(f"s_cmp_ge_u32 s2, {GRID}")
I("s_cbranch_scc1 X_exit")
I("s_mov_b32 s28, s2")
if DSTAMP:
    I("s_memrealtime s[30:31]")
if STAMP:
    I("s_memrealtime s[30:31]")
    I("s_memtime s[32:33]")
I("s_load_dwordx16 s[4:19], s[0:1], 0")
I("s_load_dwordx8 s[56:63], s[0:1], 64")
I("s_load_dwordx2 s[64:65], s[0:1], 96")
I("v_readfirstlane_b32 s69, v0")
I("s_lshr_b32 s69, s69, 6")
I("s_mov_b32 s68, 0")
I("s_waitcnt lgkmcnt(0)")
I("s_mov_b32 s66, s62")
I("s_mov_b32 s67, s63")
I(f"s_add_u32 s70, s64, {WS_FLG}")
I("s_addc_u32 s71, s65, 0")
I("s_or_b32 s72, s2, s69")
I("s_cmp_lg_u32 s72, 0")
I("s_cbranch_scc1 X_nononce")
I("s_memrealtime s[72:73]")
I("s_waitcnt lgkmcnt(0)")
I("s_or_b32 s68, s72, 1")
I(f"v_mov_b32 v253, {128 if DSTAMP else 0}")
I("v_mov_b32 v254, s68")
I("s_mov_b64 exec, 1")
I("global_store_dword v253, v254, s[66:67] sc1")
I("s_mov_b64 exec, -1")
L("X_nononce")
I(f"v_mov_b32 v253, {128 if DSTAMP else 0}")
I("global_load_dword v255, v253, s[66:67] sc1")
I(f"s_cmp_ge_u32 s2, {NA}")
I("s_cbranch_scc1 B_start")

if os.environ.get("NOA"):
    I("s_branch X_exit")
I(f"s_setprio {os.environ.get('PRIO_A', '3')}")
I("s_cmp_ge_u32 s2, 128")
I("s_cbranch_scc1 A_wtonly")
I("s_mov_b32 s14, s64")
I("s_mov_b32 s15, s65")
I("s_mov_b32 s3, s2")
I("v_lshrrev_b32 v1, 6, v0")
I("v_and_b32 v2, 63, v0")
I("s_lshl_b32 s6, s3, 4")
I("v_lshl_add_u32 v3, v1, 2, s6")
I("v_mul_u32_u24 v3, 896, v3")
I("v_lshl_add_u32 v3, v2, 4, v3")
I("s_mul_i32 s7, s3, 14336")
I("v_lshrrev_b32 v29, 2, v2")
I("v_lshlrev_b32 v29, 10, v29")
I("v_and_b32 v28, 3, v2")
I("v_lshl_add_u32 v29, v28, 8, v29")
I("v_lshl_add_u32 v29, v1, 6, v29")
I("s_mov_b32 s20, 0x3b124925")
I("s_mov_b32 s21, 0x43e00000")
I("s_mov_b32 s22, 0x3727c5ac")
for r in range(8, 24):
    I(f"v_mov_b32 v{r}, 0")
I("s_mov_b64 s[16:17], exec")
I("s_mov_b32 s18, -1")
I("s_mov_b32 s19, 0x00ffffff")
I("s_waitcnt lgkmcnt(0)")
I("s_mov_b64 exec, s[18:19]")
for k in range(4):
    I(f"global_load_dwordx4 v[{8+4*k}:{11+4*k}], v3, s[4:5] offset:{896*k}")
I("s_mov_b64 exec, s[16:17]")
I("s_waitcnt vmcnt(0)")
for k in range(4):
    for j in range(4):
        I(f"v_lshlrev_b32 v{32+8*k+2*j}, 16, v{8+4*k+j}")
        I(f"v_and_b32 v{33+8*k+2*j}, 0xffff0000, v{8+4*k+j}")


def rows(fmt, **kw):
    for k in range(4):
        b = 32 + 8 * k
        I(fmt.format(k=k, s=8 + k, t=12 + k, m=16 + k, u=20 + k, w=64 + k, x=68 + k, sg=24 + k,
                     b0=b, b1=b + 1, b2=b + 2, b3=b + 3, b4=b + 4, b5=b + 5, b6=b + 6, b7=b + 7, **kw))


def dpp4():
    for sh in (1, 2, 4, 8):
        rows("v_add_f32_dpp v{s}, v{s}, v{s} row_shr:%d row_mask:0xf bank_mask:0xf bound_ctrl:0" % sh)
    rows("v_add_f32_dpp v{s}, v{s}, v{s} row_bcast:15 row_mask:0xa bank_mask:0xf")
    rows("v_add_f32_dpp v{s}, v{s}, v{s} row_bcast:31 row_mask:0xc bank_mask:0xf")
    rows("v_readlane_b32 s{sg}, v{s}, 63")


rows("v_add_f32 v{s}, v{b0}, v{b1}")
rows("v_add_f32 v{t}, v{b2}, v{b3}")
rows("v_add_f32 v{m}, v{b4}, v{b5}")
rows("v_add_f32 v{u}, v{b6}, v{b7}")
rows("v_add_f32 v{s}, v{s}, v{t}")
rows("v_add_f32 v{m}, v{m}, v{u}")
rows("v_add_f32 v{s}, v{s}, v{m}")
dpp4()
rows("v_mov_b32 v{t}, s{sg}")
rows("v_mul_f32 v{m}, s20, v{t}")
rows("v_fma_f32 v{u}, -v{m}, s21, v{t}")
rows("v_fma_f32 v{m}, v{u}, s20, v{m}")
rows("v_mov_b32 v{s}, 0")
I("s_mov_b64 exec, s[18:19]")
for j in range(8):
    rows("v_sub_f32 v{t}, v{bj}, v{m}".replace("{bj}", "{b%d}" % j))
    rows("v_fmac_f32 v{s}, v{t}, v{t}")
I("s_mov_b64 exec, s[16:17]")
I("s_nop 1")
dpp4()
rows("v_mov_b32 v{t}, s{sg}")
rows("v_mul_f32 v{u}, s20, v{t}")
rows("v_fma_f32 v{w}, -v{u}, s21, v{t}")
rows("v_fma_f32 v{u}, v{w}, s20, v{u}")
rows("v_cvt_pk_bf16_f32 v{u}, v{u}, v{u}")
rows("v_cvt_pk_bf16_f32 v{m}, v{m}, v{m}")
rows("v_lshlrev_b32 v{u}, 16, v{u}")
rows("v_lshlrev_b32 v{m}, 16, v{m}")
rows("v_add_f32 v{u}, s22, v{u}")
rows("v_cvt_pk_bf16_f32 v{u}, v{u}, v{u}")
rows("v_lshlrev_b32 v{u}, 16, v{u}")
rows("v_sqrt_f32 v{w}, v{u}")
for j in range(8):
    rows("v_sub_f32 v{bj}, v{bj}, v{m}".replace("{bj}", "{b%d}" % j))
rows("v_rcp_f32 v{x}, v{w}")
rows("v_fma_f32 v{t}, -v{w}, v{w}, v{u}")
rows("v_mul_f32 v{x}, 0.5, v{x}")
rows("v_fma_f32 v{w}, v{t}, v{x}, v{w}")
rows("v_cvt_pk_bf16_f32 v{w}, v{w}, v{w}")
rows("v_lshlrev_b32 v{w}, 16, v{w}")
rows("v_rcp_f32 v{x}, v{w}")
for j in range(0, 8, 2):
    rows("v_cvt_pk_bf16_f32 v{t}, v{bj}, v{bk}".replace("{bj}", "{b%d}" % j).replace("{bk}", "{b%d}" % (j + 1)))
    rows("v_lshlrev_b32 v{bj}, 16, v{t}".replace("{bj}", "{b%d}" % j))
    rows("v_and_b32 v{bk}, 0xffff0000, v{t}".replace("{bk}", "{b%d}" % (j + 1)))
rows("v_fma_f32 v{t}, -v{w}, v{x}, 1.0")
rows("v_fma_f32 v{x}, v{t}, v{x}, v{x}")
for j in range(8):
    rows("v_mul_f32 v{t}, v{bj}, v{x}".replace("{bj}", "{b%d}" % j))
    rows("v_fma_f32 v{u}, -v{t}, v{w}, v{bj}".replace("{bj}", "{b%d}" % j))
    rows("v_fma_f32 v{bj}, v{u}, v{x}, v{t}".replace("{bj}", "{b%d}" % j))
for j in range(4):
    for k in range(4):
        b = 32 + 8 * k
        I(f"v_cvt_pk_bf16_f32 v{8+4*k+j}, v{b+2*j}, v{b+2*j+1}")
I("v_lshlrev_b32 v30, 2, v1")
I("v_mul_u32_u24 v30, 896, v30")
I("v_lshl_add_u32 v30, v2, 4, v30")
I("s_mov_b64 exec, s[18:19]")
for k in range(4):
    I(f"ds_write_b128 v29, v[{8+4*k}:{11+4*k}] offset:{16384 + 16*k}")
I("s_mov_b64 exec, s[16:17]")
I("s_waitcnt lgkmcnt(0)")
I("s_barrier")
I("v_lshlrev_b32 v4, 4, v0")
I("v_add_u32 v5, s7, v4")
for q in range(3):
    I(f"ds_read_b128 v[{8+4*q}:{11+4*q}], v4 offset:{16384 + 4096*q}")
I("v_cmp_gt_u32 vcc, 128, v0")
I("s_and_saveexec_b64 s[16:17], vcc")
I(f"ds_read_b128 v[20:23], v4 offset:{16384 + 12288}")
I("v_add_u32 v6, 0x3000, v5")
I("s_waitcnt lgkmcnt(0)")
I("global_store_dwordx4 v6, v[20:23], s[14:15] sc1")
I("s_mov_b64 exec, s[16:17]")
I("v_add_u32 v6, 0x1000, v5")
I("v_add_u32 v7, 0x2000, v5")
I("s_waitcnt lgkmcnt(0)")
I("global_store_dwordx4 v5, v[8:11], s[14:15] sc1")
I("global_store_dwordx4 v6, v[12:15], s[14:15] sc1")
I("global_store_dwordx4 v7, v[16:19], s[14:15] sc1")
I("s_lshl_b32 s74, s3, 2")
publish(74)
I("s_branch A_g1")
L("A_wtonly")
I("s_sub_u32 s3, s2, 128")
I("s_mov_b32 s75, 96")
I("s_cmp_lt_u32 s3, 4")
I("s_cselect_b32 s75, 192, s75")


CFG = {1: (3584, 14336, 9363, 7, 56, WS_W1T), 2: (896, 57344, 2341, 28, 58, WS_W2T)}


def wt_params(which):
    sst, dtile, magic, nk, sp, wsoff = CFG[which]
    sb = 80 if which == 1 else 4
    for j in range(3):
        sj = sb + 4 * j
        if j == 0:
            I(f"s_mov_b32 s{sj}, s3")
        elif j == 1:
            I(f"s_add_u32 s{sj}, s3, 96")
        else:
            I(f"s_add_u32 s{sj}, s3, s75")
        I(f"s_mul_i32 s{sj+2}, s{sj}, {magic}")
        I(f"s_lshr_b32 s{sj+2}, s{sj+2}, 16")
        I(f"s_mul_i32 s{sj+1}, s{sj+2}, {nk}")
        I(f"s_sub_u32 s{sj+1}, s{sj}, s{sj+1}")
        if which == 1:
            I(f"s_and_b32 s{sj+3}, s{sj+2}, 1")
            I(f"s_mul_i32 s{sj+3}, s{sj+3}, 7")
            I(f"s_add_u32 s{sj+3}, s{sj+3}, s{sj+1}")
            I(f"s_lshl_b32 s{sj+3}, s{sj+3}, 2")
            I(f"s_lshr_b32 s20, s{sj+2}, 1")
            I("s_lshl_b32 s20, s20, 6")
            I(f"s_add_u32 s{sj+3}, s{sj+3}, s20")
            I(f"s_add_u32 s{sj+3}, s{sj+3}, {W1F}")
        else:
            I(f"s_lshl_b32 s{sj+3}, s{sj+2}, 7")
            I(f"s_lshl_b32 s20, s{sj+1}, 2")
            I(f"s_add_u32 s{sj+3}, s{sj+3}, s20")
            I(f"s_add_u32 s{sj+3}, s{sj+3}, {W2F}")


def wt_loads(which):
    sst, dtile, magic, nk, sp, wsoff = CFG[which]
    sb = 80 if which == 1 else 4
    rb = 8 if which == 1 else 32
    I(f"v_mul_u32_u24 v3, {sst}, v1")
    I("v_lshl_add_u32 v3, v2, 4, v3")
    for j in range(3):
        sj = sb + 4 * j
        I(f"s_mul_i32 s20, s{sj+1}, {64*sst}")
        I(f"s_lshl_b32 s21, s{sj+2}, 7")
        I("s_add_u32 s20, s20, s21")
        I("v_add_u32 v4, s20, v3")
        I(f"v_add_u32 v6, {32*sst}, v4")
        I(f"global_load_dwordx4 v[{rb+8*j}:{rb+3+8*j}], v4, s[{sp}:{sp+1}]")
        I(f"global_load_dwordx4 v[{rb+4+8*j}:{rb+7+8*j}], v6, s[{sp}:{sp+1}]")


def wt_out(which):
    sst, dtile, magic, nk, sp, wsoff = CFG[which]
    sb = 80 if which == 1 else 4
    lb = 0 if which == 1 else 24576
    I(f"s_add_u32 s22, s64, {wsoff}")
    I("s_addc_u32 s23, s65, 0")
    if which == 1:
        I("v_lshrrev_b32 v4, 2, v1")
        I("v_lshlrev_b32 v4, 4, v4")
        I("v_lshl_add_u32 v4, v3, 2, v4")
        I("v_and_b32 v6, 3, v1")
        I("v_add_u32 v4, v4, v6")
    else:
        I("v_lshl_add_u32 v4, v3, 4, v1")
    I("v_lshlrev_b32 v5, 10, v2")
    I("v_lshl_add_u32 v5, v4, 1, v5")
    I(f"v_mul_u32_u24 v7, {dtile}, v3")
    I("v_and_b32 v4, 63, v0")
    I("v_lshl_add_u32 v7, v4, 4, v7")
    for j in range(3):
        sj = sb + 4 * j
        for c in range(2):
            for e in range(8):
                I(f"ds_read_u16 v{64 + 8*c + e}, v5 offset:{lb + 8192*j + 4096*c + 128*e}")
            if c == 0:
                I("s_waitcnt lgkmcnt(0)")
        I(f"s_mul_i32 s20, s{sj+2}, {4*dtile}")
        I(f"s_lshl_b32 s21, s{sj+1}, 11")
        I("s_add_u32 s20, s20, s21")
        I("v_add_u32 v6, s20, v7")
        I("s_waitcnt lgkmcnt(0)")
        for t in range(8):
            I(f"v_lshl_or_b32 v{8+8*j+t}, v{65+2*t}, 16, v{64+2*t}")
        I(f"global_store_dwordx4 v6, v[{8+8*j}:{11+8*j}], s[22:23] sc1")
        I(f"global_store_dwordx4 v6, v[{12+8*j}:{15+8*j}], s[22:23] offset:1024 sc1")
    publish(sb + 3, sb + 7, sb + 11)


I("v_lshrrev_b32 v1, 3, v0")
I("v_and_b32 v2, 7, v0")
wt_params(1)
wt_loads(1)
wt_params(2)
I("v_lshlrev_b32 v56, 7, v1")
I("v_lshl_add_u32 v56, v2, 4, v56")
for j in range(3):
    I(f"s_waitcnt vmcnt({4-2*j})")
    I(f"ds_write_b128 v56, v[{8+8*j}:{11+8*j}] offset:{8192*j}")
    I(f"ds_write_b128 v56, v[{12+8*j}:{15+8*j}] offset:{8192*j+4096}")
wt_loads(2)
I("s_waitcnt lgkmcnt(0)")
I("s_barrier")
I("v_and_b32 v1, 15, v0")
I("v_bfe_u32 v2, v0, 4, 2")
I("v_lshrrev_b32 v3, 6, v0")
wt_out(1)
for j in range(3, 6):
    I(f"ds_write_b128 v56, v[{8+8*j}:{11+8*j}] offset:{8192*j}")
    I(f"ds_write_b128 v56, v[{12+8*j}:{15+8*j}] offset:{8192*j+4096}")
I("s_waitcnt lgkmcnt(0)")
I("s_barrier")
wt_out(2)

L("A_g1")
MARK(0)
I(f"s_setprio {os.environ.get('PRIO_G', '0')}")
I("v_and_b32 v1, 15, v0")
I("v_bfe_u32 v2, v0, 4, 2")
I("v_lshrrev_b32 v3, 6, v0")
I("s_and_b32 s10, s2, 7")
I("s_lshr_b32 s3, s2, 3")
I("s_mul_i32 s8, s3, 9363")
I("s_lshr_b32 s8, s8, 16")
I("s_mul_i32 s9, s8, 7")
I("s_sub_u32 s9, s3, s9")
I("s_and_b32 s11, s10, 1")
I("s_mul_i32 s11, s11, 7")
I("s_add_u32 s9, s9, s11")
I("s_lshr_b32 s10, s10, 1")
I("s_lshl_b32 s10, s10, 2")
I("s_add_u32 s8, s8, s10")
I("s_lshl_b32 s76, s8, 5")
I("s_lshl_b32 s77, s9, 6")
I(f"s_add_u32 s77, s77, {W1F}")
I("s_lshl_b32 s74, s8, 6")
I("s_lshl_b32 s10, s9, 2")
I("s_add_u32 s74, s74, s10")
I(f"s_add_u32 s74, s74, {HF}")
wait_flags([(77, 14)])
I(f"s_add_u32 s4, s64, {WS_W1T}")
I("s_addc_u32 s5, s65, 0")
I(f"s_add_u32 s6, s64, {WS_XN}")
I("s_addc_u32 s7, s65, 0")
I("s_lshl_b32 s9, s9, 7")
I("s_lshl_b32 s8, s8, 7")
I("v_and_b32 v4, 1, v3")
I("v_lshl_add_u32 v4, v4, 6, s9")
I("v_lshrrev_b32 v5, 1, v3")
I("v_lshl_add_u32 v5, v5, 6, s8")
I("v_and_b32 v7, 63, v0")
I("v_lshlrev_b32 v7, 4, v7")
I("s_mul_i32 s10, s9, 896")
I("s_mul_i32 s11, s8, 896")
I("v_mul_u32_u24 v6, 28672, v3")
I("v_add_u32 v6, v6, v7")
I("v_add_u32 v8, s10, v6")
I("v_add_u32 v9, 14336, v8")
I("v_add_u32 v10, s11, v6")
I("v_add_u32 v11, 14336, v10")
I("s_lshl_b32 s12, s69, 11")
I("v_and_b32 v12, 1, v3")
I("v_lshl_add_u32 v12, v12, 12, v7")
I("v_lshrrev_b32 v13, 1, v3")
I("v_lshl_add_u32 v13, v13, 12, v7")
I("v_add_u32 v13, 0x2000, v13")
G_ACC = 16
G_FR = 80
issued = []


def g1_dma(st, part):
    slot = (st % 4) * 16384
    for (nm, va, sb, off) in (("A", 8, 4, 0), ("A", 9, 4, 1024), ("B", 10, 6, 8192), ("B", 11, 6, 9216)):
        if nm not in part:
            continue
        if st and off in (0, 8192):
            I(f"s_add_u32 s{sb}, s{sb}, 1024")
            I(f"s_addc_u32 s{sb+1}, s{sb+1}, 0")
        I(f"s_add_u32 m0, s12, {slot + off}")
        I("s_nop 0")
        I(f"global_load_lds_dwordx4 v{va}, s[{sb}:{sb+1}] sc1")
        issued.append(st)


def g1_wait(st):
    last = max(i for i, x in enumerate(issued) if x == st)
    return len(issued) - 1 - last


def g1_reads(st):
    slot = (st % 4) * 16384
    fb = G_FR + 32 * (st & 1)
    for j in range(4):
        I(f"ds_read_b128 v[{fb+4*j}:{fb+4*j+3}], v12 offset:{slot + 1024*j}")
    for j in range(4):
        I(f"ds_read_b128 v[{fb+16+4*j}:{fb+16+4*j+3}], v13 offset:{slot + 1024*j}")


NS1 = 14
for st in range(4):
    g1_dma(st, "A")
wait_flags([(76, 8)])
MARK(1)
for st in range(4):
    g1_dma(st, "B")
I(f"s_waitcnt vmcnt({g1_wait(0)})")
I("s_barrier")
g1_reads(0)
for st in range(NS1):
    if st + 1 < NS1:
        I(f"s_waitcnt vmcnt({g1_wait(st + 1)}) lgkmcnt(0)")
        I("s_barrier")
        if st + 4 < NS1:
            g1_dma(st + 4, "AB")
        g1_reads(st + 1)
    else:
        I("s_waitcnt lgkmcnt(0)")
    fb = G_FR + 32 * (st & 1)
    for a_ in range(4):
        for b_ in range(4):
            c = G_ACC + 16 * a_ + 4 * b_
            src = "0" if st == 0 else f"v[{c}:{c+3}]"
            I(f"v_mfma_f32_16x16x32_bf16 v[{c}:{c+3}], v[{fb+4*a_}:{fb+4*a_+3}], v[{fb+16+4*b_}:{fb+16+4*b_+3}], {src}")
I(f"s_add_u32 s4, s64, {WS_H}")
I("s_addc_u32 s5, s65, 0")
I("v_mul_u32_u24 v6, 3584, v5")
I("v_lshl_add_u32 v6, v4, 5, v6")
I("v_lshrrev_b32 v7, 1, v2")
I("v_lshl_add_u32 v6, v7, 10, v6")
I("v_and_b32 v7, 1, v2")
I("v_lshl_add_u32 v6, v7, 9, v6")
I("v_lshl_add_u32 v6, v1, 4, v6")
I("s_nop 4")
for b in range(4):
    for a in range(4):
        c = G_ACC + 16 * a + 4 * b
        for r in range(4):
            I(f"v_max_f32 v{c+r}, 0, v{c+r}")
        I(f"v_cvt_pk_bf16_f32 v{80+8*b+2*a}, v{c}, v{c+1}")
        I(f"v_cvt_pk_bf16_f32 v{81+8*b+2*a}, v{c+2}, v{c+3}")
    if b > 0:
        I(f"v_add_u32 v6, {57344}, v6")
    I(f"global_store_dwordx4 v6, v[{80+8*b}:{83+8*b}], s[4:5] sc1")
    I(f"global_store_dwordx4 v6, v[{84+8*b}:{87+8*b}], s[4:5] offset:256 sc1")
publish(74)
MARK(2)

I(f"s_setprio {os.environ.get('PRIO_G2', '0')}")
I("s_load_dwordx2 s[16:17], s[0:1], 0")
I("s_load_dwordx2 s[18:19], s[0:1], 48")
I("s_load_dwordx2 s[20:21], s[0:1], 80")
I("s_mov_b32 s14, s64")
I("s_mov_b32 s15, s65")
I("v_and_b32 v4, 63, v0")
I("s_and_b32 s10, s2, 7")
I("s_lshr_b32 s3, s2, 3")
I("s_mul_i32 s8, s3, 9363")
I("s_lshr_b32 s8, s8, 16")
I("s_mul_i32 s9, s8, 7")
I("s_sub_u32 s9, s3, s9")
I("s_lshl_b32 s10, s10, 2")
I("s_add_u32 s8, s8, s10")
I("s_lshr_b32 s76, s8, 1")
I("s_lshl_b32 s76, s76, 6")
I(f"s_add_u32 s76, s76, {HF}")
I("s_lshl_b32 s77, s9, 7")
I(f"s_add_u32 s78, s77, {YF}")
I(f"s_add_u32 s77, s77, {W2F}")
I("s_lshl_b32 s9, s9, 6")
I("s_lshl_b32 s8, s8, 6")
wait_flags([(77, 28), (76, 14)])
MARK(3)
I("s_waitcnt lgkmcnt(0)")
I(f"s_add_u32 s4, s64, {WS_W2T}")
I("s_addc_u32 s5, s65, 0")
I(f"s_add_u32 s6, s64, {WS_H}")
I("s_addc_u32 s7, s65, 0")
I(f"s_add_u32 s10, s64, {WS_YT}")
I("s_addc_u32 s11, s65, 0")
EX, EXN, EY, EDK = 232, 240, 216, 208


def fin_late():
    I("v_lshrrev_b32 v249, 2, v4")
    I("v_lshl_add_u32 v249, v3, 4, v249")
    I("v_add_u32 v250, s8, v249")
    I("v_and_b32 v251, 3, v4")
    I("v_mul_u32_u24 v5, 896, v250")
    I("s_lshl_b32 s12, s9, 1")
    I("v_lshl_add_u32 v6, v251, 5, s12")
    I("v_add_u32 v5, v5, v6")
    I(f"global_load_dwordx4 v[{EX}:{EX+3}], v5, s[16:17]")
    I(f"global_load_dwordx4 v[{EX+4}:{EX+7}], v5, s[16:17] offset:16")
    I("v_lshrrev_b32 v248, 4, v250")
    I("v_mul_u32_u24 v248, 14336, v248")
    I("v_and_b32 v7, 15, v250")
    I("v_lshl_add_u32 v248, v7, 4, v248")
    I("v_lshrrev_b32 v7, 6, v6")
    I("v_lshl_add_u32 v248, v7, 10, v248")
    I("v_bfe_u32 v7, v6, 4, 2")
    I("v_lshl_add_u32 v248, v7, 8, v248")
    I(f"global_load_dwordx4 v[{EXN}:{EXN+3}], v248, s[14:15] sc1")
    I(f"global_load_dwordx4 v[{EXN+4}:{EXN+7}], v248, s[14:15] offset:256 sc1")
    I(f"global_load_dwordx4 v[{EDK}:{EDK+3}], v6, s[18:19]")
    I(f"global_load_dwordx4 v[{EDK+4}:{EDK+7}], v6, s[18:19] offset:16")
    I("v_lshlrev_b32 v7, 11, v6")
    I("v_lshl_add_u32 v252, v250, 1, v7")
    I("v_and_b32 v253, 31, v0")
    I("v_lshl_add_u32 v253, v253, 2, s78")
    I("global_load_dword v254, v253, s[70:71] sc1")
    I(f"v_mov_b32 v7, {128 if DSTAMP else 0}")
    I("global_load_dword v255, v7, s[66:67] sc1")


def gemm_core(sa, sb, va, vb, acc0, buf0, ring, late, nlate):
    NS = 14
    PF = ring - 1

    def loads(s):
        bb = buf0 + 32 * (s % ring)
        off = (s & 3) * 1024
        if s and (s & 3) == 0:
            I(f"s_add_u32 s{sa}, s{sa}, 4096")
            I(f"s_addc_u32 s{sa+1}, s{sa+1}, 0")
            I(f"s_add_u32 s{sb}, s{sb}, 4096")
            I(f"s_addc_u32 s{sb+1}, s{sb+1}, 0")
        for j in range(4):
            I(f"global_load_dwordx4 v[{bb+4*j}:{bb+4*j+3}], v{va+j}, s[{sa}:{sa+1}] offset:{off} sc1")
        for j in range(4):
            I(f"global_load_dwordx4 v[{bb+16+4*j}:{bb+16+4*j+3}], v{vb+j}, s[{sb}:{sb+1}] offset:{off} sc1")

    for s in range(PF):
        loads(s)
    for s in range(NS):
        if s + PF < NS:
            loads(s + PF)
            if s + PF == NS - 1:
                late()
                I(f"s_waitcnt vmcnt({8*PF + nlate})")
            else:
                I(f"s_waitcnt vmcnt({8*PF})")
        else:
            I(f"s_waitcnt vmcnt({8*(NS-1-s) + nlate})")
        bb = buf0 + 32 * (s % ring)
        for a in range(4):
            for b in range(4):
                c = acc0 + 16 * a + 4 * b
                src = "0" if s == 0 else f"v[{c}:{c+3}]"
                I(f"v_mfma_f32_16x16x32_bf16 v[{c}:{c+3}], v[{bb+4*a}:{bb+4*a+3}], v[{bb+16+4*b}:{bb+16+4*b+3}], {src}")


I("v_mul_u32_u24 v7, 14336, v3")
I("v_lshl_add_u32 v7, v4, 4, v7")
I("s_mul_i32 s12, s9, 3584")
I("v_add_u32 v8, s12, v7")
for j in range(1, 4):
    I(f"v_add_u32 v{8+j}, {57344*j}, v8")
I("s_mul_i32 s12, s8, 3584")
I("v_add_u32 v12, s12, v7")
for j in range(1, 4):
    I(f"v_add_u32 v{12+j}, {57344*j}, v12")
F_ACC = 16
F_BUF = 80
gemm_core(4, 6, 8, 12, F_ACC, F_BUF, 4, fin_late, 8)
MARK(4)
I("s_waitcnt vmcnt(0)")
L("A_ypoll")
I("v_cmp_ne_u32 vcc, v255, v254")
I("s_cmp_eq_u64 vcc, 0")
I("s_cbranch_scc1 A_yok")
I("s_sleep 3")
I("global_load_dword v254, v253, s[70:71] sc1")
I("s_waitcnt vmcnt(0)")
I("s_branch A_ypoll")
L("A_yok")
MARK(5)
for dd in range(16):
    if dd:
        I("v_add_u32 v252, 0x1000, v252")
    I(f"global_load_ushort v{EY+dd}, v252, s[10:11] sc1")
I("v_lshl_add_u32 v6, v3, 6, v1")
I("v_mul_u32_u24 v6, 272, v6")
I("v_lshl_add_u32 v6, v2, 4, v6")
for a_ in range(4):
    for b_ in range(4):
        c = F_ACC + 16 * a_ + 4 * b_
        I(f"ds_write_b128 v6, v[{c}:{c+3}] offset:{16*b_*272 + 64*a_}")
I("s_waitcnt lgkmcnt(0)")
I("s_barrier")
I("v_mul_u32_u24 v6, 272, v249")
I("v_lshl_add_u32 v6, v251, 6, v6")
for p in range(4):
    for j in range(4):
        I(f"ds_read_b128 v[{80+16*p+4*j}:{83+16*p+4*j}], v6 offset:{p*64*272 + 16*j}")
I("s_mov_b32 s22, 0xbfb8aa3b")
I("s_waitcnt vmcnt(16) lgkmcnt(0)")


def bfr(r):
    return [f"v_cvt_pk_bf16_f32 v{r}, v{r}, v{r}", f"v_lshlrev_b32 v{r}, 16, v{r}"]


def epi1(dd):
    o = 80 + dd
    t1, t2, t3 = 144 + dd, 160 + dd, 176 + dd
    h = dd & 1

    def unp(dst, reg):
        if h:
            return f"v_and_b32 v{dst}, 0xffff0000, v{reg + dd//2}"
        return f"v_lshlrev_b32 v{dst}, 16, v{reg + dd//2}"
    return [f"v_add_f32 v{o}, v{o}, v{o+16}",
            f"v_add_f32 v{o+32}, v{o+32}, v{o+48}",
            unp(t2, EXN), unp(t3, EDK),
            f"v_add_f32 v{o}, v{o}, v{o+32}",
            f"v_mul_f32 v{t2}, v{t2}, v{t3}"] + bfr(o) + bfr(t2) + [
            f"v_mul_f32 v{t1}, s22, v{o}",
            unp(t3, EX),
            f"v_exp_f32 v{t1}, v{t1}",
            "s_nop 0",
            f"v_add_f32 v{t1}, 1.0, v{t1}",
            f"v_rcp_f32 v{t1}, v{t1}",
            "s_nop 0",
            f"v_mul_f32 v{o}, v{o}, v{t1}"] + bfr(o)


def epi2(dd):
    o = 80 + dd
    t1, t2, t3 = 144 + dd, 160 + dd, 176 + dd
    return [f"v_lshlrev_b32 v{t1}, 16, v{EY+dd}",
            f"v_add_f32 v{t2}, v{t2}, v{t1}"] + bfr(t2) + [
            f"v_mul_f32 v{o}, v{o}, v{t2}"] + bfr(o) + [
            f"v_add_f32 v{o}, v{o}, v{t3}"]


for g in range(0, 16, 4):
    interleave([epi1(dd) for dd in range(g, g + 4)])
I("s_waitcnt vmcnt(0)")
for g in range(0, 16, 4):
    interleave([epi2(dd) for dd in range(g, g + 4)])
for j in range(8):
    I(f"v_cvt_pk_bf16_f32 v{16+j}, v{80+2*j}, v{81+2*j}")
I("global_store_dwordx4 v5, v[16:19], s[20:21]")
I("global_store_dwordx4 v5, v[20:23], s[20:21] offset:16")
I("s_endpgm")

L("B_start")
I(f"s_setprio {os.environ.get('PRIO_B', '0')}")
I(f"s_sub_u32 s2, s2, {NA}")
KSTG = 35072
UB = 2 * KR_STRIDE
I("s_lshl_b32 s3, s2, 10")
I("v_lshl_add_u32 v1, v0, 1, s3")
I("s_lshl_b32 s16, s2, 2")
I("v_mov_b32 v7, s16")
I("s_mov_b32 s20, 0x3fb8aa3b")
I("s_mov_b32 s21, 0x32a57060")
I("s_mov_b32 s22, 0x3f317218")
I("s_mov_b32 s23, 0x3e22f983")
I("s_mov_b32 s24, 0x31dc9c88")
I("s_waitcnt lgkmcnt(0)")
for ch in range(2):
    rb = 140 + 5 * ch
    I(f"global_load_ushort v{rb}, v1, s[6:7] offset:{512*ch}")
    I(f"global_load_ushort v{rb+1}, v1, s[8:9] offset:{512*ch}")
    I(f"global_load_ushort v{rb+2}, v1, s[10:11] offset:{512*ch}")
    I(f"global_load_ushort v{rb+3}, v1, s[12:13] offset:{512*ch}")
    I(f"global_load_ushort v{rb+4}, v7, s[14:15] offset:{2*ch}")
I("s_mov_b32 s74, 0")
I("v_mov_b32 v60, 0x80")
for g in range(2):
    es = [4 * g + k for k in range(4)]
    A_, B_, C_, D_, F_ = 10, 14, 48, 52, 56

    def col(fmt):
        for k, e in enumerate(es):
            I(fmt.format(a=A_ + k, b=B_ + k, c=C_ + k, d=D_ + k, f=F_ + k, e=e, o=160 + e))
    col("v_lshl_add_u32 v{a}, v0, 3, {e}")
    col("v_cvt_f32_u32 v{a}, v{a}")
    col("v_cvt_pk_bf16_f32 v{a}, v{a}, v{a}")
    col("v_bfe_u32 v{b}, v{a}, 7, 8")
    col("v_lshlrev_b32 v{a}, 16, v{a}")
    col("v_subrev_u32 v{b}, 134, v{b}")
    col("v_cvt_u32_f32 v{a}, v{a}")
    col("v_med3_i32 v{b}, v{b}, 0, 3")
    col("v_lshlrev_b32 v{c}, v{b}, v60")
    col("v_sub_u32 v{f}, 3, v{b}")
    col("v_and_b32 v{c}, 0xffffff00, v{c}")
    col("v_sub_u32 v{a}, v{a}, v{c}")
    col("v_and_b32 v{c}, 7, v{a}")
    col("v_lshrrev_b32 v{d}, 7, v{a}")
    col("v_lshrrev_b32 v{c}, v{b}, v{c}")
    col("v_lshlrev_b32 v{d}, v{f}, v{d}")
    col("v_bfe_u32 v{a}, v{a}, 3, 4")
    col("v_add_u32 v{c}, v{c}, v{d}")
    col("v_min_u32 v{d}, 1, v{b}")
    col("v_lshl_add_u32 v{c}, v{c}, 4, v{a}")
    col("v_add_u32 v{d}, v{d}, v{b}")
    col("v_lshl_add_u32 v{c}, v{d}, 7, v{c}")
    col("v_lshlrev_b32 v{o}, 2, v{c}")
I("s_waitcnt vmcnt(0)")
L("B_kloop")
KMARK(0)
for k, r in enumerate((2, 3, 4, 5, 6)):
    I(f"v_lshlrev_b32 v{r}, 16, v{140+k}")


def exp_acc(dst, x, t0, t1):
    I(f"v_mul_f32 v{t0}, s20, v{x}")
    I(f"v_fma_f32 v{t1}, v{x}, s20, -v{t0}")
    I(f"v_fma_f32 v{t1}, v{x}, s21, v{t1}")
    I(f"v_exp_f32 v{dst}, v{t0}")
    I(f"v_mul_f32 v{t1}, s22, v{t1}")
    I(f"v_fma_f32 v{dst}, v{dst}, v{t1}, v{dst}")


exp_acc(8, 6, 10, 11)
bf16r(8, 8)
exp_acc(9, 2, 10, 11)
bf16r(9, 9)
I("v_mul_f32 v9, v9, v8")
I("v_mul_f32 v12, s20, v9")
I("v_sub_f32 v12, 0, v12")
I("v_mul_f32 v3, v3, v8")
I("v_mul_f32 v13, s23, v3")
I("v_fma_f32 v14, v3, s23, -v13")
I("v_fma_f32 v14, v3, s24, v14")
I("v_rndne_f32 v10, v13")
I("v_sub_f32 v10, v13, v10")
I("v_and_b32 v13, 0xffffff00, v10")
I("v_sub_f32 v10, v10, v13")
I("v_add_f32 v14, v10, v14")
I("v_mul_f32 v15, v4, v8")
I("v_add_f32 v15, v15, v15")
I("v_mul_f32 v16, v5, v8")
I("v_add_f32 v16, v16, v16")
WREG = 8704
LOO = 4352
I("v_and_b32 v2, 15, v0")
I("v_bfe_u32 v3, v0, 4, 2")
I("v_lshrrev_b32 v6, 6, v0")
I(f"v_mul_u32_u24 v6, {WREG}, v6")
I(f"v_add_u32 v6, {KSTG}, v6")
I("v_and_b32 v4, 63, v0")
I("v_lshl_add_u32 v4, v4, 3, v6")
I("v_mul_u32_u24 v5, 528, v2")
I("v_lshl_add_u32 v5, v3, 4, v5")
I("v_add_u32 v5, v5, v6")


def cexp_ops(p, d, t):
    return [f"v_mul_f32 v{t}, {p}, v12",
            f"v_mul_f32 v{t+1}, {p}, v13",
            f"v_exp_f32 v{t}, v{t}",
            f"v_fract_f32 v{t+1}, v{t+1}",
            f"v_mov_b32 v{d}, {p}",
            f"v_fma_f32 v{t+1}, v{d}, v14, v{t+1}",
            f"v_cos_f32 v{d}, v{t+1}",
            f"v_sin_f32 v{d+1}, v{t+1}",
            "s_nop 0",
            f"v_mul_f32 v{d}, v{d}, v{t}",
            f"v_mul_f32 v{d+1}, v{d+1}, v{t}"]


def cmul_ops(d, a, b):
    return [f"v_mul_f32 v{d}, v{a}, v{b}",
            f"v_mul_f32 v{d+1}, v{a}, v{b+1}",
            f"v_fma_f32 v{d}, -v{a+1}, v{b+1}, v{d}",
            f"v_fma_f32 v{d+1}, v{a+1}, v{b}, v{d+1}"]


def split_ops(v, row, t, neg=False):
    n = "-" if neg else ""
    return [f"v_cvt_pk_bf16_f32 v{t}, v{v}, {n}v{v+1}",
            f"v_lshlrev_b32 v{t+1}, 16, v{t}",
            f"v_and_b32 v{t+2}, 0xffff0000, v{t}",
            f"v_sub_f32 v{t+1}, v{v}, v{t+1}",
            f"v_sub_f32 v{t+2}, {n}v{v+1}, v{t+2}",
            f"v_cvt_pk_bf16_f32 v{t+1}, v{t+1}, v{t+2}",
            f"ds_write_b64 v4, v[{t}:{t+1}] offset:{row*528}"]


ZQ = lambda q: 20 + 2 * q
EJ = lambda j: 40 + 2 * j
Z128 = 18
BH, BL = 72, 200
AF = 40
ACC = 124
GT = [104, 106, 108, 110]
ST = [112, 116, 120, 136]
KMARK(1)
interleave([cexp_ops("1.0", ZQ(1), 104), cexp_ops("0x41000000", EJ(1), 106), cexp_ops("0x43000000", Z128, 108)])
I("v_mov_b32 v40, 1.0")
I("v_mov_b32 v41, 0")
interleave([cmul_ops(EJ(2), EJ(1), EJ(1)), cmul_ops(ZQ(2), ZQ(1), ZQ(1)), split_ops(40, 0, ST[0], True), split_ops(EJ(1), 1, ST[1], True)])
interleave([cmul_ops(EJ(3), EJ(2), EJ(1)), cmul_ops(EJ(4), EJ(2), EJ(2)), cmul_ops(ZQ(3), ZQ(2), ZQ(1)), cmul_ops(ZQ(4), ZQ(2), ZQ(2)), split_ops(EJ(2), 2, ST[0], True)])
interleave([cmul_ops(EJ(5), EJ(4), EJ(1)), cmul_ops(EJ(6), EJ(3), EJ(3)), cmul_ops(EJ(7), EJ(4), EJ(3)), cmul_ops(EJ(8), EJ(4), EJ(4)),
            split_ops(EJ(3), 3, ST[0], True), split_ops(EJ(4), 4, ST[1], True)])
interleave([cmul_ops(ZQ(5), ZQ(4), ZQ(1)), cmul_ops(ZQ(6), ZQ(3), ZQ(3)), cmul_ops(ZQ(7), ZQ(4), ZQ(3)),
            cmul_ops(EJ(9), EJ(8), EJ(1)), cmul_ops(EJ(10), EJ(8), EJ(2)), cmul_ops(EJ(11), EJ(8), EJ(3)),
            split_ops(EJ(5), 5, ST[0], True), split_ops(EJ(6), 6, ST[1], True)])
interleave([cmul_ops(EJ(12), EJ(8), EJ(4)), cmul_ops(EJ(13), EJ(8), EJ(5)), cmul_ops(EJ(14), EJ(8), EJ(6)), cmul_ops(EJ(15), EJ(8), EJ(7)),
            split_ops(EJ(7), 7, ST[0], True), split_ops(EJ(8), 8, ST[1], True), split_ops(EJ(9), 9, ST[2], True), split_ops(EJ(10), 10, ST[3], True)])
interleave([split_ops(EJ(11 + k), 11 + k, ST[k], True) for k in range(4)])
interleave([split_ops(EJ(15), 15, ST[0], True), cmul_ops(38, 15, Z128)])
I("v_mov_b32 v36, v15")
I("v_mov_b32 v37, v16")
I("s_waitcnt lgkmcnt(0)")
for sidx in range(8):
    I(f"ds_read_b128 v[{AF+4*sidx}:{AF+4*sidx+3}], v5 offset:{64*sidx}")
I("s_waitcnt lgkmcnt(0)")
for sidx in range(8):
    r_ = AF + 4 * sidx
    I(f"v_mov_b32 v{BH+4*sidx}, v{r_}")
    I(f"v_mov_b32 v{BH+4*sidx+1}, v{r_}")
    I(f"v_mov_b32 v{BH+4*sidx+2}, v{r_+2}")
    I(f"v_mov_b32 v{BH+4*sidx+3}, v{r_+2}")
    I(f"v_mov_b32 v{BL+4*sidx}, v{r_+1}")
    I(f"v_mov_b32 v{BL+4*sidx+1}, v{r_+1}")
    I(f"v_mov_b32 v{BL+4*sidx+2}, v{r_+3}")
    I(f"v_mov_b32 v{BL+4*sidx+3}, v{r_+3}")
KMARK(2)
CR_ = [36, 38, 6, 8, 10]
CK = lambda k: CR_[k % 5] if k < 8 else 170 + 2 * (k - 8)


def rowval(k, q, row, gi):
    if q == 0:
        return split_ops(CK(k), row, ST[gi])
    return cmul_ops(GT[gi], CK(k), ZQ(q)) + split_ops(GT[gi], row, ST[gi])


def tile_mfma(t):
    I("s_waitcnt lgkmcnt(0)")
    for sidx in range(8):
        I(f"ds_read_b128 v[{AF+4*sidx}:{AF+4*sidx+3}], v5 offset:{64*sidx}")
    acc = ACC + 4 * t
    out = []
    for sidx in range(8):
        a_ = AF + 4 * sidx
        for y in (BH + 4 * sidx, BL + 4 * sidx):
            src = "0" if (sidx == 0 and y == BH) else f"v[{acc}:{acc+3}]"
            out.append(f"v_mfma_f32_16x16x32_bf16 v[{acc}:{acc+3}], v[{a_}:{a_+3}], v[{y}:{y+3}], {src}")
    return out


def run_rows(rows_, extra):
    for g in range(0, len(rows_), 4):
        ch = [rowval(k, q, row, gi) for gi, (k, q, row) in enumerate(rows_[g:g + 4])]
        if extra:
            ch.append(extra.pop(0))
        interleave(ch)
    for e in extra:
        interleave([e])


run_rows([(kap, q, q + 8 * kap) for kap in (0, 1) for q in range(8)],
         [cmul_ops(CK(k), CK(k - 1), Z128) for k in (2, 3, 4)])
mf = tile_mfma(0)
I("s_waitcnt lgkmcnt(0)")
KMARK(3)
r1 = [(2 + kp, q, q // 2 + 4 * kp) for kp in (0, 1) for q in (0, 2, 4, 6)]
r1b = [(4 + kp, q, 8 + q // 4 + 2 * kp) for kp in range(4) for q in (0, 4)]
interleave([mf[:8]] + [rowval(k, q, row, gi) for gi, (k, q, row) in enumerate(r1[:4])])
interleave([mf[8:]] + [rowval(k, q, row, gi) for gi, (k, q, row) in enumerate(r1[4:])] + [cmul_ops(CK(5), CK(4), Z128)])
interleave([rowval(k, q, row, gi) for gi, (k, q, row) in enumerate(r1b[:4])] + [cmul_ops(CK(6), CK(5), Z128) + cmul_ops(CK(7), CK(6), Z128)])
interleave([rowval(k, q, row, gi) for gi, (k, q, row) in enumerate(r1b[4:])] + [sum([cmul_ops(CK(k), CK(k - 1), Z128) for k in (8, 9, 10)], [])])
mf = tile_mfma(1)
I("s_waitcnt lgkmcnt(0)")
KMARK(4)
interleave([split_ops(CK(8 + r), r, ST[r]) for r in range(3)] + [sum([cmul_ops(CK(k), CK(k - 1), Z128) for k in (11, 12, 13)], []), mf[:8]])
interleave([split_ops(CK(11 + r), 3 + r, ST[r]) for r in range(3)] + [sum([cmul_ops(CK(k), CK(k - 1), Z128) for k in (14, 15, 16)], []), mf[8:]])
interleave([split_ops(CK(14 + r), 6 + r, ST[r]) for r in range(3)])
mf = tile_mfma(2)
I("s_waitcnt lgkmcnt(0)")
for m in mf:
    I(m)
I("s_nop 7")
I("s_nop 1")
I("v_lshrrev_b32 v19, 6, v0")
I(f"v_mul_u32_u24 v19, {WREG}, v19")
I("v_lshl_add_u32 v19, v3, 8, v19")
I("v_lshl_add_u32 v19, v2, 2, v19")
for t in range(3):
    for r in range(4):
        I(f"ds_write_b32 v19, v{ACC+4*t+r} offset:{KSTG + t*1024 + r*64}")
I("s_waitcnt lgkmcnt(0)")
I("s_barrier")
KMARK(5)
for e in range(8):
    for w in range(4):
        I(f"ds_read_b32 v{16 + 4*e + w}, v{160+e} offset:{KSTG + w*8704}")
    if e == 3:
        I("s_waitcnt lgkmcnt(0)")
I("s_waitcnt lgkmcnt(0)")
for e in range(8):
    b = 16 + 4 * e
    I(f"v_add_f32 v{b}, v{b}, v{b+1}")
    I(f"v_add_f32 v{b+2}, v{b+2}, v{b+3}")
    I(f"v_add_f32 v{b}, v{b}, v{b+2}")
for j in range(4):
    ka, kb = 16 + 4 * (7 - 2 * j), 16 + 4 * (6 - 2 * j)
    I(f"v_cvt_pk_bf16_f32 v{48+j}, v{ka}, v{kb}")
    I(f"v_lshlrev_b32 v10, 16, v{48+j}")
    I(f"v_and_b32 v11, 0xffff0000, v{48+j}")
    I(f"v_sub_f32 v10, v{ka}, v10")
    I(f"v_sub_f32 v11, v{kb}, v11")
    I(f"v_cvt_pk_bf16_f32 v{52+j}, v10, v11")
I("v_lshlrev_b32 v10, 4, v0")
I("v_sub_u32 v10, 4080, v10")
I("v_add_u32 v10, s74, v10")
I("ds_write_b128 v10, v[48:51]")
I("ds_write_b128 v10, v[52:55] offset:4608")
I("v_cmp_gt_u32 vcc, 64, v0")
I("s_and_saveexec_b64 s[18:19], vcc")
I("v_and_b32 v10, 31, v0")
I("v_lshlrev_b32 v10, 4, v10")
I("v_lshrrev_b32 v11, 5, v0")
I("v_mul_u32_u24 v11, 4608, v11")
I("v_add3_u32 v10, v10, v11, s74")
for r in range(12, 16):
    I(f"v_mov_b32 v{r}, 0")
I("ds_write_b128 v10, v[12:15] offset:4096")
I("s_mov_b64 exec, s[18:19]")
I("s_waitcnt lgkmcnt(0)")
I("s_barrier")
KMARK(6)
for k in range(5):
    I(f"v_mov_b32 v{140+k}, v{145+k}")
I(f"s_add_u32 s74, s74, {KR_STRIDE}")
I(f"s_cmp_eq_u32 s74, {2*KR_STRIDE}")
I("s_cbranch_scc1 B_kdone")
MARK(0)
I(f"s_mov_b32 s76, {LNF}")
I(f"s_mov_b32 s77, {LNF + 256}")
if not os.environ.get("NOA"):
    wait_flags([(76, 64), (77, 64)])
I("v_and_b32 v1, 15, v0")
I("v_bfe_u32 v2, v0, 4, 2")
I("v_lshrrev_b32 v3, 6, v0")
I("s_lshr_b32 s6, s2, 4")
I("s_lshl_b32 s6, s6, 10")
I("s_lshr_b32 s7, s2, 2")
I("s_and_b32 s7, s7, 3")
I("s_lshl_b32 s7, s7, 8")
I("s_add_u32 s6, s6, s7")
I("s_and_b32 s7, s2, 3")
I("s_lshl_b32 s7, s7, 2")
I("s_add_u32 s6, s6, s7")
I("s_add_u32 s6, s64, s6")
I("s_addc_u32 s7, s65, 0")
I("v_lshrrev_b32 v4, 4, v0")
I("v_mul_u32_u24 v4, 14336, v4")
I("v_lshl_add_u32 v4, v1, 4, v4")
for j in range(8):
    if j:
        I(f"v_add_u32 v4, {16*14336}, v4")
    I(f"global_load_dword v{190+j}, v4, s[6:7] sc1")
I("s_branch B_kloop")
L("B_kdone")
I(f"s_setprio {os.environ.get('PRIO_C', '3')}")
MARK(1)
I("v_and_b32 v1, 15, v0")
I("v_bfe_u32 v2, v0, 4, 2")
I("v_lshrrev_b32 v3, 6, v0")
I("v_lshlrev_b32 v5, 1, v0")
I("v_cmp_gt_u32 vcc, 16, v0")
I("s_and_saveexec_b64 s[18:19], vcc")
I("v_mov_b32 v8, 0")
for q in range(4):
    I(f"ds_write_b16 v5, v8 offset:{UB + q*XNT_STRIDE}")
I("s_mov_b64 exec, s[18:19]")
I("s_waitcnt lgkmcnt(0)")
I("s_barrier")
for j in range(8):
    I(f"s_waitcnt vmcnt({7-j})")
    o = UB + 512 * j
    I(f"ds_write_b16 v5, v{190+j} offset:{o + 32}")
    I(f"ds_write_b16 v5, v{190+j} offset:{o + XNT_STRIDE + 30}")
    I(f"ds_write_b16_d16_hi v5, v{190+j} offset:{o + 2*XNT_STRIDE + 32}")
    I(f"ds_write_b16_d16_hi v5, v{190+j} offset:{o + 3*XNT_STRIDE + 30}")
I("s_waitcnt lgkmcnt(0)")
I("s_barrier")
MARK(2)
I("v_lshrrev_b32 v4, 1, v3")
I("v_lshl_add_u32 v5, v2, 3, v1")
I("v_add_u32 v5, 1, v5")
I("v_and_b32 v7, 1, v5")
I("v_sub_u32 v5, v5, v7")
I("v_lshlrev_b32 v5, 1, v5")
I(f"v_mul_u32_u24 v7, {XNT_STRIDE}, v7")
I("v_add_u32 v5, v5, v7")
I(f"v_mul_u32_u24 v7, {2*XNT_STRIDE}, v4")
I("v_add_u32 v5, v5, v7")
I("v_and_b32 v7, 1, v3")
I("v_lshl_add_u32 v5, v7, 8, v5")
I(f"v_add_u32 v232, {UB}, v5")
for c in range(1, 8):
    I(f"v_add_u32 v{232+c}, {512*c}, v232")
I(f"v_mul_u32_u24 v6, {KR_STRIDE}, v4")
I("v_lshl_add_u32 v6, v2, 4, v6")
I("v_lshl_add_u32 v6, v7, 8, v6")
I("v_lshlrev_b32 v7, 5, v1")
I("v_sub_u32 v6, v6, v7")
I("v_add_u32 v6, 480, v6")
CA0 = 8
CBUF = 40


def creads(r):
    bb = CBUF + 96 * (r & 1)
    out = []
    for c in range(8):
        out.append(f"ds_read2_b32 v[{bb+4*c}:{bb+4*c+1}], v{232+c} offset0:{16*r} offset1:{16*r+1}")
        out.append(f"ds_read2_b32 v[{bb+4*c+2}:{bb+4*c+3}], v{232+c} offset0:{16*r+2} offset1:{16*r+3}")
    for n in range(8):
        o = 3584 - 512 * n + 64 * r
        out.append(f"ds_read_b128 v[{bb+32+8*n}:{bb+32+8*n+3}], v6 offset:{o}")
        out.append(f"ds_read_b128 v[{bb+36+8*n}:{bb+36+8*n+3}], v6 offset:{o+4608}")
    return out


for x in creads(0):
    I(x)
for r in range(4):
    I("s_waitcnt lgkmcnt(0)")
    nxt = creads(r + 1) if r < 3 else []
    bb = CBUF + 96 * (r & 1)
    mf = []
    for T in range(8):
        acc = CA0 + 4 * T
        for c in range(T + 1):
            n = T - c
            first = (r == 0 and c == 0)
            src = "0" if first else f"v[{acc}:{acc+3}]"
            mf.append(f"v_mfma_f32_16x16x32_bf16 v[{acc}:{acc+3}], v[{bb+4*c}:{bb+4*c+3}], v[{bb+32+8*n}:{bb+32+8*n+3}], {src}")
            mf.append(f"v_mfma_f32_16x16x32_bf16 v[{acc}:{acc+3}], v[{bb+4*c}:{bb+4*c+3}], v[{bb+36+8*n}:{bb+36+8*n+3}], v[{acc}:{acc+3}]")
    k = 0
    for idx, m in enumerate(mf):
        I(m)
        if k < len(nxt) and idx % 2 == 1:
            I(nxt[k]); k += 1
    while k < len(nxt):
        I(nxt[k]); k += 1
I("s_barrier")
I("v_and_b32 v5, 63, v0")
I("v_lshlrev_b32 v5, 4, v5")
I("v_lshl_add_u32 v6, v3, 12, v5")
I("v_xor_b32 v7, 1, v3")
I("v_lshl_add_u32 v5, v7, 12, v5")
I("s_lshl_b32 s10, s2, 13")
I(f"s_add_u32 s10, s10, {WS_YT}")
I("s_add_u32 s10, s64, s10")
I("s_addc_u32 s11, s65, 0")
I("v_lshlrev_b32 v7, 12, v4")
I("v_lshl_add_u32 v7, v1, 5, v7")
I("v_lshl_add_u32 v7, v2, 3, v7")
I("s_lshl_b32 s74, s2, 2")
I(f"s_add_u32 s74, s74, {YF}")
I("s_and_b32 s9, s69, 1")
I("s_cmp_eq_u32 s9, 1")
I("s_cbranch_scc1 B_cv1")
for h in range(2):
    if h:
        L("B_cv1")
    keep = [4 * h + j for j in range(4)]
    give = [4 * (1 - h) + j for j in range(4)]
    for j, T in enumerate(give):
        I(f"ds_write_b128 v6, v[{CA0+4*T}:{CA0+4*T+3}] offset:{1024*j}")
    I("s_waitcnt lgkmcnt(0)")
    I("s_barrier")
    for j in range(4):
        I(f"ds_read_b128 v[{40+4*j}:{43+4*j}], v5 offset:{1024*j}")
    I("s_waitcnt lgkmcnt(0)")
    for j, T in enumerate(keep):
        acc = CA0 + 4 * T
        for r_ in range(4):
            I(f"v_add_f32 v{acc+r_}, v{acc+r_}, v{40+4*j+r_}")
        I(f"v_cvt_pk_bf16_f32 v{56+2*j}, v{acc}, v{acc+1}")
        I(f"v_cvt_pk_bf16_f32 v{57+2*j}, v{acc+2}, v{acc+3}")
        I(f"global_store_dwordx2 v7, v[{56+2*j}:{57+2*j}], s[10:11] offset:{512*T} sc1")
    if h == 0:
        I("s_branch B_pub")
L("B_pub")
MARK(3)
publish(74)
I("s_endpgm")
L("X_exit")
lines.append("    s_endpgm")

E('.section .rodata,"a"')
E(".p2align 6")
E(f".amdhsa_kernel {NAME}_kernel")
E("  .amdhsa_next_free_vgpr 256")
E("  .amdhsa_next_free_sgpr 96")
E("  .amdhsa_accum_offset 256")
E("  .amdhsa_group_segment_fixed_size 0")
E("  .amdhsa_kernarg_size 104")
E("  .amdhsa_user_sgpr_count 2")
E("  .amdhsa_user_sgpr_kernarg_segment_ptr 1")
E("  .amdhsa_system_sgpr_workgroup_id_x 1")
E("  .amdhsa_float_denorm_mode_32 3")
E(".end_amdhsa_kernel")
open(OUT, "w").write("\n".join(lines) + "\n")
print("wrote", OUT, len(lines), "lines")
```

```python
import sys, os

NAME = "recurrent_scan__ssm_conv_s4d__dense_activation_relu__prompt"
OUT = sys.argv[1] if len(sys.argv) > 1 else f"cdna_kernels/{NAME}.s"
STAMP = int(os.environ.get("STAMP", "0"))

WS_XN = 0x0000000
WS_XNT = 0x0200000
XNT_STRIDE = 4160
KR_STRIDE = 9216
if os.environ.get("COMPACT"):
    WS_FLG = 0x01C0000
    WS_W1T = 0x01C4000
    WS_W2T = WS_W1T + 0x188000
    WS_YT = WS_W2T + 0x188000
    WS_H = WS_YT + 0x1C0000
else:
    WS_W1T = 0x0400000
    WS_W2T = 0x0600000
    WS_H = 0x1000000
    WS_YT = 0x1800000
    WS_FLG = 0x1C00000
LNF, W1F, W2F, HF, YF, LNF2, DUMMYF = 0, 1024, 2048, 3072, 4096, 5120, 6144

NA, NB = 224, 224
GRID = NA + NB
LDS = 70144

lines = []


def E(s=""):
    lines.append(s)


DSTAMP = int(os.environ.get("DSTAMP", "0"))


PLAIN = int(os.environ.get("PLAIN", "0"))


def I(s):
    if PLAIN and s.startswith("global_load") and s.endswith(" sc1") and "s[70:71]" not in s and "s[66:67]" not in s:
        s = s[:-4]
    if DSTAMP and s == "s_endpgm":
        lb = uid("DS")
        for x in ("s_cmp_lg_u32 s69, 0", f"s_cbranch_scc1 {lb}",
                  "s_mov_b64 exec, 1", "s_memrealtime s[34:35]", "s_waitcnt vmcnt(0) lgkmcnt(0)",
                  "v_mov_b32 v1, 8", "v_mov_b32 v2, s34", "global_atomic_umax v1, v2, s[66:67]",
                  "s_cmp_lg_u32 s28, 0", f"s_cbranch_scc1 {lb}",
                  "v_mov_b32 v1, 4", "v_mov_b32 v2, s30", "global_store_dword v1, v2, s[66:67]"):
            lines.append("    " + x)
        lines.append(lb + ":")
    if STAMP and s == "s_endpgm":
        for x in ("s_mov_b64 exec, -1",
                  "s_memrealtime s[34:35]", "s_memtime s[36:37]",
                  "s_waitcnt vmcnt(0) lgkmcnt(0)",
                  f"s_add_u32 s38, s64, {0x2000000}", "s_addc_u32 s39, s65, 0",
                  "s_lshl_b32 s2, s28, 2", "s_add_u32 s2, s2, s69", "s_lshl_b32 s2, s2, 5", "v_mov_b32 v1, s2",
                  "v_mov_b32 v4, s30", "v_mov_b32 v5, s31", "v_mov_b32 v6, s34", "v_mov_b32 v7, s35",
                  "v_mov_b32 v8, s32", "v_mov_b32 v9, s33", "v_mov_b32 v10, s36", "v_mov_b32 v11, s37",
                  "global_store_dwordx4 v1, v[4:7], s[38:39]", "global_store_dwordx4 v1, v[8:11], s[38:39] offset:16",
                  "v_mov_b32 v4, s40", "v_mov_b32 v5, s42", "v_mov_b32 v6, s44", "v_mov_b32 v7, s46",
                  "v_mov_b32 v8, s48", "v_mov_b32 v9, s50", "v_mov_b32 v10, s52", "v_mov_b32 v11, s54",
                  "v_add_u32 v1, 0x100000, v1",
                  "global_store_dwordx4 v1, v[4:7], s[38:39]", "global_store_dwordx4 v1, v[8:11], s[38:39] offset:16"):
            lines.append("    " + x)
    lines.append("    " + s)


def KMARK(n):
    if STAMP and os.environ.get("KM"):
        lines.append(f"    s_memtime s[{40+2*n}:{41+2*n}]")


def MARK(n):
    if STAMP and not os.environ.get("KM"):
        lines.append(f"    s_memtime s[{40+2*n}:{41+2*n}]")


def L(lbl):
    lines.append(lbl + ":")


_uid = [0]


def uid(p):
    _uid[0] += 1
    return f"{p}_{_uid[0]}"


def interleave(chains):
    chains = [list(c) for c in chains]
    while any(chains):
        for c in chains:
            if c:
                I(c.pop(0))


def bf16r(dst, src):
    I(f"v_cvt_pk_bf16_f32 v{dst}, v{src}, v{src}")
    I(f"v_lshlrev_b32 v{dst}, 16, v{dst}")


def get_nonce():
    a, b = uid("N_poll"), uid("N_ok")
    I("s_cmp_lg_u32 s68, 0")
    I(f"s_cbranch_scc1 {b}")
    I("s_waitcnt vmcnt(0)")
    I("v_readfirstlane_b32 s68, v255")
    I("s_cmp_lg_u32 s68, 0")
    I(f"s_cbranch_scc1 {b}")
    I(f"v_mov_b32 v253, {128 if DSTAMP else 0}")
    L(a)
    I("global_load_dword v254, v253, s[66:67] sc1")
    I("s_waitcnt vmcnt(0)")
    I("v_readfirstlane_b32 s68, v254")
    I("s_cmp_lg_u32 s68, 0")
    I(f"s_cbranch_scc1 {b}")
    I("s_sleep 4")
    I(f"s_branch {a}")
    L(b)


def publish(*soffs):
    e = uid("PB_end")
    I("s_waitcnt vmcnt(0) lgkmcnt(0)")
    I("s_barrier")
    I("s_cmp_lg_u32 s69, 0")
    I(f"s_cbranch_scc1 {e}")
    get_nonce()
    I("v_mov_b32 v254, s68")
    I("s_mov_b64 s[72:73], exec")
    I("s_mov_b64 exec, 1")
    for soff in soffs:
        I(f"v_mov_b32 v253, s{soff}")
        I("global_store_dword v253, v254, s[70:71] sc1")
    I("s_mov_b64 exec, s[72:73]")
    L(e)


def wait_flags(specs, first_sleep=0):
    e = uid("W_end")
    I("s_cmp_lg_u32 s69, 0")
    I(f"s_cbranch_scc1 {e}")
    get_nonce()
    if first_sleep:
        I(f"s_sleep {first_sleep}")
    for (soff, n) in specs:
        a, b = uid("W_poll"), uid("W_ok")
        I("v_and_b32 v253, 63, v0")
        I(f"v_min_u32 v253, {n-1}, v253")
        I(f"v_lshl_add_u32 v253, v253, 2, s{soff}")
        L(a)
        I("global_load_dword v254, v253, s[70:71] sc1")
        I("s_waitcnt vmcnt(0)")
        I("v_cmp_ne_u32 vcc, s68, v254")
        I("s_cmp_eq_u64 vcc, 0")
        I(f"s_cbranch_scc1 {b}")
        I("s_sleep 3")
        I(f"s_branch {a}")
        L(b)
    L(e)
    I("s_barrier")


HEADER = open(f"cdna_kernels/{NAME}.s.ref").read().split("; Override launch")[0]
E(HEADER.rstrip("\n"))
E(f"; @launch grid=({GRID},1,1) block=(256,1,1) lds={LDS}")
E('.amdgcn_target "amdgcn-amd-amdhsa--gfx950"')
E(".text")
E(f".globl {NAME}_kernel")
E(".p2align 8")
E(f".type {NAME}_kernel,@function")
L(f"{NAME}_kernel")
I(f"s_cmp_ge_u32 s2, {GRID}")
I("s_cbranch_scc1 X_exit")
I("s_mov_b32 s28, s2")
if DSTAMP:
    I("s_memrealtime s[30:31]")
if STAMP:
    I("s_memrealtime s[30:31]")
    I("s_memtime s[32:33]")
I("s_load_dwordx16 s[4:19], s[0:1], 0")
I("s_load_dwordx8 s[56:63], s[0:1], 64")
I("s_load_dwordx2 s[64:65], s[0:1], 96")
I("v_readfirstlane_b32 s69, v0")
I("s_lshr_b32 s69, s69, 6")
I("s_mov_b32 s68, 0")
I("s_waitcnt lgkmcnt(0)")
I("s_mov_b32 s66, s62")
I("s_mov_b32 s67, s63")
I(f"s_add_u32 s70, s64, {WS_FLG}")
I("s_addc_u32 s71, s65, 0")
I("s_or_b32 s72, s2, s69")
I("s_cmp_lg_u32 s72, 0")
I("s_cbranch_scc1 X_nononce")
I("s_memrealtime s[72:73]")
I("s_waitcnt lgkmcnt(0)")
I("s_or_b32 s68, s72, 1")
I(f"v_mov_b32 v253, {128 if DSTAMP else 0}")
I("v_mov_b32 v254, s68")
I("s_mov_b64 exec, 1")
I("global_store_dword v253, v254, s[66:67] sc1")
I("s_mov_b64 exec, -1")
L("X_nononce")
I(f"v_mov_b32 v253, {128 if DSTAMP else 0}")
I("global_load_dword v255, v253, s[66:67] sc1")
I(f"s_cmp_ge_u32 s2, {NA}")
I("s_cbranch_scc1 B_start")

if os.environ.get("NOA"):
    I("s_branch X_exit")
I(f"s_setprio {os.environ.get('PRIO_A', '3')}")
I("s_cmp_ge_u32 s2, 128")
I("s_cbranch_scc1 A_wtonly")
I("s_mov_b32 s14, s64")
I("s_mov_b32 s15, s65")
I("s_mov_b32 s3, s2")
I("v_lshrrev_b32 v1, 6, v0")
I("v_and_b32 v2, 63, v0")
I("s_lshl_b32 s6, s3, 4")
I("v_lshl_add_u32 v3, v1, 2, s6")
I("v_mul_u32_u24 v3, 896, v3")
I("v_lshl_add_u32 v3, v2, 4, v3")
I("s_mul_i32 s7, s3, 14336")
I("v_lshrrev_b32 v29, 2, v2")
I("v_lshlrev_b32 v29, 10, v29")
I("v_and_b32 v28, 3, v2")
I("v_lshl_add_u32 v29, v28, 8, v29")
I("v_lshl_add_u32 v29, v1, 6, v29")
I("s_mov_b32 s20, 0x3b124925")
I("s_mov_b32 s21, 0x43e00000")
I("s_mov_b32 s22, 0x3727c5ac")
for r in range(8, 24):
    I(f"v_mov_b32 v{r}, 0")
I("s_mov_b64 s[16:17], exec")
I("s_mov_b32 s18, -1")
I("s_mov_b32 s19, 0x00ffffff")
I("s_waitcnt lgkmcnt(0)")
I("s_mov_b64 exec, s[18:19]")
for k in range(4):
    I(f"global_load_dwordx4 v[{8+4*k}:{11+4*k}], v3, s[4:5] offset:{896*k}")
I("s_mov_b64 exec, s[16:17]")
I("s_waitcnt vmcnt(0)")
for k in range(4):
    for j in range(4):
        I(f"v_lshlrev_b32 v{32+8*k+2*j}, 16, v{8+4*k+j}")
        I(f"v_and_b32 v{33+8*k+2*j}, 0xffff0000, v{8+4*k+j}")


def rows(fmt, **kw):
    for k in range(4):
        b = 32 + 8 * k
        I(fmt.format(k=k, s=8 + k, t=12 + k, m=16 + k, u=20 + k, w=64 + k, x=68 + k, sg=24 + k,
                     b0=b, b1=b + 1, b2=b + 2, b3=b + 3, b4=b + 4, b5=b + 5, b6=b + 6, b7=b + 7, **kw))


def dpp4():
    for sh in (1, 2, 4, 8):
        rows("v_add_f32_dpp v{s}, v{s}, v{s} row_shr:%d row_mask:0xf bank_mask:0xf bound_ctrl:0" % sh)
    rows("v_add_f32_dpp v{s}, v{s}, v{s} row_bcast:15 row_mask:0xa bank_mask:0xf")
    rows("v_add_f32_dpp v{s}, v{s}, v{s} row_bcast:31 row_mask:0xc bank_mask:0xf")
    rows("v_readlane_b32 s{sg}, v{s}, 63")


rows("v_add_f32 v{s}, v{b0}, v{b1}")
rows("v_add_f32 v{t}, v{b2}, v{b3}")
rows("v_add_f32 v{m}, v{b4}, v{b5}")
rows("v_add_f32 v{u}, v{b6}, v{b7}")
rows("v_add_f32 v{s}, v{s}, v{t}")
rows("v_add_f32 v{m}, v{m}, v{u}")
rows("v_add_f32 v{s}, v{s}, v{m}")
dpp4()
rows("v_mov_b32 v{t}, s{sg}")
rows("v_mul_f32 v{m}, s20, v{t}")
rows("v_fma_f32 v{u}, -v{m}, s21, v{t}")
rows("v_fma_f32 v{m}, v{u}, s20, v{m}")
rows("v_mov_b32 v{s}, 0")
I("s_mov_b64 exec, s[18:19]")
for j in range(8):
    rows("v_sub_f32 v{t}, v{bj}, v{m}".replace("{bj}", "{b%d}" % j))
    rows("v_fmac_f32 v{s}, v{t}, v{t}")
I("s_mov_b64 exec, s[16:17]")
I("s_nop 1")
dpp4()
rows("v_mov_b32 v{t}, s{sg}")
rows("v_mul_f32 v{u}, s20, v{t}")
rows("v_fma_f32 v{w}, -v{u}, s21, v{t}")
rows("v_fma_f32 v{u}, v{w}, s20, v{u}")
rows("v_cvt_pk_bf16_f32 v{u}, v{u}, v{u}")
rows("v_cvt_pk_bf16_f32 v{m}, v{m}, v{m}")
rows("v_lshlrev_b32 v{u}, 16, v{u}")
rows("v_lshlrev_b32 v{m}, 16, v{m}")
rows("v_add_f32 v{u}, s22, v{u}")
rows("v_cvt_pk_bf16_f32 v{u}, v{u}, v{u}")
rows("v_lshlrev_b32 v{u}, 16, v{u}")
rows("v_sqrt_f32 v{w}, v{u}")
for j in range(8):
    rows("v_sub_f32 v{bj}, v{bj}, v{m}".replace("{bj}", "{b%d}" % j))
rows("v_rcp_f32 v{x}, v{w}")
rows("v_fma_f32 v{t}, -v{w}, v{w}, v{u}")
rows("v_mul_f32 v{x}, 0.5, v{x}")
rows("v_fma_f32 v{w}, v{t}, v{x}, v{w}")
rows("v_cvt_pk_bf16_f32 v{w}, v{w}, v{w}")
rows("v_lshlrev_b32 v{w}, 16, v{w}")
rows("v_rcp_f32 v{x}, v{w}")
for j in range(0, 8, 2):
    rows("v_cvt_pk_bf16_f32 v{t}, v{bj}, v{bk}".replace("{bj}", "{b%d}" % j).replace("{bk}", "{b%d}" % (j + 1)))
    rows("v_lshlrev_b32 v{bj}, 16, v{t}".replace("{bj}", "{b%d}" % j))
    rows("v_and_b32 v{bk}, 0xffff0000, v{t}".replace("{bk}", "{b%d}" % (j + 1)))
rows("v_fma_f32 v{t}, -v{w}, v{x}, 1.0")
rows("v_fma_f32 v{x}, v{t}, v{x}, v{x}")
for j in range(8):
    rows("v_mul_f32 v{t}, v{bj}, v{x}".replace("{bj}", "{b%d}" % j))
    rows("v_fma_f32 v{u}, -v{t}, v{w}, v{bj}".replace("{bj}", "{b%d}" % j))
    rows("v_fma_f32 v{bj}, v{u}, v{x}, v{t}".replace("{bj}", "{b%d}" % j))
for j in range(4):
    for k in range(4):
        b = 32 + 8 * k
        I(f"v_cvt_pk_bf16_f32 v{8+4*k+j}, v{b+2*j}, v{b+2*j+1}")
I("v_lshlrev_b32 v30, 2, v1")
I("v_mul_u32_u24 v30, 896, v30")
I("v_lshl_add_u32 v30, v2, 4, v30")
I("s_mov_b64 exec, s[18:19]")
for k in range(4):
    I(f"ds_write_b128 v29, v[{8+4*k}:{11+4*k}] offset:{16384 + 16*k}")
I("s_mov_b64 exec, s[16:17]")
I("s_waitcnt lgkmcnt(0)")
I("s_barrier")
I("v_lshlrev_b32 v4, 4, v0")
I("v_add_u32 v5, s7, v4")
for q in range(3):
    I(f"ds_read_b128 v[{8+4*q}:{11+4*q}], v4 offset:{16384 + 4096*q}")
I("v_cmp_gt_u32 vcc, 128, v0")
I("s_and_saveexec_b64 s[16:17], vcc")
I(f"ds_read_b128 v[20:23], v4 offset:{16384 + 12288}")
I("v_add_u32 v6, 0x3000, v5")
I("s_waitcnt lgkmcnt(0)")
I("global_store_dwordx4 v6, v[20:23], s[14:15] sc1")
I("s_mov_b64 exec, s[16:17]")
I("v_add_u32 v6, 0x1000, v5")
I("v_add_u32 v7, 0x2000, v5")
I("s_waitcnt lgkmcnt(0)")
I("global_store_dwordx4 v5, v[8:11], s[14:15] sc1")
I("global_store_dwordx4 v6, v[12:15], s[14:15] sc1")
I("global_store_dwordx4 v7, v[16:19], s[14:15] sc1")
I("s_lshl_b32 s74, s3, 2")
publish(74)
I("s_branch A_g1")
L("A_wtonly")
I("s_sub_u32 s3, s2, 128")
I("s_mov_b32 s75, 96")
I("s_cmp_lt_u32 s3, 4")
I("s_cselect_b32 s75, 192, s75")


CFG = {1: (3584, 14336, 9363, 7, 56, WS_W1T), 2: (896, 57344, 2341, 28, 58, WS_W2T)}


def wt_params(which):
    sst, dtile, magic, nk, sp, wsoff = CFG[which]
    sb = 80 if which == 1 else 4
    for j in range(3):
        sj = sb + 4 * j
        if j == 0:
            I(f"s_mov_b32 s{sj}, s3")
        elif j == 1:
            I(f"s_add_u32 s{sj}, s3, 96")
        else:
            I(f"s_add_u32 s{sj}, s3, s75")
        I(f"s_mul_i32 s{sj+2}, s{sj}, {magic}")
        I(f"s_lshr_b32 s{sj+2}, s{sj+2}, 16")
        I(f"s_mul_i32 s{sj+1}, s{sj+2}, {nk}")
        I(f"s_sub_u32 s{sj+1}, s{sj}, s{sj+1}")
        if which == 1:
            I(f"s_and_b32 s{sj+3}, s{sj+2}, 1")
            I(f"s_mul_i32 s{sj+3}, s{sj+3}, 7")
            I(f"s_add_u32 s{sj+3}, s{sj+3}, s{sj+1}")
            I(f"s_lshl_b32 s{sj+3}, s{sj+3}, 2")
            I(f"s_lshr_b32 s20, s{sj+2}, 1")
            I("s_lshl_b32 s20, s20, 6")
            I(f"s_add_u32 s{sj+3}, s{sj+3}, s20")
            I(f"s_add_u32 s{sj+3}, s{sj+3}, {W1F}")
        else:
            I(f"s_lshl_b32 s{sj+3}, s{sj+2}, 7")
            I(f"s_lshl_b32 s20, s{sj+1}, 2")
            I(f"s_add_u32 s{sj+3}, s{sj+3}, s20")
            I(f"s_add_u32 s{sj+3}, s{sj+3}, {W2F}")


def wt_loads(which):
    sst, dtile, magic, nk, sp, wsoff = CFG[which]
    sb = 80 if which == 1 else 4
    rb = 8 if which == 1 else 32
    I(f"v_mul_u32_u24 v3, {sst}, v1")
    I("v_lshl_add_u32 v3, v2, 4, v3")
    for j in range(3):
        sj = sb + 4 * j
        I(f"s_mul_i32 s20, s{sj+1}, {64*sst}")
        I(f"s_lshl_b32 s21, s{sj+2}, 7")
        I("s_add_u32 s20, s20, s21")
        I("v_add_u32 v4, s20, v3")
        I(f"v_add_u32 v6, {32*sst}, v4")
        I(f"global_load_dwordx4 v[{rb+8*j}:{rb+3+8*j}], v4, s[{sp}:{sp+1}]")
        I(f"global_load_dwordx4 v[{rb+4+8*j}:{rb+7+8*j}], v6, s[{sp}:{sp+1}]")


def wt_out(which):
    sst, dtile, magic, nk, sp, wsoff = CFG[which]
    sb = 80 if which == 1 else 4
    lb = 0 if which == 1 else 24576
    I(f"s_add_u32 s22, s64, {wsoff}")
    I("s_addc_u32 s23, s65, 0")
    if which == 1:
        I("v_lshrrev_b32 v4, 2, v1")
        I("v_lshlrev_b32 v4, 4, v4")
        I("v_lshl_add_u32 v4, v3, 2, v4")
        I("v_and_b32 v6, 3, v1")
        I("v_add_u32 v4, v4, v6")
    else:
        I("v_lshl_add_u32 v4, v3, 4, v1")
    I("v_lshlrev_b32 v5, 10, v2")
    I("v_lshl_add_u32 v5, v4, 1, v5")
    I(f"v_mul_u32_u24 v7, {dtile}, v3")
    I("v_and_b32 v4, 63, v0")
    I("v_lshl_add_u32 v7, v4, 4, v7")
    for j in range(3):
        sj = sb + 4 * j
        for c in range(2):
            for e in range(8):
                I(f"ds_read_u16 v{64 + 8*c + e}, v5 offset:{lb + 8192*j + 4096*c + 128*e}")
            if c == 0:
                I("s_waitcnt lgkmcnt(0)")
        I(f"s_mul_i32 s20, s{sj+2}, {4*dtile}")
        I(f"s_lshl_b32 s21, s{sj+1}, 11")
        I("s_add_u32 s20, s20, s21")
        I("v_add_u32 v6, s20, v7")
        I("s_waitcnt lgkmcnt(0)")
        for t in range(8):
            I(f"v_lshl_or_b32 v{8+8*j+t}, v{65+2*t}, 16, v{64+2*t}")
        I(f"global_store_dwordx4 v6, v[{8+8*j}:{11+8*j}], s[22:23] sc1")
        I(f"global_store_dwordx4 v6, v[{12+8*j}:{15+8*j}], s[22:23] offset:1024 sc1")
    publish(sb + 3, sb + 7, sb + 11)


I("v_lshrrev_b32 v1, 3, v0")
I("v_and_b32 v2, 7, v0")
wt_params(1)
wt_loads(1)
wt_params(2)
I("v_lshlrev_b32 v56, 7, v1")
I("v_lshl_add_u32 v56, v2, 4, v56")
for j in range(3):
    I(f"s_waitcnt vmcnt({4-2*j})")
    I(f"ds_write_b128 v56, v[{8+8*j}:{11+8*j}] offset:{8192*j}")
    I(f"ds_write_b128 v56, v[{12+8*j}:{15+8*j}] offset:{8192*j+4096}")
wt_loads(2)
I("s_waitcnt lgkmcnt(0)")
I("s_barrier")
I("v_and_b32 v1, 15, v0")
I("v_bfe_u32 v2, v0, 4, 2")
I("v_lshrrev_b32 v3, 6, v0")
wt_out(1)
for j in range(3, 6):
    I(f"ds_write_b128 v56, v[{8+8*j}:{11+8*j}] offset:{8192*j}")
    I(f"ds_write_b128 v56, v[{12+8*j}:{15+8*j}] offset:{8192*j+4096}")
I("s_waitcnt lgkmcnt(0)")
I("s_barrier")
wt_out(2)

L("A_g1")
MARK(0)
I(f"s_setprio {os.environ.get('PRIO_G', '0')}")
I("v_and_b32 v1, 15, v0")
I("v_bfe_u32 v2, v0, 4, 2")
I("v_lshrrev_b32 v3, 6, v0")
I("s_and_b32 s10, s2, 7")
I("s_lshr_b32 s3, s2, 3")
I("s_mul_i32 s8, s3, 9363")
I("s_lshr_b32 s8, s8, 16")
I("s_mul_i32 s9, s8, 7")
I("s_sub_u32 s9, s3, s9")
I("s_and_b32 s11, s10, 1")
I("s_mul_i32 s11, s11, 7")
I("s_add_u32 s9, s9, s11")
I("s_lshr_b32 s10, s10, 1")
I("s_lshl_b32 s10, s10, 2")
I("s_add_u32 s8, s8, s10")
I("s_lshl_b32 s76, s8, 5")
I("s_lshl_b32 s77, s9, 6")
I(f"s_add_u32 s77, s77, {W1F}")
I("s_lshl_b32 s74, s8, 6")
I("s_lshl_b32 s10, s9, 2")
I("s_add_u32 s74, s74, s10")
I(f"s_add_u32 s74, s74, {HF}")
wait_flags([(77, 14)])
I(f"s_add_u32 s4, s64, {WS_W1T}")
I("s_addc_u32 s5, s65, 0")
I(f"s_add_u32 s6, s64, {WS_XN}")
I("s_addc_u32 s7, s65, 0")
I("s_lshl_b32 s9, s9, 7")
I("s_lshl_b32 s8, s8, 7")
I("v_and_b32 v4, 1, v3")
I("v_lshl_add_u32 v4, v4, 6, s9")
I("v_lshrrev_b32 v5, 1, v3")
I("v_lshl_add_u32 v5, v5, 6, s8")
I("v_and_b32 v7, 63, v0")
I("v_lshlrev_b32 v7, 4, v7")
I("s_mul_i32 s11, s8, 896")
I("v_mul_u32_u24 v6, 896, v4")
I("v_add_u32 v8, v6, v7")
for j in range(1, 4):
    I(f"v_add_u32 v{8+j}, {14336*j}, v8")
I("v_mul_u32_u24 v6, 28672, v3")
I("v_add_u32 v6, v6, v7")
I("v_add_u32 v12, s11, v6")
I("v_add_u32 v13, 14336, v12")
I("s_lshl_b32 s12, s69, 11")
I("v_lshrrev_b32 v14, 1, v3")
I("v_lshl_add_u32 v14, v14, 12, v7")
G_ACC = 16
G_FB = 80
G_FA = 144
RA, RB = 6, 8
issued = []


def g1_a(st):
    fa = G_FA + 16 * (st % RA)
    off = (st & 3) * 1024
    if st and (st & 3) == 0:
        I("s_add_u32 s4, s4, 4096")
        I("s_addc_u32 s5, s5, 0")
    for j in range(4):
        I(f"global_load_dwordx4 v[{fa+4*j}:{fa+4*j+3}], v{8+j}, s[4:5] offset:{off} sc1")
        issued.append(("A", st))


def g1_b(st):
    slot = (st % RB) * 8192
    if st:
        I("s_add_u32 s6, s6, 1024")
        I("s_addc_u32 s7, s7, 0")
    for (va, off) in ((12, 0), (13, 1024)):
        I(f"s_add_u32 m0, s12, {slot + off}")
        I("s_nop 0")
        I(f"global_load_lds_dwordx4 v{va}, s[6:7] sc1")
        issued.append(("B", st))


def g1_wait(*tags):
    last = max(i for i, x in enumerate(issued) if x in tags)
    return len(issued) - 1 - last


def g1_reads(st):
    slot = (st % RB) * 8192
    fb = G_FB + 16 * (st & 1)
    for j in range(4):
        I(f"ds_read_b128 v[{fb+4*j}:{fb+4*j+3}], v14 offset:{slot + 1024*j}")


NS1 = 14
for st in range(RA):
    g1_a(st)
wait_flags([(76, 8)])
MARK(1)
for st in range(RB):
    g1_b(st)
I(f"s_waitcnt vmcnt({g1_wait(('B', 0))})")
I("s_barrier")
g1_reads(0)
for st in range(NS1):
    if st + 1 < NS1:
        I(f"s_waitcnt vmcnt({g1_wait(('B', st + 1), ('A', st))}) lgkmcnt(0)")
        I("s_barrier")
        if st + RB < NS1:
            g1_b(st + RB)
        g1_reads(st + 1)
    else:
        I(f"s_waitcnt vmcnt({g1_wait(('A', st))}) lgkmcnt(0)")
    fa = G_FA + 16 * (st % RA)
    fb = G_FB + 16 * (st & 1)
    for a_ in range(4):
        for b_ in range(4):
            c = G_ACC + 16 * a_ + 4 * b_
            src = "0" if st == 0 else f"v[{c}:{c+3}]"
            I(f"v_mfma_f32_16x16x32_bf16 v[{c}:{c+3}], v[{fa+4*a_}:{fa+4*a_+3}], v[{fb+4*b_}:{fb+4*b_+3}], {src}")
    if st + RA < NS1:
        g1_a(st + RA)
I(f"s_add_u32 s4, s64, {WS_H}")
I("s_addc_u32 s5, s65, 0")
I("v_mul_u32_u24 v6, 3584, v5")
I("v_lshl_add_u32 v6, v4, 5, v6")
I("v_lshrrev_b32 v7, 1, v2")
I("v_lshl_add_u32 v6, v7, 10, v6")
I("v_and_b32 v7, 1, v2")
I("v_lshl_add_u32 v6, v7, 9, v6")
I("v_lshl_add_u32 v6, v1, 4, v6")
I("s_nop 4")
for b in range(4):
    for a in range(4):
        c = G_ACC + 16 * a + 4 * b
        for r in range(4):
            I(f"v_max_f32 v{c+r}, 0, v{c+r}")
        I(f"v_cvt_pk_bf16_f32 v{80+8*b+2*a}, v{c}, v{c+1}")
        I(f"v_cvt_pk_bf16_f32 v{81+8*b+2*a}, v{c+2}, v{c+3}")
    if b > 0:
        I(f"v_add_u32 v6, {57344}, v6")
    I(f"global_store_dwordx4 v6, v[{80+8*b}:{83+8*b}], s[4:5] sc1")
    I(f"global_store_dwordx4 v6, v[{84+8*b}:{87+8*b}], s[4:5] offset:256 sc1")
publish(74)
MARK(2)

I(f"s_setprio {os.environ.get('PRIO_G2', '0')}")
I("s_load_dwordx2 s[16:17], s[0:1], 0")
I("s_load_dwordx2 s[18:19], s[0:1], 48")
I("s_load_dwordx2 s[20:21], s[0:1], 80")
I("s_mov_b32 s14, s64")
I("s_mov_b32 s15, s65")
I("v_and_b32 v4, 63, v0")
I("s_and_b32 s10, s2, 7")
I("s_lshr_b32 s3, s2, 3")
I("s_mul_i32 s8, s3, 9363")
I("s_lshr_b32 s8, s8, 16")
I("s_mul_i32 s9, s8, 7")
I("s_sub_u32 s9, s3, s9")
I("s_lshl_b32 s10, s10, 2")
I("s_add_u32 s8, s8, s10")
I("s_lshr_b32 s76, s8, 1")
I("s_lshl_b32 s76, s76, 6")
I(f"s_add_u32 s76, s76, {HF}")
I("s_lshl_b32 s77, s9, 7")
I(f"s_add_u32 s78, s77, {YF}")
I(f"s_add_u32 s77, s77, {W2F}")
I("s_lshl_b32 s9, s9, 6")
I("s_lshl_b32 s8, s8, 6")
wait_flags([(77, 28), (76, 14)])
MARK(3)
I("s_waitcnt lgkmcnt(0)")
I(f"s_add_u32 s4, s64, {WS_W2T}")
I("s_addc_u32 s5, s65, 0")
I(f"s_add_u32 s6, s64, {WS_H}")
I("s_addc_u32 s7, s65, 0")
I(f"s_add_u32 s10, s64, {WS_YT}")
I("s_addc_u32 s11, s65, 0")
EX, EXN, EY, EDK = 232, 240, 216, 208


def fin_late():
    I("v_lshrrev_b32 v249, 2, v4")
    I("v_lshl_add_u32 v249, v3, 4, v249")
    I("v_add_u32 v250, s8, v249")
    I("v_and_b32 v251, 3, v4")
    I("v_mul_u32_u24 v5, 896, v250")
    I("s_lshl_b32 s12, s9, 1")
    I("v_lshl_add_u32 v6, v251, 5, s12")
    I("v_add_u32 v5, v5, v6")
    I(f"global_load_dwordx4 v[{EX}:{EX+3}], v5, s[16:17]")
    I(f"global_load_dwordx4 v[{EX+4}:{EX+7}], v5, s[16:17] offset:16")
    I("v_lshrrev_b32 v248, 4, v250")
    I("v_mul_u32_u24 v248, 14336, v248")
    I("v_and_b32 v7, 15, v250")
    I("v_lshl_add_u32 v248, v7, 4, v248")
    I("v_lshrrev_b32 v7, 6, v6")
    I("v_lshl_add_u32 v248, v7, 10, v248")
    I("v_bfe_u32 v7, v6, 4, 2")
    I("v_lshl_add_u32 v248, v7, 8, v248")
    I(f"global_load_dwordx4 v[{EXN}:{EXN+3}], v248, s[14:15] sc1")
    I(f"global_load_dwordx4 v[{EXN+4}:{EXN+7}], v248, s[14:15] offset:256 sc1")
    I(f"global_load_dwordx4 v[{EDK}:{EDK+3}], v6, s[18:19]")
    I(f"global_load_dwordx4 v[{EDK+4}:{EDK+7}], v6, s[18:19] offset:16")
    I("v_lshlrev_b32 v7, 11, v6")
    I("v_lshl_add_u32 v252, v250, 1, v7")
    I("v_and_b32 v253, 31, v0")
    I("v_lshl_add_u32 v253, v253, 2, s78")
    I("global_load_dword v254, v253, s[70:71] sc1")
    I(f"v_mov_b32 v7, {128 if DSTAMP else 0}")
    I("global_load_dword v255, v7, s[66:67] sc1")


def gemm_core(sa, sb, va, vb, acc0, buf0, ring, late, nlate):
    NS = 14
    PF = ring - 1

    def loads(s):
        bb = buf0 + 32 * (s % ring)
        off = (s & 3) * 1024
        if s and (s & 3) == 0:
            I(f"s_add_u32 s{sa}, s{sa}, 4096")
            I(f"s_addc_u32 s{sa+1}, s{sa+1}, 0")
            I(f"s_add_u32 s{sb}, s{sb}, 4096")
            I(f"s_addc_u32 s{sb+1}, s{sb+1}, 0")
        for j in range(4):
            I(f"global_load_dwordx4 v[{bb+4*j}:{bb+4*j+3}], v{va+j}, s[{sa}:{sa+1}] offset:{off} sc1")
        for j in range(4):
            I(f"global_load_dwordx4 v[{bb+16+4*j}:{bb+16+4*j+3}], v{vb+j}, s[{sb}:{sb+1}] offset:{off} sc1")

    for s in range(PF):
        loads(s)
    for s in range(NS):
        if s + PF < NS:
            loads(s + PF)
            if s + PF == NS - 1:
                late()
                I(f"s_waitcnt vmcnt({8*PF + nlate})")
            else:
                I(f"s_waitcnt vmcnt({8*PF})")
        else:
            I(f"s_waitcnt vmcnt({8*(NS-1-s) + nlate})")
        bb = buf0 + 32 * (s % ring)
        for a in range(4):
            for b in range(4):
                c = acc0 + 16 * a + 4 * b
                src = "0" if s == 0 else f"v[{c}:{c+3}]"
                I(f"v_mfma_f32_16x16x32_bf16 v[{c}:{c+3}], v[{bb+4*a}:{bb+4*a+3}], v[{bb+16+4*b}:{bb+16+4*b+3}], {src}")


I("v_mul_u32_u24 v7, 14336, v3")
I("v_lshl_add_u32 v7, v4, 4, v7")
I("s_mul_i32 s12, s9, 3584")
I("v_add_u32 v8, s12, v7")
for j in range(1, 4):
    I(f"v_add_u32 v{8+j}, {57344*j}, v8")
I("s_mul_i32 s12, s8, 3584")
I("v_add_u32 v12, s12, v7")
for j in range(1, 4):
    I(f"v_add_u32 v{12+j}, {57344*j}, v12")
F_ACC = 16
F_BUF = 80
gemm_core(4, 6, 8, 12, F_ACC, F_BUF, 4, fin_late, 8)
MARK(4)
I("s_waitcnt vmcnt(0)")
L("A_ypoll")
I("v_cmp_ne_u32 vcc, v255, v254")
I("s_cmp_eq_u64 vcc, 0")
I("s_cbranch_scc1 A_yok")
I("s_sleep 3")
I("global_load_dword v254, v253, s[70:71] sc1")
I("s_waitcnt vmcnt(0)")
I("s_branch A_ypoll")
L("A_yok")
MARK(5)
for dd in range(16):
    if dd:
        I("v_add_u32 v252, 0x1000, v252")
    I(f"global_load_ushort v{EY+dd}, v252, s[10:11] sc1")
I("v_lshl_add_u32 v6, v3, 6, v1")
I("v_mul_u32_u24 v6, 272, v6")
I("v_lshl_add_u32 v6, v2, 4, v6")
for a_ in range(4):
    for b_ in range(4):
        c = F_ACC + 16 * a_ + 4 * b_
        I(f"ds_write_b128 v6, v[{c}:{c+3}] offset:{16*b_*272 + 64*a_}")
I("s_waitcnt lgkmcnt(0)")
I("s_barrier")
I("v_mul_u32_u24 v6, 272, v249")
I("v_lshl_add_u32 v6, v251, 6, v6")
for p in range(4):
    for j in range(4):
        I(f"ds_read_b128 v[{80+16*p+4*j}:{83+16*p+4*j}], v6 offset:{p*64*272 + 16*j}")
I("s_mov_b32 s22, 0xbfb8aa3b")
I("s_waitcnt vmcnt(16) lgkmcnt(0)")


def bfr(r):
    return [f"v_cvt_pk_bf16_f32 v{r}, v{r}, v{r}", f"v_lshlrev_b32 v{r}, 16, v{r}"]


def epi1(dd):
    o = 80 + dd
    t1, t2, t3 = 144 + dd, 160 + dd, 176 + dd
    h = dd & 1

    def unp(dst, reg):
        if h:
            return f"v_and_b32 v{dst}, 0xffff0000, v{reg + dd//2}"
        return f"v_lshlrev_b32 v{dst}, 16, v{reg + dd//2}"
    return [f"v_add_f32 v{o}, v{o}, v{o+16}",
            f"v_add_f32 v{o+32}, v{o+32}, v{o+48}",
            unp(t2, EXN), unp(t3, EDK),
            f"v_add_f32 v{o}, v{o}, v{o+32}",
            f"v_mul_f32 v{t2}, v{t2}, v{t3}"] + bfr(o) + bfr(t2) + [
            f"v_mul_f32 v{t1}, s22, v{o}",
            unp(t3, EX),
            f"v_exp_f32 v{t1}, v{t1}",
            "s_nop 0",
            f"v_add_f32 v{t1}, 1.0, v{t1}",
            f"v_rcp_f32 v{t1}, v{t1}",
            "s_nop 0",
            f"v_mul_f32 v{o}, v{o}, v{t1}"] + bfr(o)


def epi2(dd):
    o = 80 + dd
    t1, t2, t3 = 144 + dd, 160 + dd, 176 + dd
    return [f"v_lshlrev_b32 v{t1}, 16, v{EY+dd}",
            f"v_add_f32 v{t2}, v{t2}, v{t1}"] + bfr(t2) + [
            f"v_mul_f32 v{o}, v{o}, v{t2}"] + bfr(o) + [
            f"v_add_f32 v{o}, v{o}, v{t3}"]


for g in range(0, 16, 4):
    interleave([epi1(dd) for dd in range(g, g + 4)])
I("s_waitcnt vmcnt(0)")
for g in range(0, 16, 4):
    interleave([epi2(dd) for dd in range(g, g + 4)])
for j in range(8):
    I(f"v_cvt_pk_bf16_f32 v{16+j}, v{80+2*j}, v{81+2*j}")
I("global_store_dwordx4 v5, v[16:19], s[20:21]")
I("global_store_dwordx4 v5, v[20:23], s[20:21] offset:16")
I("s_endpgm")

L("B_start")
I(f"s_setprio {os.environ.get('PRIO_B', '0')}")
I(f"s_sub_u32 s2, s2, {NA}")
KSTG = 35072
UB = 2 * KR_STRIDE
I("s_lshl_b32 s3, s2, 10")
I("v_lshl_add_u32 v1, v0, 1, s3")
I("s_lshl_b32 s16, s2, 2")
I("v_mov_b32 v7, s16")
I("s_mov_b32 s20, 0x3fb8aa3b")
I("s_mov_b32 s21, 0x32a57060")
I("s_mov_b32 s22, 0x3f317218")
I("s_mov_b32 s23, 0x3e22f983")
I("s_mov_b32 s24, 0x31dc9c88")
I("s_waitcnt lgkmcnt(0)")
for ch in range(2):
    rb = 140 + 5 * ch
    I(f"global_load_ushort v{rb}, v1, s[6:7] offset:{512*ch}")
    I(f"global_load_ushort v{rb+1}, v1, s[8:9] offset:{512*ch}")
    I(f"global_load_ushort v{rb+2}, v1, s[10:11] offset:{512*ch}")
    I(f"global_load_ushort v{rb+3}, v1, s[12:13] offset:{512*ch}")
    I(f"global_load_ushort v{rb+4}, v7, s[14:15] offset:{2*ch}")
I("s_mov_b32 s74, 0")
I("v_mov_b32 v60, 0x80")
for g in range(2):
    es = [4 * g + k for k in range(4)]
    A_, B_, C_, D_, F_ = 10, 14, 48, 52, 56

    def col(fmt):
        for k, e in enumerate(es):
            I(fmt.format(a=A_ + k, b=B_ + k, c=C_ + k, d=D_ + k, f=F_ + k, e=e, o=160 + e))
    col("v_lshl_add_u32 v{a}, v0, 3, {e}")
    col("v_cvt_f32_u32 v{a}, v{a}")
    col("v_cvt_pk_bf16_f32 v{a}, v{a}, v{a}")
    col("v_bfe_u32 v{b}, v{a}, 7, 8")
    col("v_lshlrev_b32 v{a}, 16, v{a}")
    col("v_subrev_u32 v{b}, 134, v{b}")
    col("v_cvt_u32_f32 v{a}, v{a}")
    col("v_med3_i32 v{b}, v{b}, 0, 3")
    col("v_lshlrev_b32 v{c}, v{b}, v60")
    col("v_sub_u32 v{f}, 3, v{b}")
    col("v_and_b32 v{c}, 0xffffff00, v{c}")
    col("v_sub_u32 v{a}, v{a}, v{c}")
    col("v_and_b32 v{c}, 7, v{a}")
    col("v_lshrrev_b32 v{d}, 7, v{a}")
    col("v_lshrrev_b32 v{c}, v{b}, v{c}")
    col("v_lshlrev_b32 v{d}, v{f}, v{d}")
    col("v_bfe_u32 v{a}, v{a}, 3, 4")
    col("v_add_u32 v{c}, v{c}, v{d}")
    col("v_min_u32 v{d}, 1, v{b}")
    col("v_lshl_add_u32 v{c}, v{c}, 4, v{a}")
    col("v_add_u32 v{d}, v{d}, v{b}")
    col("v_lshl_add_u32 v{c}, v{d}, 7, v{c}")
    col("v_lshlrev_b32 v{o}, 2, v{c}")
I("s_waitcnt vmcnt(0)")
L("B_kloop")
KMARK(0)
for k, r in enumerate((2, 3, 4, 5, 6)):
    I(f"v_lshlrev_b32 v{r}, 16, v{140+k}")


def exp_acc(dst, x, t0, t1):
    I(f"v_mul_f32 v{t0}, s20, v{x}")
    I(f"v_fma_f32 v{t1}, v{x}, s20, -v{t0}")
    I(f"v_fma_f32 v{t1}, v{x}, s21, v{t1}")
    I(f"v_exp_f32 v{dst}, v{t0}")
    I(f"v_mul_f32 v{t1}, s22, v{t1}")
    I(f"v_fma_f32 v{dst}, v{dst}, v{t1}, v{dst}")


exp_acc(8, 6, 10, 11)
bf16r(8, 8)
exp_acc(9, 2, 10, 11)
bf16r(9, 9)
I("v_mul_f32 v9, v9, v8")
I("v_mul_f32 v12, s20, v9")
I("v_sub_f32 v12, 0, v12")
I("v_mul_f32 v3, v3, v8")
I("v_mul_f32 v13, s23, v3")
I("v_fma_f32 v14, v3, s23, -v13")
I("v_fma_f32 v14, v3, s24, v14")
I("v_rndne_f32 v10, v13")
I("v_sub_f32 v10, v13, v10")
I("v_and_b32 v13, 0xffffff00, v10")
I("v_sub_f32 v10, v10, v13")
I("v_add_f32 v14, v10, v14")
I("v_mul_f32 v15, v4, v8")
I("v_add_f32 v15, v15, v15")
I("v_mul_f32 v16, v5, v8")
I("v_add_f32 v16, v16, v16")
WREG = 8704
LOO = 4352
I("v_and_b32 v2, 15, v0")
I("v_bfe_u32 v3, v0, 4, 2")
I("v_lshrrev_b32 v6, 6, v0")
I(f"v_mul_u32_u24 v6, {WREG}, v6")
I(f"v_add_u32 v6, {KSTG}, v6")
I("v_and_b32 v4, 63, v0")
I("v_lshl_add_u32 v4, v4, 3, v6")
I("v_mul_u32_u24 v5, 528, v2")
I("v_lshl_add_u32 v5, v3, 4, v5")
I("v_add_u32 v5, v5, v6")


def cexp_ops(p, d, t):
    return [f"v_mul_f32 v{t}, {p}, v12",
            f"v_mul_f32 v{t+1}, {p}, v13",
            f"v_exp_f32 v{t}, v{t}",
            f"v_fract_f32 v{t+1}, v{t+1}",
            f"v_mov_b32 v{d}, {p}",
            f"v_fma_f32 v{t+1}, v{d}, v14, v{t+1}",
            f"v_cos_f32 v{d}, v{t+1}",
            f"v_sin_f32 v{d+1}, v{t+1}",
            "s_nop 0",
            f"v_mul_f32 v{d}, v{d}, v{t}",
            f"v_mul_f32 v{d+1}, v{d+1}, v{t}"]


def cmul_ops(d, a, b):
    return [f"v_mul_f32 v{d}, v{a}, v{b}",
            f"v_mul_f32 v{d+1}, v{a}, v{b+1}",
            f"v_fma_f32 v{d}, -v{a+1}, v{b+1}, v{d}",
            f"v_fma_f32 v{d+1}, v{a+1}, v{b}, v{d+1}"]


def split_ops(v, row, t, neg=False):
    n = "-" if neg else ""
    return [f"v_cvt_pk_bf16_f32 v{t}, v{v}, {n}v{v+1}",
            f"v_lshlrev_b32 v{t+1}, 16, v{t}",
            f"v_and_b32 v{t+2}, 0xffff0000, v{t}",
            f"v_sub_f32 v{t+1}, v{v}, v{t+1}",
            f"v_sub_f32 v{t+2}, {n}v{v+1}, v{t+2}",
            f"v_cvt_pk_bf16_f32 v{t+1}, v{t+1}, v{t+2}",
            f"ds_write_b64 v4, v[{t}:{t+1}] offset:{row*528}"]


ZQ = lambda q: 20 + 2 * q
EJ = lambda j: 40 + 2 * j
Z128 = 18
BH, BL = 72, 200
AF = 40
ACC = 124
GT = [104, 106, 108, 110]
ST = [112, 116, 120, 136]
KMARK(1)
interleave([cexp_ops("1.0", ZQ(1), 104), cexp_ops("0x41000000", EJ(1), 106), cexp_ops("0x43000000", Z128, 108)])
I("v_mov_b32 v40, 1.0")
I("v_mov_b32 v41, 0")
interleave([cmul_ops(EJ(2), EJ(1), EJ(1)), cmul_ops(ZQ(2), ZQ(1), ZQ(1)), split_ops(40, 0, ST[0], True), split_ops(EJ(1), 1, ST[1], True)])
interleave([cmul_ops(EJ(3), EJ(2), EJ(1)), cmul_ops(EJ(4), EJ(2), EJ(2)), cmul_ops(ZQ(3), ZQ(2), ZQ(1)), cmul_ops(ZQ(4), ZQ(2), ZQ(2)), split_ops(EJ(2), 2, ST[0], True)])
interleave([cmul_ops(EJ(5), EJ(4), EJ(1)), cmul_ops(EJ(6), EJ(3), EJ(3)), cmul_ops(EJ(7), EJ(4), EJ(3)), cmul_ops(EJ(8), EJ(4), EJ(4)),
            split_ops(EJ(3), 3, ST[0], True), split_ops(EJ(4), 4, ST[1], True)])
interleave([cmul_ops(ZQ(5), ZQ(4), ZQ(1)), cmul_ops(ZQ(6), ZQ(3), ZQ(3)), cmul_ops(ZQ(7), ZQ(4), ZQ(3)),
            cmul_ops(EJ(9), EJ(8), EJ(1)), cmul_ops(EJ(10), EJ(8), EJ(2)), cmul_ops(EJ(11), EJ(8), EJ(3)),
            split_ops(EJ(5), 5, ST[0], True), split_ops(EJ(6), 6, ST[1], True)])
interleave([cmul_ops(EJ(12), EJ(8), EJ(4)), cmul_ops(EJ(13), EJ(8), EJ(5)), cmul_ops(EJ(14), EJ(8), EJ(6)), cmul_ops(EJ(15), EJ(8), EJ(7)),
            split_ops(EJ(7), 7, ST[0], True), split_ops(EJ(8), 8, ST[1], True), split_ops(EJ(9), 9, ST[2], True), split_ops(EJ(10), 10, ST[3], True)])
interleave([split_ops(EJ(11 + k), 11 + k, ST[k], True) for k in range(4)])
interleave([split_ops(EJ(15), 15, ST[0], True), cmul_ops(38, 15, Z128)])
I("v_mov_b32 v36, v15")
I("v_mov_b32 v37, v16")
I("s_waitcnt lgkmcnt(0)")
for sidx in range(8):
    I(f"ds_read_b128 v[{AF+4*sidx}:{AF+4*sidx+3}], v5 offset:{64*sidx}")
I("s_waitcnt lgkmcnt(0)")
for sidx in range(8):
    r_ = AF + 4 * sidx
    I(f"v_mov_b32 v{BH+4*sidx}, v{r_}")
    I(f"v_mov_b32 v{BH+4*sidx+1}, v{r_}")
    I(f"v_mov_b32 v{BH+4*sidx+2}, v{r_+2}")
    I(f"v_mov_b32 v{BH+4*sidx+3}, v{r_+2}")
    I(f"v_mov_b32 v{BL+4*sidx}, v{r_+1}")
    I(f"v_mov_b32 v{BL+4*sidx+1}, v{r_+1}")
    I(f"v_mov_b32 v{BL+4*sidx+2}, v{r_+3}")
    I(f"v_mov_b32 v{BL+4*sidx+3}, v{r_+3}")
KMARK(2)
CR_ = [36, 38, 6, 8, 10]
CK = lambda k: CR_[k % 5] if k < 8 else 170 + 2 * (k - 8)


def rowval(k, q, row, gi):
    if q == 0:
        return split_ops(CK(k), row, ST[gi])
    return cmul_ops(GT[gi], CK(k), ZQ(q)) + split_ops(GT[gi], row, ST[gi])


def tile_mfma(t):
    I("s_waitcnt lgkmcnt(0)")
    for sidx in range(8):
        I(f"ds_read_b128 v[{AF+4*sidx}:{AF+4*sidx+3}], v5 offset:{64*sidx}")
    acc = ACC + 4 * t
    out = []
    for sidx in range(8):
        a_ = AF + 4 * sidx
        for y in (BH + 4 * sidx, BL + 4 * sidx):
            src = "0" if (sidx == 0 and y == BH) else f"v[{acc}:{acc+3}]"
            out.append(f"v_mfma_f32_16x16x32_bf16 v[{acc}:{acc+3}], v[{a_}:{a_+3}], v[{y}:{y+3}], {src}")
    return out


def run_rows(rows_, extra):
    for g in range(0, len(rows_), 4):
        ch = [rowval(k, q, row, gi) for gi, (k, q, row) in enumerate(rows_[g:g + 4])]
        if extra:
            ch.append(extra.pop(0))
        interleave(ch)
    for e in extra:
        interleave([e])


run_rows([(kap, q, q + 8 * kap) for kap in (0, 1) for q in range(8)],
         [cmul_ops(CK(k), CK(k - 1), Z128) for k in (2, 3, 4)])
mf = tile_mfma(0)
I("s_waitcnt lgkmcnt(0)")
KMARK(3)
r1 = [(2 + kp, q, q // 2 + 4 * kp) for kp in (0, 1) for q in (0, 2, 4, 6)]
r1b = [(4 + kp, q, 8 + q // 4 + 2 * kp) for kp in range(4) for q in (0, 4)]
interleave([mf[:8]] + [rowval(k, q, row, gi) for gi, (k, q, row) in enumerate(r1[:4])])
interleave([mf[8:]] + [rowval(k, q, row, gi) for gi, (k, q, row) in enumerate(r1[4:])] + [cmul_ops(CK(5), CK(4), Z128)])
interleave([rowval(k, q, row, gi) for gi, (k, q, row) in enumerate(r1b[:4])] + [cmul_ops(CK(6), CK(5), Z128) + cmul_ops(CK(7), CK(6), Z128)])
interleave([rowval(k, q, row, gi) for gi, (k, q, row) in enumerate(r1b[4:])] + [sum([cmul_ops(CK(k), CK(k - 1), Z128) for k in (8, 9, 10)], [])])
mf = tile_mfma(1)
I("s_waitcnt lgkmcnt(0)")
KMARK(4)
interleave([split_ops(CK(8 + r), r, ST[r]) for r in range(3)] + [sum([cmul_ops(CK(k), CK(k - 1), Z128) for k in (11, 12, 13)], []), mf[:8]])
interleave([split_ops(CK(11 + r), 3 + r, ST[r]) for r in range(3)] + [sum([cmul_ops(CK(k), CK(k - 1), Z128) for k in (14, 15, 16)], []), mf[8:]])
interleave([split_ops(CK(14 + r), 6 + r, ST[r]) for r in range(3)])
mf = tile_mfma(2)
I("s_waitcnt lgkmcnt(0)")
for m in mf:
    I(m)
I("s_nop 7")
I("s_nop 1")
I("v_lshrrev_b32 v19, 6, v0")
I(f"v_mul_u32_u24 v19, {WREG}, v19")
I("v_lshl_add_u32 v19, v3, 8, v19")
I("v_lshl_add_u32 v19, v2, 2, v19")
for t in range(3):
    for r in range(4):
        I(f"ds_write_b32 v19, v{ACC+4*t+r} offset:{KSTG + t*1024 + r*64}")
I("s_waitcnt lgkmcnt(0)")
I("s_barrier")
KMARK(5)
for e in range(8):
    for w in range(4):
        I(f"ds_read_b32 v{16 + 4*e + w}, v{160+e} offset:{KSTG + w*8704}")
    if e == 3:
        I("s_waitcnt lgkmcnt(0)")
I("s_waitcnt lgkmcnt(0)")
for e in range(8):
    b = 16 + 4 * e
    I(f"v_add_f32 v{b}, v{b}, v{b+1}")
    I(f"v_add_f32 v{b+2}, v{b+2}, v{b+3}")
    I(f"v_add_f32 v{b}, v{b}, v{b+2}")
for j in range(4):
    ka, kb = 16 + 4 * (7 - 2 * j), 16 + 4 * (6 - 2 * j)
    I(f"v_cvt_pk_bf16_f32 v{48+j}, v{ka}, v{kb}")
    I(f"v_lshlrev_b32 v10, 16, v{48+j}")
    I(f"v_and_b32 v11, 0xffff0000, v{48+j}")
    I(f"v_sub_f32 v10, v{ka}, v10")
    I(f"v_sub_f32 v11, v{kb}, v11")
    I(f"v_cvt_pk_bf16_f32 v{52+j}, v10, v11")
I("v_lshlrev_b32 v10, 4, v0")
I("v_sub_u32 v10, 4080, v10")
I("v_add_u32 v10, s74, v10")
I("ds_write_b128 v10, v[48:51]")
I("ds_write_b128 v10, v[52:55] offset:4608")
I("v_cmp_gt_u32 vcc, 64, v0")
I("s_and_saveexec_b64 s[18:19], vcc")
I("v_and_b32 v10, 31, v0")
I("v_lshlrev_b32 v10, 4, v10")
I("v_lshrrev_b32 v11, 5, v0")
I("v_mul_u32_u24 v11, 4608, v11")
I("v_add3_u32 v10, v10, v11, s74")
for r in range(12, 16):
    I(f"v_mov_b32 v{r}, 0")
I("ds_write_b128 v10, v[12:15] offset:4096")
I("s_mov_b64 exec, s[18:19]")
I("s_waitcnt lgkmcnt(0)")
I("s_barrier")
KMARK(6)
for k in range(5):
    I(f"v_mov_b32 v{140+k}, v{145+k}")
I(f"s_add_u32 s74, s74, {KR_STRIDE}")
I(f"s_cmp_eq_u32 s74, {2*KR_STRIDE}")
I("s_cbranch_scc1 B_kdone")
MARK(0)
I(f"s_mov_b32 s76, {LNF}")
I(f"s_mov_b32 s77, {LNF + 256}")
if not os.environ.get("NOA"):
    wait_flags([(76, 64), (77, 64)])
I("v_and_b32 v1, 15, v0")
I("v_bfe_u32 v2, v0, 4, 2")
I("v_lshrrev_b32 v3, 6, v0")
I("s_lshr_b32 s6, s2, 4")
I("s_lshl_b32 s6, s6, 10")
I("s_lshr_b32 s7, s2, 2")
I("s_and_b32 s7, s7, 3")
I("s_lshl_b32 s7, s7, 8")
I("s_add_u32 s6, s6, s7")
I("s_and_b32 s7, s2, 3")
I("s_lshl_b32 s7, s7, 2")
I("s_add_u32 s6, s6, s7")
I("s_add_u32 s6, s64, s6")
I("s_addc_u32 s7, s65, 0")
I("v_lshrrev_b32 v4, 4, v0")
I("v_mul_u32_u24 v4, 14336, v4")
I("v_lshl_add_u32 v4, v1, 4, v4")
for j in range(8):
    if j:
        I(f"v_add_u32 v4, {16*14336}, v4")
    I(f"global_load_dword v{190+j}, v4, s[6:7] sc1")
I("s_branch B_kloop")
L("B_kdone")
I(f"s_setprio {os.environ.get('PRIO_C', '3')}")
MARK(1)
I("v_and_b32 v1, 15, v0")
I("v_bfe_u32 v2, v0, 4, 2")
I("v_lshrrev_b32 v3, 6, v0")
I("v_lshlrev_b32 v5, 1, v0")
I("v_cmp_gt_u32 vcc, 16, v0")
I("s_and_saveexec_b64 s[18:19], vcc")
I("v_mov_b32 v8, 0")
for q in range(4):
    I(f"ds_write_b16 v5, v8 offset:{UB + q*XNT_STRIDE}")
I("s_mov_b64 exec, s[18:19]")
I("s_waitcnt lgkmcnt(0)")
I("s_barrier")
for j in range(8):
    I(f"s_waitcnt vmcnt({7-j})")
    o = UB + 512 * j
    I(f"ds_write_b16 v5, v{190+j} offset:{o + 32}")
    I(f"ds_write_b16 v5, v{190+j} offset:{o + XNT_STRIDE + 30}")
    I(f"ds_write_b16_d16_hi v5, v{190+j} offset:{o + 2*XNT_STRIDE + 32}")
    I(f"ds_write_b16_d16_hi v5, v{190+j} offset:{o + 3*XNT_STRIDE + 30}")
I("s_waitcnt lgkmcnt(0)")
I("s_barrier")
MARK(2)
I("v_lshrrev_b32 v4, 1, v3")
I("v_lshl_add_u32 v5, v2, 3, v1")
I("v_add_u32 v5, 1, v5")
I("v_and_b32 v7, 1, v5")
I("v_sub_u32 v5, v5, v7")
I("v_lshlrev_b32 v5, 1, v5")
I(f"v_mul_u32_u24 v7, {XNT_STRIDE}, v7")
I("v_add_u32 v5, v5, v7")
I(f"v_mul_u32_u24 v7, {2*XNT_STRIDE}, v4")
I("v_add_u32 v5, v5, v7")
I("v_and_b32 v7, 1, v3")
I("v_lshl_add_u32 v5, v7, 8, v5")
I(f"v_add_u32 v232, {UB}, v5")
for c in range(1, 8):
    I(f"v_add_u32 v{232+c}, {512*c}, v232")
I(f"v_mul_u32_u24 v6, {KR_STRIDE}, v4")
I("v_lshl_add_u32 v6, v2, 4, v6")
I("v_lshl_add_u32 v6, v7, 8, v6")
I("v_lshlrev_b32 v7, 5, v1")
I("v_sub_u32 v6, v6, v7")
I("v_add_u32 v6, 480, v6")
CA0 = 8
CBUF = 40


def creads(r):
    bb = CBUF + 96 * (r & 1)
    out = []
    for c in range(8):
        out.append(f"ds_read2_b32 v[{bb+4*c}:{bb+4*c+1}], v{232+c} offset0:{16*r} offset1:{16*r+1}")
        out.append(f"ds_read2_b32 v[{bb+4*c+2}:{bb+4*c+3}], v{232+c} offset0:{16*r+2} offset1:{16*r+3}")
    for n in range(8):
        o = 3584 - 512 * n + 64 * r
        out.append(f"ds_read_b128 v[{bb+32+8*n}:{bb+32+8*n+3}], v6 offset:{o}")
        out.append(f"ds_read_b128 v[{bb+36+8*n}:{bb+36+8*n+3}], v6 offset:{o+4608}")
    return out


for x in creads(0):
    I(x)
for r in range(4):
    I("s_waitcnt lgkmcnt(0)")
    nxt = creads(r + 1) if r < 3 else []
    bb = CBUF + 96 * (r & 1)
    mf = []
    for T in range(8):
        acc = CA0 + 4 * T
        for c in range(T + 1):
            n = T - c
            first = (r == 0 and c == 0)
            src = "0" if first else f"v[{acc}:{acc+3}]"
            mf.append(f"v_mfma_f32_16x16x32_bf16 v[{acc}:{acc+3}], v[{bb+4*c}:{bb+4*c+3}], v[{bb+32+8*n}:{bb+32+8*n+3}], {src}")
            mf.append(f"v_mfma_f32_16x16x32_bf16 v[{acc}:{acc+3}], v[{bb+4*c}:{bb+4*c+3}], v[{bb+36+8*n}:{bb+36+8*n+3}], v[{acc}:{acc+3}]")
    k = 0
    for idx, m in enumerate(mf):
        I(m)
        if k < len(nxt) and idx % 2 == 1:
            I(nxt[k]); k += 1
    while k < len(nxt):
        I(nxt[k]); k += 1
I("s_barrier")
I("v_and_b32 v5, 63, v0")
I("v_lshlrev_b32 v5, 4, v5")
I("v_lshl_add_u32 v6, v3, 12, v5")
I("v_xor_b32 v7, 1, v3")
I("v_lshl_add_u32 v5, v7, 12, v5")
I("s_lshl_b32 s10, s2, 13")
I(f"s_add_u32 s10, s10, {WS_YT}")
I("s_add_u32 s10, s64, s10")
I("s_addc_u32 s11, s65, 0")
I("v_lshlrev_b32 v7, 12, v4")
I("v_lshl_add_u32 v7, v1, 5, v7")
I("v_lshl_add_u32 v7, v2, 3, v7")
I("s_lshl_b32 s74, s2, 2")
I(f"s_add_u32 s74, s74, {YF}")
I("s_and_b32 s9, s69, 1")
I("s_cmp_eq_u32 s9, 1")
I("s_cbranch_scc1 B_cv1")
for h in range(2):
    if h:
        L("B_cv1")
    keep = [4 * h + j for j in range(4)]
    give = [4 * (1 - h) + j for j in range(4)]
    for j, T in enumerate(give):
        I(f"ds_write_b128 v6, v[{CA0+4*T}:{CA0+4*T+3}] offset:{1024*j}")
    I("s_waitcnt lgkmcnt(0)")
    I("s_barrier")
    for j in range(4):
        I(f"ds_read_b128 v[{40+4*j}:{43+4*j}], v5 offset:{1024*j}")
    I("s_waitcnt lgkmcnt(0)")
    for j, T in enumerate(keep):
        acc = CA0 + 4 * T
        for r_ in range(4):
            I(f"v_add_f32 v{acc+r_}, v{acc+r_}, v{40+4*j+r_}")
        I(f"v_cvt_pk_bf16_f32 v{56+2*j}, v{acc}, v{acc+1}")
        I(f"v_cvt_pk_bf16_f32 v{57+2*j}, v{acc+2}, v{acc+3}")
        I(f"global_store_dwordx2 v7, v[{56+2*j}:{57+2*j}], s[10:11] offset:{512*T} sc1")
    if h == 0:
        I("s_branch B_pub")
L("B_pub")
MARK(3)
publish(74)
I("s_endpgm")
L("X_exit")
lines.append("    s_endpgm")

E('.section .rodata,"a"')
E(".p2align 6")
E(f".amdhsa_kernel {NAME}_kernel")
E("  .amdhsa_next_free_vgpr 256")
E("  .amdhsa_next_free_sgpr 96")
E("  .amdhsa_accum_offset 256")
E("  .amdhsa_group_segment_fixed_size 0")
E("  .amdhsa_kernarg_size 104")
E("  .amdhsa_user_sgpr_count 2")
E("  .amdhsa_user_sgpr_kernarg_segment_ptr 1")
E("  .amdhsa_system_sgpr_workgroup_id_x 1")
E("  .amdhsa_float_denorm_mode_32 3")
E(".end_amdhsa_kernel")
open(OUT, "w").write("\n".join(lines) + "\n")
print("wrote", OUT, len(lines), "lines")
```
